```python
import torch

def _softmax(x, axis=-1):
    return torch.softmax(x, dim=axis)
def _gelu(x):
    return torch.nn.functional.gelu(x, approximate="tanh")
def _silu(x):
    return torch.nn.functional.silu(x)
def _sigmoid(x):
    return torch.sigmoid(x)
def _layernorm(x, axis=-1, eps=1e-5):
    m = x.mean(dim=axis, keepdim=True)
    v = x.var(dim=axis, keepdim=True, unbiased=False)
    return (x - m) / torch.sqrt(v + eps)
def _scatter_add(tgt, idx, src, axis=0):
    return tgt.clone().index_add_(axis, idx, src)
def _segment_sum(src, seg, n):
    out = torch.zeros((n,) + src.shape[1:], dtype=src.dtype)
    return out.index_add_(0, seg, src)
def _pad(x, pw):
    flat = tuple(v for pair in reversed(pw) for v in pair)
    return torch.nn.functional.pad(x, flat)

kernel_name = 'interleave_layers__gqa_block_cached__glu_gated_bilinear__decode'

def setup_inputs():

    _w = (lambda a: (lambda t: t.to(torch.bfloat16) if t.is_floating_point() else t)(torch.as_tensor(a)))
    def _A_setup():
        B, Sq, D = 2, 1, 512
        Hq, Hkv, Sk, Dh = 32, 32, 16384, 128
        assert Hq % Hkv == 0, (Hq, Hkv)
        return {
            "x": _w((lambda *s: torch.randn(*s, dtype=torch.bfloat16) * 0.05)(B, Sq, D)),
            "k_cache": _w((lambda *s: torch.randn(*s, dtype=torch.bfloat16) * 0.8)(B, Hkv, Sk, Dh)),
            "v_cache": _w((lambda *s: torch.randn(*s, dtype=torch.bfloat16) * 1.6)(B, Hkv, Sk, Dh)),
            "wq": _w((lambda *s: torch.randn(*s, dtype=torch.bfloat16) * 0.8)(D, Hq * Dh) * (D ** -0.5)),
            "wo": _w((lambda *s: torch.randn(*s, dtype=torch.bfloat16) * 1.6)(Hq * Dh, D) * ((Hq * Dh) ** -0.5)),
        }
    _A_in = _A_setup()

    def _B_setup():
        B, S, D, F = 2, 1, 512, 1376
        return {
            "x": _w((lambda *s: torch.randn(*s, dtype=torch.bfloat16) * 0.05)(B, S, D)),
            "w_gate": _w((lambda *s: torch.randn(*s, dtype=torch.bfloat16) * 0.4)(D, F) * (D ** -0.5)),
            "w_up": _w((lambda *s: torch.randn(*s, dtype=torch.bfloat16) * 0.4)(D, F) * (D ** -0.5)),
            "w_down": _w((lambda *s: torch.randn(*s, dtype=torch.bfloat16) * 0.4)(F, D) * (F ** -0.5)),
        }
    _B_in = _B_setup()

    return {
        "A_x": _A_in["x"],
        "A_k_cache": _A_in["k_cache"],
        "A_v_cache": _A_in["v_cache"],
        "A_wq": _A_in["wq"],
        "A_wo": _A_in["wo"],
        "B_x": _B_in["x"],
        "B_w_gate": _B_in["w_gate"],
        "B_w_up": _B_in["w_up"],
        "B_w_down": _B_in["w_down"],
    }

def reference(A_x, A_k_cache, A_v_cache, A_wq, A_wo, B_x, B_w_gate, B_w_up, B_w_down):
    def _A_ref(x, k_cache, v_cache, wq, wo):
        B, Sq, D = x.shape
        Hq, Dh = 32, 128
        Hkv = k_cache.shape[1]
        rep = Hq // Hkv
        q = (lambda x, *d: x.permute(*d))((x @ wq).reshape(B, Sq, Hq, Dh), 0, 2, 1, 3)
        k = (lambda x, n, axis: torch.repeat_interleave(x, n, dim=axis))(k_cache, rep, axis=1)
        v = (lambda x, n, axis: torch.repeat_interleave(x, n, dim=axis))(v_cache, rep, axis=1)
        scores = torch.einsum("bhqd,bhkd->bhqk", q, k) * (Dh ** -0.5)
        p = _softmax(scores, axis=-1)
        o = torch.einsum("bhqk,bhkd->bhqd", p, v)
        return (lambda x, *d: x.permute(*d))(o, 0, 2, 1, 3).reshape(B, Sq, Hq * Dh) @ wo

    def _B_ref(x, w_gate, w_up, w_down):
        g = torch.einsum("bsd,df->bsf", x, w_gate)
        u = torch.einsum("bsd,df->bsf", x, w_up)
        h = g * u
        return torch.einsum("bsf,fd->bsd", h, w_down)

    x = A_x
    x = x + _A_ref(_layernorm(x, axis=-1), A_k_cache, A_v_cache, A_wq, A_wo)
    x = x + _B_ref(_layernorm(x, axis=-1), B_w_gate, B_w_up, B_w_down)
    x = x + _A_ref(_layernorm(x, axis=-1), A_k_cache, A_v_cache, A_wq, A_wo)
    x = x + _B_ref(_layernorm(x, axis=-1), B_w_gate, B_w_up, B_w_down)
    return x
```

```python
import re

_reg_re = re.compile(r'^(v|a|s)(?:(\d+)|\[(\d+):(\d+)\])$')

def parse_reg(tok):
    tok = tok.strip()
    neg = False
    if tok.startswith('-'):
        tok = tok[1:]
    if tok.startswith('abs(') and tok.endswith(')'):
        tok = tok[4:-1]
    if tok.startswith('|') and tok.endswith('|'):
        tok = tok[1:-1]
    if tok == 'vcc': return [('s', 106), ('s', 107)]
    if tok == 'vcc_lo': return [('s', 106)]
    if tok == 'vcc_hi': return [('s', 107)]
    if tok == 'exec': return [('s', 126), ('s', 127)]
    if tok == 'exec_lo': return [('s', 126)]
    if tok == 'exec_hi': return [('s', 127)]
    if tok == 'm0': return [('s', 124)]
    m = _reg_re.match(tok)
    if not m: return []
    k = m.group(1)
    if m.group(2) is not None:
        lo = hi = int(m.group(2))
    else:
        lo, hi = int(m.group(3)), int(m.group(4))
    kind = 'v' if k in 'va' else 's'
    off = 256 if k == 'a' else 0
    return [(kind, off + i) for i in range(lo, hi + 1)]

TRANS = ('v_exp_', 'v_log_', 'v_rcp_', 'v_rsq_', 'v_sqrt_', 'v_sin_', 'v_cos_')
RMW = ('v_fmac_', 'v_dot2c_', 'v_mac_', 'v_pk_fmac', 'v_writelane')

def mfma_passes(mn):
    if '32x32x16' in mn or '32x32x8' in mn: return 8
    if '16x16x32' in mn or '16x16x16' in mn: return 4
    raise ValueError(mn)

class Asm:
    def __init__(self):
        self.lines = []
        self.t = 0
        self.valu_w = {}
        self.trans_w = {}
        self.mfma_w = {}
        self.mfma_c = {}
        self.valu_sw = {}
        self.m0_w = -100
        self.store_d = {}
        self.vm = []
        self.vm_next = 0
        self.lg = []
        self.lg_next = 0
        self.ninstr = 0
        self.uid = 0

    def raw(self, s):
        self.lines.append(s)
    def comment(self, s):
        self.lines.append('  ; ' + s)
    def label(self, name):
        self.lines.append(name + ':')
    def newlabel(self, base='L'):
        self.uid += 1
        return f'{base}_{self.uid}'

    def nop(self, n):
        while n > 0:
            k = min(n, 16)
            self.lines.append(f'  s_nop {k-1}')
            self.t += k
            self.ninstr += 1
            n -= k

    def flush_hazards(self):
        need = 0
        t = self.t
        for r, (tm, p, st, n) in self.mfma_w.items():
            need = max(need, {2:5,4:8,8:12,16:20}[p] - (t - tm - 1))
        for r, (tm, p) in self.mfma_c.items():
            need = max(need, {2:1,4:3,8:7,16:15}[p] - (t - tm - 1))
        for d, req in ((self.valu_w, 2), (self.trans_w, 1), (self.valu_sw, 5), (self.store_d, 2)):
            for r, tm in d.items():
                need = max(need, req - (t - tm - 1))
        need = max(need, 1 - (t - self.m0_w - 1))
        if need > 0:
            self.nop(need)

    def _split(self, text):
        text = text.strip()
        sp = text.split(None, 1)
        mn = sp[0]
        rest = sp[1] if len(sp) > 1 else ''
        ops = []
        cur = ''
        depth = 0
        for ch in rest:
            if ch == '[': depth += 1
            if ch == ']': depth -= 1
            if ch == ',' and depth == 0:
                ops.append(cur.strip()); cur = ''
            else:
                cur += ch
        if cur.strip(): ops.append(cur.strip())
        mods = ''
        if ops:
            last = ops[-1].split(None, 1)
            ops[-1] = last[0]
            if len(last) > 1: mods = last[1]
        return mn, ops, mods

    def i(self, text):
        mn, ops, mods = self._split(text)
        t = self.t
        need = 0
        def req(tm, n):
            nonlocal need
            need = max(need, n - (t - tm - 1))
        R = [parse_reg(o) for o in ops]
        ret = None
        post = []
        if mn.startswith('v_mfma'):
            p = mfma_passes(mn)
            D, A, B, C = R[0], R[1], R[2], R[3]
            for r in A + B + C:
                if r in self.valu_w: req(self.valu_w[r], 2)
            for r in A + B:
                if r in self.mfma_w:
                    tm, pp, st, n = self.mfma_w[r]
                    req(tm, {2:5,4:8,8:12,16:20}[pp])
            for r in C:
                if r in self.mfma_w:
                    tm, pp, st, n = self.mfma_w[r]
                    same = (st == C[0] and n == len(C) and pp == p)
                    if not same: req(tm, {2:4,4:6,8:10,16:18}[pp])
                    elif pp == 2: req(tm, 2)
            if C != D:
                for r in D:
                    if r in self.mfma_w:
                        tm, pp, st, n = self.mfma_w[r]
                        req(tm, {2:5,4:8,8:12,16:20}[pp])
            def upd(tt):
                for r in D: self.mfma_w[r] = (tt, p, D[0], len(D)); self.valu_w.pop(r, None)
                for r in C: self.mfma_c[r] = (tt, p)
            post.append(upd)
        elif mn.startswith('v_'):
            dpp = ('row_' in mods) or ('quad_perm' in mods) or ('wave_' in mods)
            swap = mn.startswith('v_permlane')
            if mn.startswith('v_cmp'):
                dst = R[0]; srcs = [r for x in R[1:] for r in x]
            elif swap:
                dst = R[0] + R[1]; srcs = R[0] + R[1]
            else:
                dst = R[0]; srcs = [r for x in R[1:] for r in x]
                if mn.startswith(RMW): srcs = srcs + dst
            vs = [r for r in srcs if r[0] == 'v']
            ss = [r for r in srcs if r[0] == 's']
            vd = [r for r in dst if r[0] == 'v']
            sd = [r for r in dst if r[0] == 's']
            for r in vs + vd:
                if r in self.mfma_w:
                    tm, pp, st, n = self.mfma_w[r]
                    req(tm, {2:5,4:8,8:12,16:20}[pp])
            for r in vd:
                if r in self.mfma_c:
                    tm, pp = self.mfma_c[r]
                    req(tm, {2:1,4:3,8:7,16:15}[pp])
                if r in self.store_d: req(self.store_d[r], 2)
            for r in vs:
                if r in self.trans_w: req(self.trans_w[r], 1)
            if dpp:
                for r in R[1]:
                    if r in self.valu_w: req(self.valu_w[r], 2)
            if swap:
                for r in vs:
                    if r in self.valu_w: req(self.valu_w[r], 2)
            if mn.startswith(('v_readlane', 'v_readfirstlane')):
                for r in R[1]:
                    if r in self.valu_w: req(self.valu_w[r], 1)
                if len(R) > 2:
                    for r in R[2]:
                        if r in self.valu_sw: req(self.valu_sw[r], 4)
            for r in ss:
                if r in self.valu_sw: req(self.valu_sw[r], 2)
            if mn.startswith('v_writelane') and len(R) > 2:
                for r in R[2]:
                    if r in self.valu_sw: req(self.valu_sw[r], 4)
            istrans = mn.startswith(TRANS)
            def upd(tt):
                for r in vd:
                    self.valu_w[r] = tt
                    self.mfma_w.pop(r, None)
                    if istrans: self.trans_w[r] = tt
                    else: self.trans_w.pop(r, None)
                for r in sd: self.valu_sw[r] = tt
            post.append(upd)
        elif mn.startswith(('buffer_', 'global_')):
            lds = ' lds' in (' ' + mods) or 'load_lds' in mn
            isload = ('load' in mn)
            isstore = ('store' in mn)
            isatomic = ('atomic' in mn)
            allr = [r for x in R for r in x]
            for r in allr:
                if r[0] == 's' and r in self.valu_sw: req(self.valu_sw[r], 5)
                if r[0] == 'v' and r in self.mfma_w:
                    tm, pp, st, n = self.mfma_w[r]
                    req(tm, {2:5,4:8,8:12,16:20}[pp])
            if lds: req(self.m0_w, 1)
            def upd(tt):
                if isstore and ('x4' in mn or 'x3' in mn):
                    data = R[0] if mn.startswith('buffer_') else R[1]
                    for r in data: self.store_d[r] = tt
                if isload and not lds:
                    for r in R[0]:
                        self.valu_w.pop(r, None); self.trans_w.pop(r, None); self.mfma_w.pop(r, None)
            post.append(upd)
            ret = self.vm_next; self.vm_next += 1; self.vm.append(ret)
        elif mn.startswith('ds_'):
            allr = [r for x in R for r in x]
            for r in allr:
                if r[0] == 'v' and r in self.mfma_w:
                    tm, pp, st, n = self.mfma_w[r]
                    req(tm, {2:5,4:8,8:12,16:20}[pp])
            if 'read' in mn or 'rtn' in mn or 'permute' in mn or 'swizzle' in mn:
                def upd(tt):
                    for r in R[0]:
                        self.valu_w.pop(r, None); self.trans_w.pop(r, None); self.mfma_w.pop(r, None)
                post.append(upd)
            ret = self.lg_next; self.lg_next += 1; self.lg.append(ret)
        elif mn.startswith('s_'):
            if mn == 's_nop':
                n = int(ops[0]) + 1
                self.lines.append('  ' + text.strip()); self.t += n; self.ninstr += 1
                return None
            if mn.startswith(('s_load', 's_memtime', 's_memrealtime')):
                raise ValueError('use smem() for scalar memory ops')
            srcs = [r for x in R[1:] for r in x] if not mn.startswith(('s_cmp', 's_cbranch', 's_waitcnt', 's_branch', 's_setpc', 's_bitcmp')) else [r for x in R for r in x]
            for r in srcs:
                if r in self.valu_sw: req(self.valu_sw[r], 1)
            if mn.startswith(('s_cbranch_vcc',)):
                for r in (('s',106),('s',107)):
                    if r in self.valu_sw: req(self.valu_sw[r], 5)
            wr = R[0] if (R and not mn.startswith(('s_cmp', 's_cbranch', 's_waitcnt', 's_branch', 's_setpc', 's_bitcmp', 's_barrier', 's_sleep', 's_endpgm', 's_setprio'))) else []
            def upd(tt):
                for r in wr:
                    self.valu_sw.pop(r, None)
                    if r == ('s', 124): self.m0_w = tt
            post.append(upd)
        else:
            raise ValueError('unknown instr ' + text)
        if need > 0:
            self.nop(need)
        self.lines.append('  ' + text.strip())
        for f in post: f(self.t)
        self.t += 1
        self.ninstr += 1
        return ret

    def smem(self, text):
        self.lines.append('  ' + text.strip()); self.t += 1; self.ninstr += 1

    def wait_vm(self, vid):
        if vid is None or vid not in self.vm: return
        k = self.vm.index(vid)
        n = len(self.vm) - 1 - k
        assert n <= 63, n
        self.i(f's_waitcnt vmcnt({n})')
        self.vm = self.vm[k+1:]
    def vm_done(self, vid):
        return vid not in self.vm
    def wait_vm_all(self):
        self.i('s_waitcnt vmcnt(0)'); self.vm = []
    def wait_lg(self, lid):
        if lid is None or lid not in self.lg: return
        k = self.lg.index(lid)
        n = len(self.lg) - 1 - k
        if n > 15:
            n = 15
            raise AssertionError('lgkm too deep')
        self.i(f's_waitcnt lgkmcnt({n})')
        self.lg = self.lg[k+1:]
    def wait_lg_all(self):
        self.i('s_waitcnt lgkmcnt(0)'); self.lg = []

    def text(self):
        return '\n'.join(self.lines) + '\n'
```

```python
from asmlib import Asm
import gen as G

def vr(b, n=4): return f'v[{b}:{b+n-1}]'

def rbf(h, dst, src):
    h.i(f'v_cvt_pk_bf16_f32 v{dst}, v{src}, v{src}')
    h.i(f'v_and_b32 v{dst}, 0xffff0000, v{dst}')

DPP_STEPS = ['row_ror:8 row_mask:0xf', 'row_ror:4 row_mask:0xf', 'row_ror:2 row_mask:0xf', 'row_ror:1 row_mask:0xf',
             'row_bcast:15 row_mask:0xa', 'row_bcast:31 row_mask:0xc']
def wave_reduce_multi(h, op, regs):
    for c in DPP_STEPS:
        for r in regs: h.i(f'{op}_dpp v{r}, v{r}, v{r} {c} bank_mask:0xf')

def bad_branch(h, regs, tmp, fail_label):
    regs = list(regs)
    if len(regs) == 1:
        h.i(f'v_cmp_eq_u32 vcc, -1, v{regs[0]}')
    else:
        h.i(f'v_max_u32 v{tmp}, v{regs[0]}, v{regs[1]}')
        k = 2
        while k < len(regs):
            if k + 1 < len(regs):
                h.i(f'v_max3_u32 v{tmp}, v{tmp}, v{regs[k]}, v{regs[k+1]}'); k += 2
            else:
                h.i(f'v_max_u32 v{tmp}, v{tmp}, v{regs[k]}'); k += 1
        h.i(f'v_cmp_eq_u32 vcc, -1, v{tmp}')
    h.i(f's_cmp_lg_u64 vcc, 0')
    h.i(f's_cbranch_scc1 {fail_label}')

TIMING = False
def advance(h):
    if TIMING:
        sT = G.sT
        h.smem(f's_memrealtime s[{sT}:{sT+1}]')
        h.raw('  s_waitcnt lgkmcnt(0)'); h.t += 1; h.lg = []
        h.i(f's_lshl_b32 s{sT+2}, s{G.sWG}, 2')
        h.i(f's_add_u32 s{sT+2}, s{sT+2}, s{G.sWave}')
        h.i(f's_lshl_b32 s{sT+2}, s{sT+2}, 4')
        h.i(f's_lshl_b32 s{sT+3}, s{G.sInst}, 2')
        h.i(f's_add_u32 s{sT+2}, s{sT+2}, s{sT+3}')
        h.i(f's_add_u32 s{sT+2}, s{sT+2}, {G.W_DBG + 0x10000}')
        h.i(f'v_mov_b32 v{G.vX}, 0')
        h.i(f'v_mov_b32 v{G.vX+1}, s{sT}')
        h.i('s_mov_b64 exec, 1')
        h.i(f'buffer_store_dword v{G.vX+1}, v{G.vX}, {G.SRD_WS}, s{sT+2} offen')
        h.i('s_mov_b64 exec, -1')
    h.i(f's_add_u32 s{G.sInst}, s{G.sInst}, 1')
    h.i(f's_mov_b32 s{G.sStep}, 0')
    h.i(f's_mov_b32 s{G.sWake}, s{G.sWk[0]}')
    h.i(f's_mov_b32 s{G.sWk[0]}, s{G.sWk[1]}')
    h.i(f's_mov_b32 s{G.sWk[1]}, s{G.sWk[2]}')
    h.i(f's_mov_b32 s{G.sWk[2]}, {G.DONE}')
    h.i('s_branch H_RET')

def x_gather(h, lds, kind, extra_off_sgpr=None, dword=False):
    sT = G.sT
    op = f'buffer_load_dword v{G.vL4}' if dword else f'buffer_load_dwordx4 v{G.vL16}'
    h.i(f's_mov_b32 m0, {lds}')
    if kind == 'X1':
        h.i(f's_lshl_b32 s{sT}, s{G.sInst}, 13')
        h.i(f's_add_u32 s{sT}, s{sT}, s{G.sRep}')
        h.i(f's_add_u32 s{sT}, s{sT}, {G.W_X1}')
        if extra_off_sgpr is not None: h.i(f's_add_u32 s{sT}, s{sT}, s{extra_off_sgpr}')
        h.i(f'{op}, {G.SRD_WS}, s{sT} offen sc1 lds')
    else:
        lab = h.newlabel('xg'); end = h.newlabel('xge')
        h.i(f's_cmp_lt_u32 s{G.sInst}, 2')
        h.i(f's_cbranch_scc0 {lab}')
        h.i(f's_lshl_b32 s{sT}, s{G.sInst}, 10')
        if extra_off_sgpr is not None: h.i(f's_add_u32 s{sT}, s{sT}, s{extra_off_sgpr}')
        h.i(f'{op}, {G.SRD_X}, s{sT} offen lds')
        h.i(f's_branch {end}')
        h.label(lab)
        h.i(f's_lshl_b32 s{sT}, s{G.sInst}, 13')
        h.i(f's_add_u32 s{sT}, s{sT}, s{G.sRep}')
        h.i(f's_add_u32 s{sT}, s{sT}, {G.W_XS - 2 * 8192}')
        if extra_off_sgpr is not None: h.i(f's_add_u32 s{sT}, s{sT}, s{extra_off_sgpr}')
        h.i(f'{op}, {G.SRD_WS}, s{sT} offen sc1 lds')
        h.label(end)

def zip_emit(lists):
    n = max(len(l) for l in lists)
    idx = [0] * len(lists)
    for step in range(n):
        for k, l in enumerate(lists):
            tgt = (step + 1) * len(l) // n
            while idx[k] < tgt:
                l[idx[k]](); idx[k] += 1

def gemv_stats(h, cfg, xl, vB_setup, stepB, half2, cs_lds, x_regs):
    T, vX, L, sT = G.T, G.vX, G.vLane, G.sT
    acc = cfg.HACC
    vA, vBa = vX, vX + 1
    S = T + 16
    assert x_regs == S
    h.i(f'v_lshrrev_b32 v{vA}, 4, v{L}')
    h.i(f'v_lshlrev_b32 v{vA}, 4, v{vA}')
    h.i(f'v_add_u32 v{vA}, {xl}, v{vA}')
    vB_setup(vBa)
    h.i(f'v_and_b32 v{vX+2}, 15, v{L}')
    h.i(f'v_lshlrev_b32 v{vX+2}, 2, v{vX+2}')
    h.i(f'v_add_u32 v{vX+2}, {cs_lds}, v{vX+2}')
    h.i(f'ds_read_b32 v{vX+2}, v{vX+2}')
    ids = {}
    def issue(j):
        b = T + (j % 2) * 8
        h.i(f'ds_read_b128 {vr(b)}, v{vA} offset:{j*64}')
        h.i(f'ds_read_b64_tr_b16 {vr(b+4, 2)}, v{vBa} offset:{j*stepB}')
        ids[j] = h.i(f'ds_read_b64_tr_b16 {vr(b+6, 2)}, v{vBa} offset:{j*stepB + half2}')
    g = []
    def step(j):
        def f():
            h.wait_lg(ids[j])
            b = T + (j % 2) * 8
            c = '0' if j == 0 else vr(acc)
            h.i(f'v_mfma_f32_16x16x32_bf16 {vr(acc)}, {vr(b)}, {vr(b+4)}, {c}')
            if j + 2 < 16: issue(j + 2)
        return f
    issue(0); issue(1)
    g = [step(j) for j in range(16)]
    st = []
    I = lambda t: st.append(lambda: h.i(t))
    for k in range(4):
        I(f'v_lshlrev_b32 v{S+6}, 16, v{S+k}')
        I(f'v_and_b32 v{S+7}, 0xffff0000, v{S+k}')
        if k == 0:
            I(f'v_add_f32 v{S+4}, v{S+6}, v{S+7}')
            I(f'v_mul_f32 v{S+5}, v{S+6}, v{S+6}')
        else:
            I(f'v_add_f32 v{S+4}, v{S+4}, v{S+6}')
            I(f'v_fmac_f32 v{S+5}, v{S+6}, v{S+6}')
            I(f'v_add_f32 v{S+4}, v{S+4}, v{S+7}')
        I(f'v_fmac_f32 v{S+5}, v{S+7}, v{S+7}')
    for c in DPP_STEPS:
        I(f'v_add_f32_dpp v{S+4}, v{S+4}, v{S+4} {c} bank_mask:0xf')
        I(f'v_add_f32_dpp v{S+5}, v{S+5}, v{S+5} {c} bank_mask:0xf')
    I(f'v_readlane_b32 s{sT}, v{S+4}, 63')
    I(f'v_readlane_b32 s{sT+1}, v{S+5}, 63')
    I(f'v_mov_b32 v{S}, s{sT}')
    I(f'v_mov_b32 v{S+1}, s{sT+1}')
    I(f'v_mul_f32 v{S}, {hex(G.f2u(1.0/512))}, v{S}')
    I(f'v_mul_f32 v{S+1}, {hex(G.f2u(1.0/512))}, v{S+1}')
    I(f'v_fma_f32 v{S+1}, -v{S}, v{S}, v{S+1}')
    I(f'v_max_f32 v{S+1}, 0, v{S+1}')
    I(f'v_cvt_pk_bf16_f32 v{S}, v{S}, v{S}')
    I(f'v_cvt_pk_bf16_f32 v{S+1}, v{S+1}, v{S+1}')
    I(f'v_and_b32 v{S}, 0xffff0000, v{S}')
    I(f'v_and_b32 v{S+1}, 0xffff0000, v{S+1}')
    I(f'v_add_f32 v{S+1}, {hex(G.f2u(1e-5))}, v{S+1}')
    I(f'v_cvt_pk_bf16_f32 v{S+1}, v{S+1}, v{S+1}')
    I(f'v_and_b32 v{S+1}, 0xffff0000, v{S+1}')
    I(f'v_sqrt_f32 v{S+1}, v{S+1}')
    I(f'v_cvt_pk_bf16_f32 v{S+1}, v{S+1}, v{S+1}')
    I(f'v_and_b32 v{S+1}, 0xffff0000, v{S+1}')
    I(f'v_rcp_f32 v{S+1}, v{S+1}')
    I(f'v_mul_f32 v{S+2}, v{S}, v{vX+2}')
    zip_emit([g, st])
    h.i(f'v_sub_f32 v{acc}, v{acc}, v{S+2}')
    h.i(f'v_mul_f32 v{acc}, v{acc}, v{S+1}')

def vB_q(h):
    L, vX = G.vLane, G.vX
    def f(reg):
        h.i(f'v_lshrrev_b32 v{reg}, 4, v{L}')
        h.i(f'v_lshlrev_b32 v{reg}, 3, v{reg}')
        h.i(f'v_bfe_u32 v{vX+2}, v{L}, 2, 2')
        h.i(f'v_add_u32 v{reg}, v{reg}, v{vX+2}')
        h.i(f'v_lshlrev_b32 v{reg}, 5, v{reg}')
        h.i(f'v_and_b32 v{vX+2}, 3, v{L}')
        h.i(f'v_lshl_add_u32 v{reg}, v{vX+2}, 3, v{reg}')
        if G.L_WQ: h.i(f'v_add_u32 v{reg}, {G.L_WQ}, v{reg}')
    return f
def vB_gu(h):
    L, vX = G.vLane, G.vX
    def f(reg):
        h.i(f'v_lshrrev_b32 v{reg}, 4, v{L}')
        h.i(f'v_lshlrev_b32 v{reg}, 3, v{reg}')
        h.i(f'v_bfe_u32 v{vX+2}, v{L}, 2, 2')
        h.i(f'v_add_u32 v{reg}, v{reg}, v{vX+2}')
        h.i(f'v_lshlrev_b32 v{reg}, 4, v{reg}')
        h.i(f'v_and_b32 v{vX+2}, 3, v{L}')
        h.i(f'v_lshl_add_u32 v{reg}, v{vX+2}, 3, v{reg}')
        h.i(f'v_add_u32 v{reg}, {G.L_WG}, v{reg}')
        h.i(f'v_mov_b32 v{vX+3}, {G.L_WU - 16 - G.L_WG}')
        h.i(f'v_cmp_lt_u32 vcc, 1, v{vX+2}')
        h.i(f'v_cndmask_b32 v{vX+3}, 0, v{vX+3}, vcc')
        h.i(f'v_add_u32 v{reg}, v{reg}, v{vX+3}')
    return f

def colsum(h, cfg, vB_setup, stepB, half2, cs_lds):
    T, vX, L = G.T, G.vX, G.vLane
    acc = cfg.HACC
    vB_setup(vX + 1)
    for i in range(4): h.i(f'v_mov_b32 v{T+8+i}, 0x3f803f80')
    ids = {}
    def issue(j):
        b = T + (j % 2) * 4
        h.i(f'ds_read_b64_tr_b16 {vr(b, 2)}, v{vX+1} offset:{j*stepB}')
        ids[j] = h.i(f'ds_read_b64_tr_b16 {vr(b+2, 2)}, v{vX+1} offset:{j*stepB + half2}')
    issue(0); issue(1)
    for j in range(16):
        h.wait_lg(ids[j])
        c = '0' if j == 0 else vr(acc)
        h.i(f'v_mfma_f32_16x16x32_bf16 {vr(acc)}, {vr(T+8)}, {vr(T + (j % 2) * 4)}, {c}')
        if j + 2 < 16: issue(j + 2)
    h.i(f'v_lshlrev_b32 v{vX}, 2, v{L}')
    h.i(f'v_add_u32 v{vX}, {cs_lds}, v{vX}')
    h.i('s_mov_b64 exec, 0xffff')
    h.i(f'ds_write_b32 v{vX}, v{acc}')
    h.i('s_mov_b64 exec, -1')

def wd_transpose(h):
    T, vX, L = G.T, G.vX, G.vLane
    R = G.vRING
    h.i(f'v_bfe_u32 v{vX}, v{L}, 2, 2')
    h.i(f'v_lshlrev_b32 v{vX}, 10, v{vX}')
    h.i(f'v_lshrrev_b32 v{vX+1}, 4, v{L}')
    h.i(f'v_lshl_add_u32 v{vX}, v{vX+1}, 5, v{vX}')
    h.i(f'v_and_b32 v{vX+1}, 3, v{L}')
    h.i(f'v_lshl_add_u32 v{vX}, v{vX+1}, 3, v{vX}')
    h.i(f'v_add_u32 v{vX}, {G.L_WD}, v{vX}')
    last = None
    for c in range(8):
        h.i(f'ds_read_b64_tr_b16 {vr(tr_reg(c), 2)}, v{vX} offset:{c*128}')
        last = h.i(f'ds_read_b64_tr_b16 {vr(tr_reg(c)+2, 2)}, v{vX} offset:{c*128 + 4096}')
    h.wait_lg(last)
    h.i(f'v_add_u32 v{vX+1}, {G.L_WD}, v{G.vL16}')
    for c in range(8):
        h.i(f'ds_write_b128 v{vX+1}, {vr(tr_reg(c))} offset:{c*1024}')

cfgH = [64]
def tr_reg(c):
    if c < 6: return G.T + 4 * c
    if c == 6: return cfgH[0]
    return G.vQ

def build_init(cfg, h):
    pass

def build(cfg):
    global TIMING
    TIMING = cfg.timing
    cfgH[0] = cfg.HACC
    h = Asm()
    T, vX, sT = G.T, G.vX, G.sT
    L = G.vLane
    acc = cfg.HACC
    h.label('DISPATCH')
    if cfg.timing:
        h.smem('s_memtime s[62:63]')
    h.i('s_nop 7')
    h.i(f's_waitcnt vmcnt({cfg.H})')
    h.i(f's_cmp_eq_u32 s{G.sWave}, 0'); h.i('s_cbranch_scc1 H_M2')
    h.i(f's_cmp_eq_u32 s{G.sWave}, 2'); h.i('s_cbranch_scc1 H_M4')
    h.i(f's_cmp_eq_u32 s{G.sWave}, 3'); h.i('s_cbranch_scc1 H_M6')
    h.i(f's_cmp_eq_u32 s{G.sKind}, 0'); h.i('s_cbranch_scc1 H_M3')
    h.i('s_branch H_M5')
    def issue_label(m):
        h.label(f'H_{m}_ISSUE')
        if cfg.timing: h.i('s_add_u32 s101, s101, 1')

    h.label('H_INIT')
    if cfg.timing: h.smem('s_memtime s[62:63]')
    h.i('s_nop 7')
    h.i(f's_cmp_eq_u32 s{G.sWave}, 3'); h.i('s_cbranch_scc1 H_INIT3')
    h.i(f's_cmp_eq_u32 s{G.sWave}, 2'); h.i('s_cbranch_scc0 H_RET')
    wd_transpose(h)
    colsum(h, cfg, vB_gu(h), 512, 64, G.L_CS2)
    h.i('s_branch H_RET')
    h.label('H_INIT3')
    colsum(h, cfg, vB_q(h), 1024, 128, G.L_CS3)
    h.i('s_branch H_RET')

    h.label('H_M2')
    h.i(f's_cmp_eq_u32 s{G.sStep}, 2'); h.i('s_cbranch_scc1 H_M2_CHECK')
    h.i(f's_cmp_eq_u32 s{G.sStep}, 1'); h.i('s_cbranch_scc1 H_M2_PCHECK')
    issue_label('M2')
    h.i(f's_lshl_b32 s{sT}, s{G.sInst}, 11')
    h.i(f's_lshl_b32 s{sT+1}, s{G.sH}, 6')
    h.i(f's_add_u32 s{sT}, s{sT}, s{sT+1}')
    h.i(f's_add_u32 s{sT}, s{sT}, {G.W_PML}')
    h.i(f's_mov_b32 m0, {G.L_G0 + 4096}')
    h.i('s_mov_b64 exec, 0xffff')
    h.i(f'buffer_load_dword v{G.vL4}, {G.SRD_WS}, s{sT} offen sc1 lds')
    h.i('s_mov_b64 exec, -1')
    h.i(f's_mov_b32 s{G.sStep}, 1')
    h.i(f's_cmpk_lt_u32 s{G.sWake}, {G.TAILPOS}')
    h.i('s_cbranch_scc1 H_RET')
    h.label('H_M2_FULL')
    h.i(f's_lshl_b32 s{sT}, s{G.sInst}, 17')
    h.i(f's_lshl_b32 s{sT+1}, s{G.sH}, 12')
    h.i(f's_add_u32 s{sT}, s{sT}, s{sT+1}')
    if G.W_PO: h.i(f's_add_u32 s{sT}, s{sT}, {G.W_PO}')
    h.i(f's_mov_b32 m0, {G.L_G0}')
    for k in range(4):
        h.i(f'buffer_load_dwordx4 v{G.vL16}, {G.SRD_WS}, s{sT} offen offset:{k*1024} sc1 lds')
    h.i(f's_mov_b32 s{G.sStep}, 2')
    h.i('s_branch H_RET')
    h.label('H_M2_PCHECK')
    h.i(f'v_and_b32 v{vX}, 15, v{L}')
    h.i(f'v_lshlrev_b32 v{vX}, 2, v{vX}')
    h.i(f'v_add_u32 v{vX}, {G.L_G0 + 4096}, v{vX}')
    lid = h.i(f'ds_read_b32 v{T}, v{vX}')
    h.wait_lg(lid)
    bad_branch(h, [T], None, 'H_M2_ISSUE')
    h.i('s_branch H_M2_FULL')
    h.label('H_M2_CHECK')
    h.i(f'v_and_b32 v{vX}, 7, v{L}')
    h.i(f'v_lshlrev_b32 v{vX}, 3, v{vX}')
    h.i(f'v_add_u32 v{vX}, {G.L_G0 + 4096}, v{vX}')
    mid = h.i(f'ds_read_b64 {vr(T+16, 2)}, v{vX}')
    h.i(f'v_lshlrev_b32 v{vX+1}, 3, v{L}')
    h.i(f'v_add_u32 v{vX+1}, {G.L_G0}, v{vX+1}')
    ob = [h.i(f'ds_read_b64 {vr(T+2*k, 2)}, v{vX+1} offset:{512*k}') for k in range(8)]
    h.wait_lg(mid)
    m_, l_ = T + 16, T + 17
    h.i(f'v_mov_b32 v{T+18}, v{m_}')
    h.i(f'v_max_u32 v{T+20}, v{m_}, v{l_}')
    for c in ('quad_perm:[1,0,3,2]', 'quad_perm:[2,3,0,1]', 'row_half_mirror'):
        h.i(f'v_max_f32_dpp v{T+18}, v{T+18}, v{T+18} {c} row_mask:0xf bank_mask:0xf')
    h.i(f'v_sub_f32 v{m_}, v{m_}, v{T+18}')
    h.i(f'v_exp_f32 v{m_}, v{m_}')
    h.i(f'v_mul_f32 v{T+19}, v{m_}, v{l_}')
    for c in ('quad_perm:[1,0,3,2]', 'quad_perm:[2,3,0,1]', 'row_half_mirror'):
        h.i(f'v_add_f32_dpp v{T+19}, v{T+19}, v{T+19} {c} row_mask:0xf bank_mask:0xf')
    h.i(f'v_rcp_f32 v{T+19}, v{T+19}')
    h.i(f'v_mul_f32 v{m_}, v{m_}, v{T+19}')
    for k in range(8): h.i(f'v_readlane_b32 s{sT+k}, v{m_}, {k}')
    h.wait_lg(ob[7])
    for k in range(0, 16, 2): h.i(f'v_max3_u32 v{T+20}, v{T+20}, v{T+k}, v{T+k+1}')
    h.i(f'v_cmp_eq_u32 vcc, -1, v{T+20}')
    h.i(f's_cmp_lg_u64 vcc, 0')
    h.i('s_cbranch_scc1 H_M2_ISSUE')
    h.i(f'v_mul_f32 v{T+21}, s{sT}, v{T}')
    h.i(f'v_mul_f32 v{T+22}, s{sT}, v{T+1}')
    for k in range(1, 8):
        h.i(f'v_fmac_f32 v{T+21}, s{sT+k}, v{T+2*k}')
        h.i(f'v_fmac_f32 v{T+22}, s{sT+k}, v{T+2*k+1}')
    h.i(f'v_cvt_pk_bf16_f32 v{T+21}, v{T+21}, v{T+22}')
    h.i(f'v_add_u32 v{vX}, {G.L_G0}, v{G.vL4}')
    h.i(f'ds_write_b32 v{vX}, v{T+21}')
    h.i(f'v_lshrrev_b32 v{vX}, 4, v{L}')
    h.i(f'v_lshlrev_b32 v{vX+1}, 4, v{vX}')
    h.i(f'v_add_u32 v{vX+1}, {G.L_G0}, v{vX+1}')
    aid = [h.i(f'ds_read_b128 {vr(T+4*j)}, v{vX+1} offset:{64*j}') for j in range(4)]
    h.i(f'v_lshlrev_b32 v{vX}, 3, v{vX}')
    h.i(f'v_bfe_u32 v{vX+2}, v{L}, 2, 2')
    h.i(f'v_add_u32 v{vX}, v{vX}, v{vX+2}')
    h.i(f'v_lshlrev_b32 v{vX}, 7, v{vX}')
    h.i(f'v_and_b32 v{vX+2}, 3, v{L}')
    h.i(f'v_lshl_add_u32 v{vX}, v{vX+2}, 3, v{vX}')
    h.i(f'v_add_u32 v{vX}, {G.L_WO}, v{vX}')
    steps = [(c, j) for c in range(4) for j in range(4)]
    bids = {}
    def issueB(n):
        c, j = steps[n]
        b = T + 16 + (n % 2) * 4
        h.i(f'ds_read_b64_tr_b16 {vr(b, 2)}, v{vX} offset:{j*4096 + c*32}')
        bids[n] = h.i(f'ds_read_b64_tr_b16 {vr(b+2, 2)}, v{vX} offset:{j*4096 + c*32 + 512}')
    issueB(0); issueB(1)
    for n, (c, j) in enumerate(steps):
        h.wait_lg(bids[n])
        b = T + 16 + (n % 2) * 4
        cc = '0' if j == 0 else vr(acc)
        h.i(f'v_mfma_f32_16x16x32_bf16 {vr(acc)}, {vr(T+4*j)}, {vr(b)}, {cc}')
        if n + 2 < 16: issueB(n + 2)
        if j == 3:
            h.i(f'v_mov_b32_dpp v{vX+1}, v{acc} quad_perm:[0,1,2,3] row_mask:{hex(1 << c)} bank_mask:0xf')
    h.i(f'v_lshrrev_b32 v{vX}, 4, v{L}')
    h.i(f'v_lshlrev_b32 v{vX}, 11, v{vX}')
    h.i(f'v_and_b32 v{vX+2}, 15, v{L}')
    h.i(f'v_lshl_add_u32 v{vX}, v{vX+2}, 2, v{vX}')
    h.i(f's_lshl_b32 s{sT}, s{G.sInst}, 16')
    h.i(f's_lshl_b32 s{sT+1}, s{G.sS}, 13')
    h.i(f's_add_u32 s{sT}, s{sT}, s{sT+1}')
    h.i(f's_lshl_b32 s{sT+1}, s{G.sH}, 6')
    h.i(f's_add_u32 s{sT}, s{sT}, s{sT+1}')
    h.i(f's_add_u32 s{sT}, s{sT}, {G.W_Y}')
    h.i(f'buffer_store_dword v{vX+1}, v{vX}, {G.SRD_WS}, s{sT} offen sc1')
    advance(h)

    h.label('H_M3')
    h.i(f's_cmp_eq_u32 s{G.sStep}, 0'); h.i('s_cbranch_scc0 H_M3_CHECK')
    issue_label('M3')
    h.i(f's_lshl_b32 s{sT}, s{G.sInst}, 16')
    h.i(f's_lshl_b32 s{sT+1}, s{G.sH}, 11')
    h.i(f's_add_u32 s{sT}, s{sT}, s{sT+1}')
    h.i(f's_add_u32 s{sT}, s{sT}, {G.W_Y}')
    h.i(f's_mov_b32 m0, {G.L_G1}')
    for k in range(2):
        h.i(f'buffer_load_dwordx4 v{G.vL16}, {G.SRD_WS}, s{sT} offen offset:{k*1024} sc1 lds')
    h.i(f's_lshl_b32 s{sT+2}, s{G.sH}, 5')
    h.i('s_mov_b64 exec, 0xff')
    x_gather(h, G.L_G1 + 2048, 'XS', sT + 2, dword=True)
    h.i('s_mov_b64 exec, -1')
    h.i(f's_mov_b32 s{G.sStep}, 1')
    h.i('s_branch H_RET')
    h.label('H_M3_CHECK')
    h.i(f'v_lshrrev_b32 v{vX}, 4, v{L}')
    h.i(f'v_lshlrev_b32 v{vX}, 6, v{vX}')
    h.i(f'v_and_b32 v{vX+1}, 15, v{L}')
    h.i(f'v_lshl_add_u32 v{vX}, v{vX+1}, 2, v{vX}')
    h.i(f'v_add_u32 v{vX}, {G.L_G1}, v{vX}')
    for k in range(8): h.i(f'ds_read_b32 v{T+k}, v{vX} offset:{k*256}')
    h.i(f'v_lshlrev_b32 v{vX+1}, 1, v{vX+1}')
    h.i(f'v_add_u32 v{vX+1}, {G.L_G1 + 2048}, v{vX+1}')
    lid = h.i(f'ds_read_u16 v{T+8}, v{vX+1}')
    h.wait_lg(lid)
    bad_branch(h, range(T, T+8), T+9, 'H_M3_ISSUE')
    h.i(f'v_add_f32 v{T}, v{T}, v{T+1}')
    h.i(f'v_add_f32 v{T+2}, v{T+2}, v{T+3}')
    h.i(f'v_add_f32 v{T+4}, v{T+4}, v{T+5}')
    h.i(f'v_add_f32 v{T+6}, v{T+6}, v{T+7}')
    h.i(f'v_add_f32 v{T}, v{T}, v{T+2}')
    h.i(f'v_add_f32 v{T+4}, v{T+4}, v{T+6}')
    h.i(f'v_lshlrev_b32 v{T+8}, 16, v{T+8}')
    h.i(f'v_add_f32 v{T}, v{T}, v{T+4}')
    h.i(f'v_mov_b32 v{T+1}, v{T}')
    h.i(f'v_permlane32_swap_b32 v{T}, v{T+1}')
    h.i(f'v_add_f32 v{T}, v{T}, v{T+1}')
    h.i(f'v_mov_b32 v{T+1}, v{T}')
    h.i(f'v_permlane16_swap_b32 v{T}, v{T+1}')
    h.i(f'v_add_f32 v{T}, v{T}, v{T+1}')
    rbf(h, T, T)
    h.i(f'v_add_f32 v{T}, v{T}, v{T+8}')
    h.i(f'v_mov_b32_dpp v{T+1}, v{T} quad_perm:[1,1,3,3] row_mask:0xf bank_mask:0xf')
    h.i(f'v_cvt_pk_bf16_f32 v{T}, v{T}, v{T+1}')
    h.i(f's_lshl_b32 s{sT}, s{G.sInst}, 13')
    h.i(f's_lshl_b32 s{sT+1}, s{G.sH}, 5')
    h.i(f's_add_u32 s{sT}, s{sT}, s{sT+1}')
    h.i(f's_add_u32 s{sT}, s{sT}, {G.W_X1}')
    h.i(f'v_lshrrev_b32 v{vX}, 4, v{L}')
    h.i(f'v_lshlrev_b32 v{vX}, 10, v{vX}')
    h.i(f'v_and_b32 v{vX+1}, 15, v{L}')
    h.i(f'v_lshl_add_u32 v{vX}, v{vX+1}, 1, v{vX}')
    h.i('s_mov_b32 exec_lo, 0x55555555'); h.i('s_mov_b32 exec_hi, 0x55555555')
    h.i(f'buffer_store_dword v{T}, v{vX}, {G.SRD_WS}, s{sT} offen sc1')
    h.i(f's_add_u32 s{sT}, s{sT}, 4096')
    h.i(f'buffer_store_dword v{T}, v{vX}, {G.SRD_WS}, s{sT} offen sc1')
    h.i('s_mov_b64 exec, -1')
    advance(h)

    h.label('H_M4')
    h.i(f's_cmp_eq_u32 s{G.sStep}, 0'); h.i('s_cbranch_scc0 H_M4_CHECK')
    issue_label('M4')
    x_gather(h, G.L_G2, 'X1')
    h.i(f's_mov_b32 s{G.sStep}, 1')
    h.i('s_branch H_RET')
    h.label('H_M4_CHECK')
    h.i(f'v_add_u32 v{vX}, {G.L_G2}, v{G.vL16}')
    lid = h.i(f'ds_read_b128 {vr(T+16)}, v{vX}')
    h.wait_lg(lid)
    bad_branch(h, range(T+16, T+20), T, 'H_M4_ISSUE')
    gemv_stats(h, cfg, G.L_G2, vB_gu(h), 512, 64, G.L_CS2, T + 16)
    h.i(f'v_and_b32 v{vX}, 15, v{L}')
    h.i(f'v_lshlrev_b32 v{vX}, 6, v{vX}')
    h.i(f'v_lshrrev_b32 v{vX+1}, 4, v{L}')
    h.i(f'v_lshl_add_u32 v{vX}, v{vX+1}, 4, v{vX}')
    h.i(f'v_add_u32 v{vX}, {G.L_WD}, v{vX}')
    wid = {}
    for c in range(4): wid[c] = h.i(f'ds_read_b128 {vr(T+4*c)}, v{vX} offset:{c*1024}')
    rbf(h, T+16, acc)
    h.i(f'v_mul_f32_dpp v{T+17}, v{T+16}, v{T+16} row_ror:8 row_mask:0xf bank_mask:0xf')
    h.i(f'v_cvt_pk_bf16_f32 v{T+17}, v{T+17}, v{T+17}')
    h.i(f'v_and_b32 v{T+18}, 3, v{L}')
    h.i(f'v_cmp_eq_u32 vcc, v{T+18}, v{vX+1}')
    h.i(f'v_cndmask_b32 v{T+18}, 0, -1, vcc')
    for f in range(8): h.i(f'v_readlane_b32 s{sT+f}, v{T+17}, {f}')
    for r in range(4): h.i(f's_pack_ll_b32_b16 s{sT+8+r}, s{sT+2*r}, s{sT+2*r+1}')
    for r in range(4): h.i(f'v_and_b32 v{T+20+r}, s{sT+8+r}, v{T+18}')
    h.i(f's_mul_i32 s{sT}, s{G.sInst}, 393216')
    h.i(f's_lshl_b32 s{sT+1}, s{G.sJ4}, 4')
    h.i(f's_add_u32 s{sT}, s{sT}, s{sT+1}')
    h.i(f's_add_u32 s{sT}, s{sT}, {G.W_Z}')
    h.i(f'v_and_b32 v{vX+2}, 15, v{L}')
    h.i(f'v_mul_u32_u24 v{vX+2}, 3072, v{vX+2}')
    accs = [acc, T + 16]
    pend = None
    for c in range(8):
        h.wait_lg(wid[c])
        d = accs[c % 2]
        h.i(f'v_mfma_f32_16x16x32_bf16 {vr(d)}, {vr(T+20)}, {vr(T + 4*(c % 4))}, 0')
        if c + 4 < 8: wid[c+4] = h.i(f'ds_read_b128 {vr(T + 4*(c % 4))}, v{vX} offset:{(c+4)*1024}')
        if pend is not None:
            pend()
        def mk(c=c, d=d):
            def f():
                h.i('s_mov_b64 exec, 0xffff')
                h.i(f'buffer_store_dwordx4 {vr(d)}, v{vX+2}, {G.SRD_WS}, s{sT} offen sc1')
                h.i('s_mov_b64 exec, -1')
                h.i(f's_add_u32 s{sT}, s{sT}, 49152')
            return f
        pend = mk()
    pend()
    advance(h)

    h.label('H_M5')
    h.i(f's_cmp_eq_u32 s{G.sStep}, 0'); h.i('s_cbranch_scc0 H_M5_CHECK')
    issue_label('M5')
    h.i(f's_mul_i32 s{sT}, s{G.sInst}, 393216')
    h.i(f's_mul_i32 s{sT+1}, s{G.sR5}, 3072')
    h.i(f's_add_u32 s{sT}, s{sT}, s{sT+1}')
    h.i(f's_add_u32 s{sT}, s{sT}, {G.W_Z}')
    h.i(f's_mov_b32 m0, {G.L_G1}')
    for k in range(3):
        h.i(f'buffer_load_dwordx4 v{G.vL16}, {G.SRD_WS}, s{sT} offen offset:{k*1024} sc1 lds')
    h.i(f's_lshl_b32 s{sT+2}, s{G.sR5}, 3')
    h.i('s_mov_b64 exec, 3')
    x_gather(h, G.L_G1 + 3072, 'X1', sT + 2, dword=True)
    h.i('s_mov_b64 exec, -1')
    h.i(f's_mov_b32 s{G.sStep}, 1')
    h.i('s_branch H_RET')
    h.label('H_M5_CHECK')
    h.i(f'v_add_u32 v{vX}, {G.L_G1}, v{G.vL16}')
    for k in range(3): h.i(f'ds_read_b128 {vr(T+4*k)}, v{vX} offset:{k*1024}')
    h.i(f'v_mov_b32 v{vX+1}, {G.L_G1 + 3072}')
    lid = h.i(f'ds_read_b64 {vr(T+12, 2)}, v{vX+1}')
    h.i(f'v_cmp_gt_u32 vcc, 44, v{L}')
    h.wait_lg(lid)
    for i in range(4): h.i(f'v_cndmask_b32 v{T+8+i}, 0, v{T+8+i}, vcc')
    bad_branch(h, range(T, T+14), T+16, 'H_M5_ISSUE')
    for i in range(4): h.i(f'v_add_f32 v{T+i}, v{T+i}, v{T+4+i}')
    for i in range(4): h.i(f'v_add_f32 v{T+i}, v{T+i}, v{T+8+i}')
    h.i(f'v_lshlrev_b32 v{T+4}, 16, v{T+12}')
    h.i(f'v_and_b32 v{T+5}, 0xffff0000, v{T+12}')
    h.i(f'v_lshlrev_b32 v{T+6}, 16, v{T+13}')
    h.i(f'v_and_b32 v{T+7}, 0xffff0000, v{T+13}')
    wave_reduce_multi(h, 'v_add_f32', [T, T+1, T+2, T+3])
    for i in range(4): rbf(h, T+i, T+i)
    for i in range(4): h.i(f'v_add_f32 v{T+i}, v{T+i}, v{T+4+i}')
    h.i(f'v_cvt_pk_bf16_f32 v{T+8}, v{T}, v{T+1}')
    h.i(f'v_cvt_pk_bf16_f32 v{T+9}, v{T+2}, v{T+3}')
    h.i(f's_cmp_lt_u32 s{G.sInst}, 2')
    h.i('s_cbranch_scc0 H_M5_OUT')
    h.i(f'v_readlane_b32 s{sT+2}, v{T+8}, 63')
    h.i(f'v_readlane_b32 s{sT+3}, v{T+9}, 63')
    h.i(f's_lshl_b32 s{sT}, s{G.sInst}, 13')
    h.i(f's_lshl_b32 s{sT+1}, s{G.sR5}, 3')
    h.i(f's_add_u32 s{sT}, s{sT}, s{sT+1}')
    h.i(f's_add_u32 s{sT}, s{sT}, {G.W_XS}')
    h.i(f'v_lshlrev_b32 v{vX}, 10, v{L}')
    h.i(f'v_mov_b32 v{T+8}, s{sT+2}')
    h.i(f'v_mov_b32 v{T+9}, s{sT+3}')
    h.i('s_mov_b64 exec, 0xff')
    h.i(f'buffer_store_dwordx2 {vr(T+8, 2)}, v{vX}, {G.SRD_WS}, s{sT} offen sc1')
    h.i('s_mov_b64 exec, -1')
    advance(h)
    h.label('H_M5_OUT')
    h.i(f's_and_b32 s{sT}, s{G.sInst}, 1')
    h.i(f's_lshl_b32 s{sT}, s{sT}, 10')
    h.i(f's_lshl_b32 s{sT+1}, s{G.sR5}, 3')
    h.i(f's_add_u32 s{sT}, s{sT}, s{sT+1}')
    h.i(f'v_mov_b32 v{vX}, 0')
    h.i('s_mov_b32 exec_lo, 0'); h.i('s_mov_b32 exec_hi, 0x80000000')
    h.i(f'buffer_store_dwordx2 {vr(T+8, 2)}, v{vX}, {G.SRD_OUT}, s{sT} offen')
    h.i('s_mov_b64 exec, -1')
    advance(h)

    h.label('H_M6')
    h.i(f's_cmp_eq_u32 s{G.sStep}, 0'); h.i('s_cbranch_scc0 H_M6_CHECK')
    issue_label('M6')
    x_gather(h, G.L_G3, 'XS')
    h.i(f's_mov_b32 s{G.sStep}, 1')
    h.i('s_branch H_RET')
    h.label('H_M6_CHECK')
    h.i(f'v_add_u32 v{vX}, {G.L_G3}, v{G.vL16}')
    lid = h.i(f'ds_read_b128 {vr(T+16)}, v{vX}')
    h.wait_lg(lid)
    bad_branch(h, range(T+16, T+20), T, 'H_M6_ISSUE')
    gemv_stats(h, cfg, G.L_G3, vB_q(h), 1024, 128, G.L_CS3, T + 16)
    h.i(f'v_mov_b32_dpp v{T}, v{acc} quad_perm:[1,1,3,3] row_mask:0xf bank_mask:0xf')
    h.i(f'v_cvt_pk_bf16_f32 v{T}, v{acc}, v{T}')
    h.i(f's_lshl_b32 s{sT}, s{G.sInst}, 13')
    h.i(f's_lshl_b32 s{sT+1}, s{G.sH}, 8')
    h.i(f's_add_u32 s{sT}, s{sT}, s{sT+1}')
    h.i(f's_lshl_b32 s{sT+1}, s{G.sS}, 5')
    h.i(f's_add_u32 s{sT}, s{sT}, s{sT+1}')
    h.i(f's_add_u32 s{sT}, s{sT}, {G.W_Q}')
    h.i(f'v_lshlrev_b32 v{vX}, 1, v{L}')
    h.i('s_mov_b64 exec, 0x5555')
    h.i(f'buffer_store_dword v{T}, v{vX}, {G.SRD_WS}, s{sT} offen sc1')
    h.i('s_mov_b64 exec, -1')
    advance(h)

    h.label('H_RET')
    h.i('s_nop 7')
    h.i(f's_waitcnt lgkmcnt(0)')
    if getattr(cfg, 'lat', False):
        h.smem('s_memtime s[62:63]')
        h.raw('  s_waitcnt lgkmcnt(0)')
        h.raw('  s_waitcnt vmcnt(0)')
    if cfg.timing:
        h.smem('s_memtime s[60:61]')
        h.raw('  s_waitcnt lgkmcnt(0)')
        h.i('s_sub_u32 s60, s60, s62')
        h.i('s_add_u32 s2, s2, s60')
    h.i(f's_add_u32 s{G.sRet}, s{G.sRet}, 4')
    h.i(f's_addc_u32 s{G.sRet+1}, s{G.sRet+1}, 0')
    h.i(f's_setpc_b64 s[{G.sRet}:{G.sRet+1}]')
    return h
```

```python
import sys, struct
from asmlib import Asm

NAME = 'interleave_layers__gqa_block_cached__glu_gated_bilinear__decode_kernel'

def f2u(x):
    return struct.unpack('<I', struct.pack('<f', x))[0]

class Cfg:
    D = 5
    NRING = 6
    H = 5
    BURST = 12
    NV_REG = 40
    NV_LDS = 21
    test_attn = False
    budget = 3
    pol_stream = ' nt'
    timing = False
    xor_tile = 1
    nocompute = False
    linpat = False
    hmap = 0
    xor_wave = 0
    HACC = 64
    CLR_POS = 34
    SPIN = 200000
    stamp_pos = None
    hook_stub = 0
    hook_ld = None
    hook_z = None
    hook_c = None
    lat = False
    hooks_off = False
    tasks_off = False
    noretry = False
    noweights = False
    pol_w = ' nt'
    HOOK_START = 40
    QG0_POS = 88
    WK = dict(M2=10, M3=26, M4=40, M5=54, M6=68)

vLane, vKoff, vVoff, vLdsRet = 0, 1, 2, 3
vMask = [4, 5, 6, 7]
vQ = 8
vP = {'X': 16, 'Y': 20}
vO = {'X': 24, 'Y': 28}
vL = {'X': 32, 'Y': 33}
vL16, vL4 = 34, 35
T = 36
vACC = [36, 40]
vAT = [44, 48]
vLT = [52, 56]
vX = 60
vHACC = 64
vRING = 68
vRET = 92

sWave, sH, sS, sWG = 24, 25, 26, 27
sB = [28, 29]
sOffK, sOffV = 30, 31
sLdsRet, sQG = 32, 33
sM = {'X': 34, 'Y': 35}
sWake, sInst, sStep, sKind, sJ4 = 36, 37, 38, 39, 40
sSpin = 41
sWk = [88, 89, 90]
sOffW, sLdsW, sFsz = 44, 45, 3
sR5 = 91
DONE = 0x7ff0
TAILPOS = 0x7000
sRet = 42
sEx = 44
sT = 46
SRD_K, SRD_V, SRD_WS, SRD_OUT, SRD_T = 's[4:7]', 's[8:11]', 's[12:15]', 's[16:19]', 's[20:23]'
SRD_X = 's[64:67]'
sRep = 1
P_X, P_K, P_V, P_WQ, P_WO, P_BX, P_WG, P_WU, P_WD, P_OUT, P_DBG, P_WS = [64 + 2*i for i in range(12)]

L_WQ, L_WO, L_WG, L_WU, L_WD = 0, 16384, 32768, 40960, 49152
L_G0 = 57344
L_G1 = L_G0 + 4352
L_G2 = L_G1 + 3328
L_G3 = L_G2 + 1024
L_M1 = L_G3 + 1024
L_QG = L_M1 + 2*2080
L_CNT = L_QG + 2048
L_CS2 = L_CNT + 64
L_CS3 = L_CS2 + 64
L_RET = L_CS3 + 64
LDS_BYTES = None

W_PO = 0
W_PML = 0x80000
W_Y = 0x82000
W_X1 = 0xC2000
W_XS = 0xCA000
W_Z = 0xCE000
W_Q = 0x24E000
W_CLR_END = 0x300000
W_DBG = 0x301000
WS_BYTES = 0x330000

SCALE = (128 ** -0.5) * 1.4426950408889634

class Load:
    def __init__(self, emit, after=None, name=''):
        self.emit = emit; self.after = after; self.name = name; self.vid = None; self.idx = None
class Comp:
    def __init__(self, emit, needs=(), name=''):
        self.emit = emit; self.needs = list(needs); self.name = name; self.done = False

class Gen:
    def __init__(self, cfg):
        global vRET
        self.c = cfg
        vRET = vRING + 4 * cfg.NRING
        cfg.NV_REG = (256 - vRET) // 4
        self.a = Asm()
        self.loads = []
        self.comps = []
        self.pend = []
        self.accsel = 0
        self.atsel = 0
        self.ltsel = 0
        self.ring = 0
        self.ring_reader = [None] * cfg.NRING
        self.k_reader = [None] * 64
        self.v_reader = [None] * 64
        self.curK = None; self.curV = None
        self.marks = {}
        self.nstamp = 0
        self.pro_loads = []
        self.clr_done = False
        self.hook_start = cfg.HOOK_START

    def vr(self, b, n=4): return f'v[{b}:{b+n-1}]'
    def ar(self, b, n=4): return f'a[{b}:{b+n-1}]'

    def set_off(self, which, b, const):
        a = self.a
        key = (b, const)
        if which == 'K':
            if self.curK != key:
                a.i(f's_xor_b32 s{sOffK}, s{sB[b]}, {const}'); self.curK = key
            return f's{sOffK}'
        else:
            if self.curV != key:
                a.i(f's_xor_b32 s{sOffV}, s{sB[b]}, {const}'); self.curV = key
            return f's{sOffV}'

    def add_load(self, L): self.loads.append(L); return L
    def add_comp(self, C): self.comps.append(C); return C

    def ring_slot(self):
        s = self.ring % self.c.NRING; self.ring += 1
        return s

    def mk_kload(self, b, tau, g, jj, dst, after):
        def emit():
            so = self.set_off('K', b, tau * 65536 + (g >> 1) * 4096)
            return self.a.i(f'buffer_load_dwordx4 {dst}, v{vKoff}, {SRD_K}, {so} offen offset:{((g & 1) * 2048 + jj * 1024) if self.c.linpat else ((g & 1) * 2048 + jj * 128)}{self.c.pol_stream}')
        return self.add_load(Load(emit, after, f'K b{b} t{tau} g{g} j{jj}'))
    def mk_vload(self, b, tau, t, dst, after):
        def emit():
            if self.c.linpat:
                so = self.set_off('V', b, tau * 65536 + (t >> 2) * 4096)
                return self.a.i(f'buffer_load_dwordx4 {dst}, v{vVoff}, {SRD_V}, {so} offen offset:{(t & 3) * 1024}{self.c.pol_stream}')
            so = self.set_off('V', b, tau * 65536)
            return self.a.i(f'buffer_load_dwordx4 {dst}, v{vVoff}, {SRD_V}, {so} offen offset:{t * 256}{self.c.pol_stream}')
        return self.add_load(Load(emit, after, f'V b{b} t{tau} u{t}'))
    def mk_vload_lds(self, b, tau, t, slot, after):
        def emit():
            if self.c.linpat:
                so = self.set_off('V', b, tau * 65536 + (t >> 2) * 4096)
                self.a.i(f's_add_u32 m0, s{sLdsRet}, {slot * 1024 - (t & 3) * 1024 + 4096}')
                return self.a.i(f'buffer_load_dwordx4 v{vVoff}, {SRD_V}, {so} offen offset:{(t & 3) * 1024}{self.c.pol_stream} lds')
            so = self.set_off('V', b, tau * 65536)
            self.a.i(f's_add_u32 m0, s{sLdsRet}, {slot * 1024 - t * 256 + 4096}')
            return self.a.i(f'buffer_load_dwordx4 v{vVoff}, {SRD_V}, {so} offen offset:{t * 256}{self.c.pol_stream} lds')
        return self.add_load(Load(emit, after, f'VL b{b} t{tau} u{t}'))

    def flush_adds(self, acc=None):
        a = self.a
        keep = []
        for (ac, S, g) in self.pend:
            if acc is None or ac == acc:
                gp, hh = g >> 1, g & 1
                if hh == 0:
                    a.i(f'v_add_f32_dpp v{S}, v{ac+1}, v{ac} row_ror:8 row_mask:{hex(1 << gp)} bank_mask:0x3')
                else:
                    a.i(f'v_add_f32_dpp v{S}, v{ac}, v{ac+1} row_ror:8 row_mask:{hex(1 << gp)} bank_mask:0xc')
            else:
                keep.append((ac, S, g))
        self.pend = keep

    def mk_qk(self, B0, B1, S, g, needs):
        def emit():
            a = self.a
            ac = vACC[self.accsel]; self.accsel ^= 1
            self.flush_adds(ac)
            a.i(f'v_mfma_f32_16x16x32_bf16 {self.vr(ac)}, {self.vr(vQ)}, {B0}, 0')
            a.i(f'v_mfma_f32_16x16x32_bf16 {self.vr(ac)}, {self.vr(vQ+4)}, {B1}, {self.vr(ac)}')
            self.pend.append((ac, S, g))
        return self.add_comp(Comp(emit, needs, f'QK g{g}'))

    def pv_core(self, B, P, t, O, mid=None):
        a = self.a
        at = vAT[self.atsel]; self.atsel ^= 1
        for r in range(4):
            a.i(f'v_and_b32_dpp v{at+r}, v{P}, v{vMask[r]} row_newbcast:{t} row_mask:0xf bank_mask:0xf')
        if mid: mid()
        a.i(f'v_mfma_f32_16x16x32_bf16 {self.vr(O)}, {self.vr(at)}, {B}, {self.vr(O)}')

    def mk_pv(self, B, P, t, O, needs):
        def emit(): self.pv_core(B, P, t, O)
        return self.add_comp(Comp(emit, needs, f'PV t{t}'))
    def mk_pv_lds(self, slot, P, t, O, needs):
        def emit():
            a = self.a
            lt = vLT[self.ltsel]; self.ltsel ^= 1
            lid = a.i(f'ds_read_b128 {self.vr(lt)}, v{vLdsRet} offset:{slot * 1024}')
            self.pv_core(self.vr(lt), P, t, O, mid=lambda: a.wait_lg(lid))
        return self.add_comp(Comp(emit, needs, f'PVL t{t}'))

    def wave_reduce(self, op, r):
        a = self.a
        for c in ('row_ror:8', 'row_ror:4', 'row_ror:2', 'row_ror:1'):
            a.i(f'{op}_dpp v{r}, v{r}, v{r} {c} row_mask:0xf bank_mask:0xf')
        a.i(f'{op}_dpp v{r}, v{r}, v{r} row_bcast:15 row_mask:0xa bank_mask:0xf')
        a.i(f'{op}_dpp v{r}, v{r}, v{r} row_bcast:31 row_mask:0xc bank_mask:0xf')

    def mk_softmax(self, Pset, Iset, first):
        def emit():
            a = self.a
            self.flush_adds()
            S = vP[Pset]; O = vO[Iset]; Lr = vL[Iset]; m = sM[Iset]
            t0, t1, t2, t3 = T, T+1, T+2, T+3
            for i in range(4): a.i(f'v_mul_f32 v{S+i}, {hex(f2u(SCALE))}, v{S+i}')
            a.i(f'v_max3_f32 v{t0}, v{S}, v{S+1}, v{S+2}')
            a.i(f'v_max_f32 v{t0}, v{t0}, v{S+3}')
            if not first: a.i(f'v_max_f32 v{t0}, s{m}, v{t0}')
            self.wave_reduce('v_max_f32', t0)
            a.i(f'v_readlane_b32 s{sT}, v{t0}, 63')
            if not first:
                a.i(f'v_mov_b32 v{t1}, s{sT}')
                a.i(f'v_sub_f32 v{t1}, s{m}, v{t1}')
                a.i(f'v_exp_f32 v{t1}, v{t1}')
                for i in range(4): a.i(f'v_mul_f32 v{O+i}, v{O+i}, v{t1}')
                a.i(f'v_mul_f32 v{Lr}, v{Lr}, v{t1}')
            else:
                for i in range(4): a.i(f'v_mov_b32 v{O+i}, 0')
            a.i(f's_mov_b32 s{m}, s{sT}')
            for i in range(4): a.i(f'v_subrev_f32 v{S+i}, s{m}, v{S+i}')
            for i in range(4): a.i(f'v_exp_f32 v{S+i}, v{S+i}')
            a.i(f'v_add_f32 v{t2}, v{S}, v{S+1}')
            a.i(f'v_add_f32 v{t3}, v{S+2}, v{S+3}')
            if first:
                a.i(f'v_add_f32 v{Lr}, v{t2}, v{t3}')
            else:
                a.i(f'v_add_f32 v{t2}, v{t2}, v{t3}')
                a.i(f'v_add_f32 v{Lr}, v{Lr}, v{t2}')
            for i in range(4): a.i(f'v_cvt_pk_bf16_f32 v{S+i}, v{S+i}, v{S+i}')
        return self.add_comp(Comp(emit, (), f'softmax {Pset} {Iset} {first}'))

    def cond_begin(self):
        a = self.a
        a.flush_hazards()
        self._snap = (list(a.vm), list(a.lg))
    def cond_end(self):
        a = self.a
        a.flush_hazards()
        a.vm, a.lg = self._snap

    def mk_m1(self, inst):
        b = inst & 1
        Iset = 'X' if (inst & 1) == 0 else 'Y'
        def emit():
            a = self.a
            O = vO[Iset]; Lr = vL[Iset]; m = sM[Iset]
            base = L_M1 + b * 2080
            t = T
            self.wave_reduce('v_add_f32', Lr)
            a.i(f'v_and_b32 v{t}, 15, v{vLane}')
            a.i(f'v_lshlrev_b32 v{t}, 5, v{t}')
            a.i(f'v_lshrrev_b32 v{t+1}, 4, v{vLane}')
            a.i(f'v_lshl_add_u32 v{t}, v{t+1}, 4, v{t}')
            a.i(f's_lshl_b32 s{sT}, s{sWave}, 9')
            a.i(f's_add_u32 s{sT}, s{sT}, {base}')
            a.i(f'v_add_u32 v{t}, s{sT}, v{t}')
            a.i(f's_mov_b32 exec_hi, 0')
            a.i(f'ds_write_b128 v{t}, {self.vr(O)}')
            a.i('s_mov_b64 exec, -1')
            a.i(f's_lshl_b32 s{sT}, s{sWave}, 3')
            a.i(f's_add_u32 s{sT}, s{sT}, {base + 2048}')
            a.i(f'v_mov_b32 v{t+2}, s{sT}')
            a.i(f'v_mov_b32 v{t+4}, s{m}')
            a.i(f'v_mov_b32 v{t+5}, v{Lr}')
            a.i(f'v_mov_b32 v{t+3}, {L_CNT + b * 4}')
            a.i(f'v_mov_b32 v{t+6}, 1')
            a.i(f's_mov_b32 exec_lo, 0')
            a.i(f's_mov_b32 exec_hi, 0x80000000')
            a.i(f'ds_write_b64 v{t+2}, v[{t+4}:{t+5}]')
            lid = a.i(f'ds_add_rtn_u32 v{t+7}, v{t+3}, v{t+6}')
            a.i(f's_mov_b64 exec, -1')
            a.wait_lg(lid)
            a.i(f'v_readlane_b32 s{sT}, v{t+7}, 63')
            a.i(f's_cmp_eq_u32 s{sT}, {4 * (inst >> 1) + 3}')
            skip = a.newlabel('m1skip')
            self.cond_begin()
            a.i(f's_cbranch_scc0 {skip}')
            a.i(f'v_mov_b32 v{t}, {base + 2048}')
            l0 = a.i(f'ds_read_b128 {self.vr(t+4)}, v{t}')
            l1 = a.i(f'ds_read_b128 {self.vr(t+8)}, v{t} offset:16')
            a.i(f'v_lshlrev_b32 v{t+1}, 3, v{vLane}')
            a.i(f'v_add_u32 v{t+1}, {base}, v{t+1}')
            lo = [a.i(f'ds_read_b64 v[{t+12+2*k}:{t+13+2*k}], v{t+1} offset:{k*512}') for k in range(4)]
            a.wait_lg(l1)
            a.i(f'v_max3_f32 v{t+2}, v{t+4}, v{t+6}, v{t+8}')
            a.i(f'v_max_f32 v{t+2}, v{t+2}, v{t+10}')
            for k in range(4): a.i(f'v_sub_f32 v{t+4+2*k}, v{t+4+2*k}, v{t+2}')
            for k in range(4): a.i(f'v_exp_f32 v{t+4+2*k}, v{t+4+2*k}')
            a.i(f'v_mul_f32 v{t+3}, v{t+4}, v{t+5}')
            for k in range(1, 4): a.i(f'v_fmac_f32 v{t+3}, v{t+4+2*k}, v{t+5+2*k}')
            a.wait_lg(lo[3])
            a.i(f'v_mul_f32 v{t+20}, v{t+4}, v{t+12}')
            a.i(f'v_mul_f32 v{t+21}, v{t+4}, v{t+13}')
            for k in range(1, 4):
                a.i(f'v_fmac_f32 v{t+20}, v{t+4+2*k}, v{t+12+2*k}')
                a.i(f'v_fmac_f32 v{t+21}, v{t+4+2*k}, v{t+13+2*k}')
            a.i(f's_lshl_b32 s{sT}, s{sH}, 3')
            a.i(f's_add_u32 s{sT}, s{sT}, s{sS}')
            a.i(f's_lshl_b32 s{sT+1}, s{sT}, 9')
            a.i(f's_add_u32 s{sT+1}, s{sT+1}, {W_PO + inst * 131072}')
            a.i(f'v_lshlrev_b32 v{t+1}, 3, v{vLane}')
            a.i(f'buffer_store_dwordx2 v[{t+20}:{t+21}], v{t+1}, {SRD_WS}, s{sT+1} offen sc1')
            a.i(f's_lshl_b32 s{sT+1}, s{sT}, 3')
            a.i(f's_add_u32 s{sT+1}, s{sT+1}, {W_PML + inst * 2048}')
            a.i(f's_mov_b64 exec, 1')
            a.i(f'buffer_store_dwordx2 v[{t+2}:{t+3}], v{t+1}, {SRD_WS}, s{sT+1} offen sc1')
            a.i(f's_mov_b64 exec, -1')
            self.cond_end()
            a.label(skip)
        return self.add_comp(Comp(emit, (), f'M1 {inst}'))

    def mk_qgather(self, inst):
        def emit():
            a = self.a
            a.i(f's_lshl_b32 s{sT}, s{sH}, 8')
            a.i(f's_add_u32 s{sT}, s{sT}, {W_Q + inst * 8192}')
            a.i(f's_add_u32 m0, s{sQG}, {(inst & 1) * 256}')
            return a.i(f'buffer_load_dword v{vL4}, {SRD_WS}, s{sT} offen sc1 lds')
        return self.add_load(Load(emit, None, f'QG {inst}'))

    def q_read(self, inst):
        a = self.a
        t = T
        a.i(f'v_and_b32 v{t}, 1, v{vLane}')
        a.i(f'v_lshlrev_b32 v{t}, 6, v{t}')
        a.i(f'v_lshrrev_b32 v{t+1}, 4, v{vLane}')
        a.i(f'v_lshl_add_u32 v{t}, v{t+1}, 4, v{t}')
        a.i(f'v_add_u32 v{t}, s{sQG}, v{t}')
        a.i(f'ds_read_b128 {self.vr(vQ)}, v{t} offset:{(inst & 1) * 256}')
        lid = a.i(f'ds_read_b128 {self.vr(vQ+4)}, v{t} offset:{(inst & 1) * 256 + 128}')
        a.wait_lg(lid)

    def mk_acquire(self, inst, gather):
        def emit():
            a = self.a
            self.flush_adds()
            self.q_read(inst)
            if gather is not None and not self.c.test_attn and not self.c.noretry:
                self.q_check_retry(inst)
        return self.add_comp(Comp(emit, [gather] if gather else [], f'acquire {inst}'))

    def q_bad(self):
        a = self.a
        t = T + 2
        a.i(f'v_max3_u32 v{t}, v{vQ}, v{vQ+1}, v{vQ+2}')
        a.i(f'v_max3_u32 v{t}, v{t}, v{vQ+3}, v{vQ+4}')
        a.i(f'v_max3_u32 v{t}, v{t}, v{vQ+5}, v{vQ+6}')
        a.i(f'v_max_u32 v{t}, v{t}, v{vQ+7}')
        a.i(f'v_cmp_eq_u32 vcc, -1, v{t}')
        a.i(f's_cmp_lg_u64 vcc, 0')

    def call_dispatch(self):
        a = self.a
        a.i(f's_getpc_b64 s[{sRet}:{sRet+1}]')
        a.i('s_branch DISPATCH')

    def q_check_retry(self, inst):
        a = self.a
        ok = a.newlabel('qok'); lp = a.newlabel('qretry'); nd = a.newlabel('qnd')
        self.q_bad()
        self.cond_begin()
        a.i(f's_cbranch_scc0 {ok}')
        a.label(lp)
        a.i('s_waitcnt vmcnt(0)')
        a.i(f's_cmpk_lt_u32 s{sWake}, {DONE}')
        a.i(f's_cbranch_scc0 {nd}')
        self.call_dispatch()
        a.label(nd)
        a.i(f's_lshl_b32 s{sT}, s{sH}, 8')
        a.i(f's_add_u32 s{sT}, s{sT}, {W_Q + inst * 8192}')
        a.i(f's_add_u32 m0, s{sQG}, {(inst & 1) * 256}')
        a.i(f'buffer_load_dword v{vL4}, {SRD_WS}, s{sT} offen sc1 lds')
        a.i('s_waitcnt vmcnt(0)')
        self.q_read(inst)
        self.q_bad()
        a.i(f's_cbranch_scc0 {ok}')
        a.i(f's_sub_u32 s{sSpin}, s{sSpin}, 1')
        a.i(f's_cmp_gt_i32 s{sSpin}, 0')
        a.i(f's_cbranch_scc1 {lp}')
        self.cond_end()
        a.label(ok)

    def mk_b1(self):
        def emit():
            a = self.a
            a.i('s_barrier')
            skip = a.newlabel('b1')
            a.i(f's_cmp_eq_u32 s{sWave}, 0')
            self.cond_begin()
            a.i(f's_cbranch_scc0 {skip}')
            a.i(f'v_mov_b32 v{T}, 0')
            a.i(f'v_mov_b32 v{T+1}, 1')
            a.i('s_mov_b64 exec, 1')
            a.i(f'global_atomic_add v{T}, v{T+1}, s[{P_DBG}:{P_DBG+1}]')
            a.i('s_mov_b64 exec, -1')
            self.cond_end()
            a.label(skip)
            a.flush_hazards()
            a.i(f's_getpc_b64 s[{sRet}:{sRet+1}]')
            a.i('s_branch H_INIT')
        return self.add_comp(Comp(emit, self.pro_loads, 'B1'))

    def mk_clrload(self):
        def emit():
            a = self.a
            a.i(f'v_mov_b32 v{vX}, 0')
            return a.i(f'global_load_dword v{vX+1}, v{vX}, s[{P_DBG}:{P_DBG+1}] sc1')
        return self.add_load(Load(emit, None, 'CLR'))

    def mk_clrcheck(self, cl):
        def emit():
            a = self.a
            ok = a.newlabel('clok'); lp = a.newlabel('clp')
            a.i(f'v_readfirstlane_b32 s{sT}, v{vX+1}')
            a.i(f's_cmp_eq_u32 s{sT}, 256')
            self.cond_begin()
            a.i(f's_cbranch_scc1 {ok}')
            a.label(lp)
            a.i(f'global_load_dword v{vX+1}, v{vX}, s[{P_DBG}:{P_DBG+1}] sc1')
            a.i('s_waitcnt vmcnt(0)')
            a.i(f'v_readfirstlane_b32 s{sT}, v{vX+1}')
            a.i(f's_cmp_eq_u32 s{sT}, 256')
            a.i(f's_cbranch_scc1 {ok}')
            a.i(f's_sub_u32 s{sSpin}, s{sSpin}, 1')
            a.i(f's_cmp_gt_i32 s{sSpin}, 0')
            a.i(f's_cbranch_scc1 {lp}')
            self.cond_end()
            a.label(ok)
            self.clr_done = True
        return self.add_comp(Comp(emit, [cl], 'clrcheck'))

    def srd_t(self, ptr, size_sgpr_or_const):
        a = self.a
        a.i(f's_mov_b32 s20, s{ptr}')
        a.i(f's_and_b32 s21, s{ptr+1}, 0xffff')
        a.i(f's_mov_b32 s22, {size_sgpr_or_const}')
        a.i(f's_mov_b32 s23, 0x20000')

    def mk_weight_loads(self):
        c = self.c
        res = []
        pol = c.pol_w
        vo = [vRING, vRING + 1]
        def wo(k):
            def emit():
                a = self.a
                if k == 0:
                    self.srd_t(P_WO, hex(4096 * 512 * 2))
                    a.i(f'v_lshrrev_b32 v{vo[0]}, 3, v{vLane}')
                    a.i(f'v_lshlrev_b32 v{vo[0]}, 10, v{vo[0]}')
                    a.i(f'v_and_b32 v{vo[1]}, 7, v{vLane}')
                    a.i(f'v_lshl_add_u32 v{vo[0]}, v{vo[1]}, 4, v{vo[0]}')
                    a.i(f's_lshl_b32 s{sT+4}, s{sH}, 17')
                    a.i(f's_lshl_b32 s{sT+5}, s{sWave}, 15')
                    a.i(f's_add_u32 s{sT+4}, s{sT+4}, s{sT+5}')
                    a.i(f's_lshl_b32 s{sT+5}, s{sS}, 7')
                    a.i(f's_add_u32 s{sOffW}, s{sT+4}, s{sT+5}')
                    a.i(f's_lshl_b32 s{sLdsW}, s{sWave}, 12')
                else:
                    a.i(f's_add_u32 s{sOffW}, s{sOffW}, 8192')
                a.i(f's_add_u32 m0, s{sLdsW}, {L_WO + k * 1024}')
                return a.i(f'buffer_load_dwordx4 v{vo[0]}, {SRD_T}, s{sOffW} offen{pol} lds')
            return emit
        def gu(ptr, lbase, k):
            def emit():
                a = self.a
                if k == 0:
                    self.srd_t(ptr, f's{sFsz}')
                    a.i(f'v_mul_u32_u24 v{vo[1]}, 2752, v{vLane}')
                    a.i(f's_mul_i32 s{sOffW}, s{sWave}, {2 * 64 * 2752}')
                    a.i(f's_lshl_b32 s{sT+5}, s{sJ4}, 4')
                    a.i(f's_add_u32 s{sOffW}, s{sOffW}, s{sT+5}')
                    a.i(f's_lshl_b32 s{sLdsW}, s{sWave}, 11')
                else:
                    a.i(f's_add_u32 s{sOffW}, s{sOffW}, {64 * 2752}')
                a.i(f's_add_u32 m0, s{sLdsW}, {lbase + k * 1024}')
                return a.i(f'buffer_load_dwordx4 v{vo[1]}, {SRD_T}, s{sOffW} offen{pol} lds')
            return emit
        def wd(k):
            def emit():
                a = self.a
                if k == 0:
                    self.srd_t(P_WD, f's{sFsz}')
                    a.i(f's_lshl_b32 s{sOffW}, s{sJ4}, 13')
                    a.i(f's_lshl_b32 s{sLdsW}, s{sWave}, 11')
                    a.i(f's_add_u32 s{sOffW}, s{sOffW}, s{sLdsW}')
                else:
                    a.i(f's_add_u32 s{sOffW}, s{sOffW}, 1024')
                a.i(f's_add_u32 m0, s{sLdsW}, {L_WD + k * 1024}')
                return a.i(f'buffer_load_dwordx4 v{vL16}, {SRD_T}, s{sOffW} offen{pol} lds')
            return emit
        for k in range(4): res.append(self.add_load(Load(wo(k), None, 'WO')))
        for k in range(2): res.append(self.add_load(Load(gu(P_WG, L_WG, k), None, 'WG')))
        for k in range(2): res.append(self.add_load(Load(gu(P_WU, L_WU, k), None, 'WU')))
        for k in range(2): res.append(self.add_load(Load(wd(k), None, 'WD')))
        return res

    def half_stream(self, inst, Pset, first):
        b = inst & 1
        Iset = 'X' if (inst & 1) == 0 else 'Y'
        qk = []
        for tau in range(4):
            for g in range(8):
                ls = []; regs = []
                for jj in range(2):
                    s = self.ring_slot()
                    L = self.mk_kload(b, tau, g, jj, self.vr(vRING + 4*s), self.ring_reader[s])
                    ls.append(L); regs.append((s, self.vr(vRING + 4*s)))
                C = Comp(None)
                C = self.mk_qk(regs[0][1], regs[1][1], vP[Pset] + tau, g, ls)
                for s, _ in regs: self.ring_reader[s] = C
                qk.append(C)
        return qk

    def half_stream_v(self, inst, Pset):
        b = inst & 1
        Iset = 'X' if (inst & 1) == 0 else 'Y'
        for tau in range(4):
            for t in range(16):
                s = self.ring_slot()
                L = self.mk_vload(b, tau, t, self.vr(vRING + 4*s), self.ring_reader[s])
                C = self.mk_pv(self.vr(vRING + 4*s), vP[Pset] + tau, t, vO[Iset], [L])
                self.ring_reader[s] = C

    def halfB_loadK(self, b):
        Ls = {}
        for tau in range(4, 8):
            for g in range(8):
                for jj in range(2):
                    u = (tau - 4) * 16 + g * 2 + jj
                    Ls[u] = self.mk_kload(b, tau, g, jj, self.ar(4*u), self.k_reader[u])
        return Ls
    def halfB_loadV(self, b):
        Ls = {}
        c = self.c
        for u in range(c.NV_REG + c.NV_LDS):
            tau, t = 4 + u // 16, u % 16
            if u < c.NV_REG:
                Ls[u] = self.mk_vload(b, tau, t, self.vr(vRET + 4*u), self.v_reader[u])
            else:
                Ls[u] = self.mk_vload_lds(b, tau, t, u - c.NV_REG, self.v_reader[u])
        return Ls
    def halfB_qk(self, Pset, Ls):
        for tau in range(4, 8):
            for g in range(8):
                u = (tau - 4) * 16 + g * 2
                needs = [Ls[u], Ls[u+1]] if Ls else []
                C = self.mk_qk(self.ar(4*u), self.ar(4*u + 4), vP[Pset] + tau - 4, g, needs)
                self.k_reader[u] = C; self.k_reader[u+1] = C
    def halfB_pv(self, inst, Pset, Ls):
        c = self.c
        Iset = 'X' if (inst & 1) == 0 else 'Y'
        for u in range(c.NV_REG + c.NV_LDS):
            tau, t = 4 + u // 16, u % 16
            needs = [Ls[u]] if Ls else []
            if u < c.NV_REG:
                C = self.mk_pv(self.vr(vRET + 4*u), vP[Pset] + tau - 4, t, vO[Iset], needs)
            else:
                C = self.mk_pv_lds(u - c.NV_REG, vP[Pset] + tau - 4, t, vO[Iset], needs)
            self.v_reader[u] = C
    def halfB_rest_v(self, inst, Pset):
        c = self.c
        b = inst & 1
        Iset = 'X' if (inst & 1) == 0 else 'Y'
        for u in range(c.NV_REG + c.NV_LDS, 64):
            tau, t = 4 + u // 16, u % 16
            s = self.ring_slot()
            L = self.mk_vload(b, tau, t, self.vr(vRING + 4*s), self.ring_reader[s])
            C = self.mk_pv(self.vr(vRING + 4*s), vP[Pset] + tau - 4, t, vO[Iset], [L])
            self.ring_reader[s] = C

    def mark(self, name):
        self.marks[name] = len(self.loads)
        if self.c.timing and self.c.stamp_pos is None:
            self.mk_stamp()

    def stamp_now(self):
        a = self.a
        k = self.nstamp; self.nstamp += 1
        a.smem(f's_memrealtime s[{sT}:{sT+1}]')
        a.raw('  s_waitcnt lgkmcnt(0)'); a.t += 1; a.lg = []
        a.i(f's_mov_b32 s{92 + k}, s{sT}')

    def mk_stamp(self):
        return self.add_comp(Comp(self.stamp_now, (), 'stamp'))

    def write_stamps(self):
        a = self.a
        a.i(f's_lshl_b32 s{sT}, s{sWG}, 2')
        a.i(f's_add_u32 s{sT}, s{sT}, s{sWave}')
        a.i(f's_lshl_b32 s{sT}, s{sT}, 6')
        a.i(f's_add_u32 s{sT}, s{sT}, {W_DBG}')
        a.i(f's_mov_b64 exec, 1')
        a.i(f'v_mov_b32 v{T+1}, 0')
        for k in range(self.nstamp):
            a.i(f'v_mov_b32 v{T}, s{92 + k}')
            a.i(f'buffer_store_dword v{T}, v{T+1}, {SRD_WS}, s{sT} offen offset:{4*k}')
        a.i(f'v_mov_b32 v{T}, s{sSpin}')
        a.i(f'buffer_store_dword v{T}, v{T+1}, {SRD_WS}, s{sT} offen offset:48')
        a.i(f'v_mov_b32 v{T}, s2')
        a.i(f'buffer_store_dword v{T}, v{T+1}, {SRD_WS}, s{sT} offen offset:56')
        a.i(f'v_mov_b32 v{T}, s101')
        a.i(f'buffer_store_dword v{T}, v{T+1}, {SRD_WS}, s{sT} offen offset:52')
        a.i(f's_mov_b64 exec, -1')

    def build_program_pre(self):
        g = Gen(self.c); g.pro_loads = []
        g.build_program()
        self.marks = dict(g.marks)

    def build_program(self):
        c = self.c
        if not c.test_attn:
            self.mk_b1()
        KL = self.halfB_loadK(0)
        if not c.test_attn:
            cl = self.mk_clrload()
            self.loads.remove(cl); self.loads.insert(c.CLR_POS, cl)
            self.mk_clrcheck(cl)
        qg0 = self.mk_qgather(0)
        self.loads.remove(qg0); self.loads.insert(c.QG0_POS, qg0)
        VL = self.halfB_loadV(0)
        self.mk_acquire(0, qg0)
        self.halfB_qk('X', KL)
        self.mk_softmax('X', 'X', True)
        self.halfB_pv(0, 'X', VL)
        self.halfB_rest_v(0, 'X')
        self.half_stream(0, 'Y', False)
        qg1 = self.mk_qgather(1)
        self.mk_softmax('Y', 'X', False)
        self.half_stream_v(0, 'Y')
        self.mk_m1(0)
        self.mark('A_end')
        self.mk_acquire(1, qg1)
        self.half_stream(1, 'Y', True)
        self.mk_softmax('Y', 'Y', True)
        n0 = len(self.loads)
        self.half_stream_v(1, 'Y')
        qg2 = self.mk_qgather(2)
        self.loads.remove(qg2); self.loads.insert(len(self.loads) - 12, qg2)
        self.mark('B_end')
        self.mk_acquire(2, qg2)
        self.halfB_qk('X', None)
        self.mk_softmax('X', 'X', True)
        self.halfB_pv(2, 'X', None)
        KL = self.halfB_loadK(1)
        self.halfB_rest_v(2, 'X')
        VL = self.halfB_loadV(1)
        self.mk_acquire(1, None)
        self.halfB_qk('Y', KL)
        self.mk_softmax('Y', 'Y', False)
        self.halfB_pv(1, 'Y', VL)
        self.halfB_rest_v(1, 'Y')
        self.mk_m1(1)
        self.mark('C_end')
        self.mk_acquire(2, None)
        self.half_stream(2, 'X', False)
        self.mk_softmax('X', 'X', False)
        self.half_stream_v(2, 'X')
        qg3 = self.mk_qgather(3)
        self.loads.remove(qg3); self.loads.insert(len(self.loads) - 12, qg3)
        self.mk_m1(2)
        self.mark('D_end')
        self.mk_acquire(3, qg3)
        n0 = len(self.comps)
        qkA = self.half_stream(3, 'X', False)
        compsA = self.comps[n0:]; del self.comps[n0:]
        self.halfB_qk('Y', None)
        self.mk_softmax('Y', 'Y', True)
        self.halfB_pv(3, 'Y', None)
        compsB = self.comps[n0:]; del self.comps[n0:]
        ia = 0
        merged = []
        for k, C in enumerate(compsB):
            if k % 3 == 0 and ia < len(compsA):
                merged.append(compsA[ia]); ia += 1
            merged.append(C)
        merged += compsA[ia:]
        self.comps += merged
        self.halfB_rest_v(3, 'Y')
        self.mk_softmax('X', 'Y', False)
        self.half_stream_v(3, 'X')
        self.mk_m1(3)
        self.mark('E_end')

    def emit_comp(self, C):
        for L in C.needs:
            assert L.vid is not None, ('load not issued before its consumer', C.name, L.name)
            self.a.wait_vm(L.vid)
        if not (self.c.nocompute and not C.name.startswith('stamp')):
            C.emit()
        C.done = True

    def hook(self, pos):
        c = self.c; a = self.a
        if c.test_attn or c.hooks_off: return
        if pos < self.hook_start or (pos - self.hook_start) % c.H != 0: return
        assert self.clr_done
        self.flush_adds()
        skip = a.newlabel('hk')
        if c.hook_c is not None:
            same, every, lo, hi = c.hook_c
            if not (lo <= pos < hi): return
            self.nh = getattr(self, 'nh', 0) + 1
            s2 = a.newlabel('hk2')
            a.i(f's_cmp_eq_u32 s{sWave}, 0')
            a.i(f's_cbranch_scc0 {s2}')
            a.i(f's_lshl_b32 s{sT}, s{sH}, 7')
            a.i(f's_add_u32 s{sT}, s{sT}, {W_Y}')
            a.i(f's_mov_b32 m0, {L_G0}')
            a.i('s_mov_b64 exec, 0xffff')
            a.i(f'buffer_load_dword v{vL4}, {SRD_WS}, s{sT} offen sc1 lds')
            a.i('s_mov_b64 exec, -1')
            a.label(s2)
            if self.nh % every == 0:
                a.i(f's_cmp_eq_u32 s{sWave}, 1')
                a.i(f's_cbranch_scc0 {skip}')
                a.i(f's_lshl_b32 s{sT}, s{sH}, 7')
                a.i(f's_lshl_b32 s{sT+1}, s{sS}, 3')
                a.i(f's_add_u32 s{sT}, s{sT}, s{sT+1}')
                a.i(f's_add_u32 s{sT}, s{sT}, {W_Y if same else W_Z}')
                a.i('s_mov_b64 exec, 1')
                a.i(f'buffer_store_dwordx2 v[{T}:{T+1}], v{vL4}, {SRD_WS}, s{sT} offen sc1')
                a.i('s_mov_b64 exec, -1')
                a.label(skip)
            return
        if c.hook_z is not None:
            if pos in c.hook_z[0]:
                a.i(f's_cmp_eq_u32 s{sWave}, 2')
                a.i(f's_cbranch_scc0 {skip}')
                a.i(f's_lshl_b32 s{sT+1}, s{sJ4}, 4')
                a.i(f's_add_u32 s{sT}, s{sT+1}, {W_Z}')
                a.i(f'v_and_b32 v{vX+2}, 15, v{vLane}')
                a.i(f'v_mul_u32_u24 v{vX+2}, 3072, v{vX+2}')
                a.i('s_mov_b64 exec, 0xffff')
                for k in range(8):
                    a.i(f'buffer_store_dwordx4 v[{T}:{T+3}], v{vX+2}, {SRD_WS}, s{sT} offen{c.hook_z[1]}')
                    a.i(f's_add_u32 s{sT}, s{sT}, 49152')
                a.i('s_mov_b64 exec, -1')
                a.label(skip)
            return
        if c.hook_ld is not None:
            mode, rep, allw = c.hook_ld
            if not allw:
                a.i(f's_cmp_eq_u32 s{sWave}, 3')
                a.i(f's_cbranch_scc0 {skip}')
            a.i(f's_mov_b32 m0, {L_G3}')
            if rep == 1: a.i(f's_add_u32 s{sT}, s{sRep}, {W_X1}')
            elif rep == 0: a.i(f's_mov_b32 s{sT}, {W_X1}')
            else:
                a.i(f's_lshl_b32 s{sT}, s{sWG}, 10'); a.i(f's_add_u32 s{sT}, s{sT}, {W_Z}')
            if mode == 'st':
                a.i(f'buffer_store_dword v{vL4}, v{vL4}, {SRD_WS}, s{sT} offen sc1')
            else:
                a.i(f'buffer_load_dwordx4 v{vL16}, {SRD_WS}, s{sT} offen{mode} lds')
            a.label(skip)
            return
        if c.hook_stub:
            self.nhook = getattr(self, 'nhook', 0) + 1
            if self.nhook % c.hook_stub == 0:
                a.i(f's_getpc_b64 s[{sRet}:{sRet+1}]')
                a.i('s_branch H_RET')
            return
        a.i(f's_cmpk_le_u32 s{sWake}, {pos}')
        a.i(f's_cbranch_scc0 {skip}')
        self.call_dispatch()
        a.label(skip)

    def schedule(self):
        c = self.c; a = self.a
        ci = 0
        comps = self.comps
        for li, L in enumerate(self.loads):
            L.idx = li
            if L.after is not None and not L.after.done:
                while not L.after.done:
                    self.emit_comp(comps[ci]); ci += 1
            if li >= max(c.D, 0 if c.test_attn else c.BURST):
                a.wait_vm(self.loads[li - c.D].vid)
            L.vid = L.emit()
            n = 0
            while ci < len(comps) and n < c.budget:
                C = comps[ci]
                if all(x.vid is not None and a.vm_done(x.vid) for x in C.needs):
                    self.emit_comp(C); ci += 1; n += 1
                else:
                    break
            self.hook(li)
            if c.stamp_pos is not None and li in c.stamp_pos:
                self.stamp_now()
        while ci < len(comps):
            self.emit_comp(comps[ci]); ci += 1

    def prologue(self):
        a = self.a; c = self.c
        a.i(f's_cmp_ge_u32 s2, 256')
        a.i(f's_cbranch_scc1 L_end')
        a.smem(f's_load_dwordx16 s[64:79], s[0:1], 0')
        a.smem(f's_load_dwordx8 s[80:87], s[0:1], 64')
        a.i(f'v_lshrrev_b32 v1, 6, v0')
        a.i(f'v_and_b32 v{vLane}, 63, v0')
        a.i(f'v_readfirstlane_b32 s{sWave}, v1')
        a.i(f's_mov_b32 s{sWG}, s2')
        a.i(f's_and_b32 s{sT}, s2, 7')
        a.i(f's_lshr_b32 s{sT+1}, s2, 3')
        a.i(f's_and_b32 s{sT+2}, s{sT+1}, 3')
        if c.hmap == 0:
            a.i(f's_lshl_b32 s{sH}, s{sT}, 2')
            a.i(f's_add_u32 s{sH}, s{sH}, s{sT+2}')
        else:
            a.i(f's_lshl_b32 s{sH}, s{sT+2}, 3')
            a.i(f's_add_u32 s{sH}, s{sH}, s{sT}')
        a.i(f's_lshr_b32 s{sS}, s{sT+1}, 2')
        a.i(f's_lshl_b32 s{sB[0]}, s{sH}, 22')
        a.i(f's_lshl_b32 s{sT}, s{sS}, 19')
        a.i(f's_add_u32 s{sB[0]}, s{sB[0]}, s{sT}')
        if c.xor_wave:
            a.i(f's_lshr_b32 s{sT+3}, s{sH}, 1')
            a.i(f's_add_u32 s{sT+3}, s{sT+3}, s{sS}')
            a.i(f's_lshr_b32 s{sT+3}, s{sT+3}, 1')
            a.i(f's_xor_b32 s{sT}, s{sWave}, s{sT+3}')
            a.i(f's_and_b32 s{sT}, s{sT}, 3')
            a.i(f's_lshl_b32 s{sT}, s{sT}, 14')
        else:
            a.i(f's_lshl_b32 s{sT}, s{sWave}, 14')
        a.i(f's_add_u32 s{sB[0]}, s{sB[0]}, s{sT}')
        if c.xor_tile:
            if c.xor_tile == 1:
                a.i(f's_add_u32 s{sT}, s{sS}, s{sH}')
            elif c.xor_tile == 2:
                a.i(f's_mov_b32 s{sT}, s{sS}')
            elif c.xor_tile == 3:
                a.i(f's_mov_b32 s{sT}, s{sH}')
            elif c.xor_tile == 4:
                a.i(f's_lshr_b32 s{sT}, s{sH}, 2')
                a.i(f's_add_u32 s{sT}, s{sT}, s{sS}')
                a.i(f's_add_u32 s{sT}, s{sT}, s{sH}')
            a.i(f's_and_b32 s{sT}, s{sT}, 7')
            a.i(f's_lshl_b32 s{sT}, s{sT}, 16')
            a.i(f's_or_b32 s{sB[0]}, s{sB[0]}, s{sT}')
        a.i(f's_add_u32 s{sB[1]}, s{sB[0]}, 0x8000000')
        nret = c.NV_LDS * 1024
        a.i(f's_mul_i32 s{sLdsRet}, s{sWave}, {nret}')
        a.i(f's_add_u32 s{sLdsRet}, s{sLdsRet}, {L_RET}')
        a.i(f's_lshl_b32 s{sQG}, s{sWave}, 9')
        a.i(f's_add_u32 s{sQG}, s{sQG}, {L_QG}')
        l = vLane
        a.i(f'v_lshlrev_b32 v{vL16}, 4, v{l}')
        a.i(f'v_lshlrev_b32 v{vL4}, 2, v{l}')
        a.i(f'v_add_u32 v{vLdsRet}, s{sLdsRet}, v{vL16}')
        a.i(f's_sub_u32 s{sLdsRet}, s{sLdsRet}, 4096')
        a.i(f'v_and_b32 v{T}, 7, v{l}')
        a.i(f'v_lshlrev_b32 v{vKoff}, 8, v{T}')
        a.i(f'v_bfe_u32 v{T}, v{l}, 3, 1')
        a.i(f'v_lshl_add_u32 v{vKoff}, v{T}, 6, v{vKoff}')
        a.i(f'v_lshrrev_b32 v{T+1}, 4, v{l}')
        a.i(f'v_lshl_add_u32 v{vKoff}, v{T+1}, 4, v{vKoff}')
        a.i(f'v_and_b32 v{T}, 15, v{l}')
        a.i(f'v_lshlrev_b32 v{vVoff}, 4, v{T}')
        a.i(f'v_lshl_add_u32 v{vVoff}, v{T+1}, 12, v{vVoff}')
        if c.linpat:
            a.i(f'v_mov_b32 v{vKoff}, v{vL16}')
            a.i(f'v_mov_b32 v{vVoff}, v{vL16}')
        a.i(f'v_and_b32 v{T+2}, 1, v{l}')
        a.i(f'v_lshlrev_b32 v{T+2}, 4, v{T+2}')
        a.i(f'v_mov_b32 v{T+3}, 0xffff')
        a.i(f'v_lshlrev_b32 v{T+3}, v{T+2}, v{T+3}')
        a.i(f'v_lshrrev_b32 v{T+4}, 1, v{T}')
        for r in range(4):
            a.i(f'v_cmp_eq_u32 vcc, {r}, v{T+4}')
            a.i(f'v_cndmask_b32 v{vMask[r]}, 0, v{T+3}, vcc')
        a.raw('  s_waitcnt lgkmcnt(0)'); a.t += 1
        def srd(base, ptr, size):
            a.i(f's_mov_b32 s{base}, s{ptr}')
            a.i(f's_and_b32 s{base+1}, s{ptr+1}, 0xffff')
            a.i(f's_mov_b32 s{base+2}, {hex(size)}')
            a.i(f's_mov_b32 s{base+3}, 0x20000')
        srd(4, P_K, 1 << 28); srd(8, P_V, 1 << 28); srd(12, P_WS, WS_BYTES); srd(16, P_OUT, 2048)
        srd(20, P_WQ, 512 * 4096 * 2)
        a.i(f'v_mov_b32 v{T}, {L_CNT}')
        a.i(f'v_add_u32 v{T}, v{T}, v{vL4}')
        a.i(f'v_mov_b32 v{T+1}, 0')
        a.i(f's_mov_b64 exec, 0xffff')
        lid = a.i(f'ds_write_b32 v{T}, v{T+1}')
        a.i(f's_mov_b64 exec, -1')
        a.wait_lg(lid)
        if c.test_attn:
            a.i('s_barrier')
            return
        a.i(f's_mov_b32 s{sSpin}, {c.SPIN}')
        a.i('s_mov_b32 s101, 0')
        if c.timing: a.i('s_mov_b32 s2, 0')
        a.i(f's_and_b32 s{sT}, s{sWG}, 7')
        a.i(f's_lshl_b32 s{sRep}, s{sT}, 10')
        a.i(f's_mul_i32 s{sJ4}, s{sT}, 22')
        a.i(f's_lshr_b32 s{sT+1}, s{sWG}, 3')
        a.i(f's_add_u32 s{sJ4}, s{sJ4}, s{sT+1}')
        a.i(f's_cmp_lt_u32 s{sT+1}, 22')
        a.i(f's_cselect_b32 s{sT+2}, 1, 0')
        a.i(f's_cmp_lt_u32 s{sJ4}, 172')
        a.i(f's_cselect_b32 s{sT+2}, s{sT+2}, 0')
        a.i(f's_cmp_eq_u32 s{sT+2}, 1')
        a.i(f's_cselect_b32 s{sFsz}, {512 * 1376 * 2}, 0')
        a.i(f's_and_b32 s65, s65, 0xffff')
        a.i(f's_mov_b32 s66, 2048')
        a.i(f's_mov_b32 s67, 0x20000')
        a.i(f'v_lshrrev_b32 v{T}, 1, v{vLane}')
        a.i(f'v_lshlrev_b32 v{T}, 13, v{T}')
        a.i(f'v_and_b32 v{T+1}, 1, v{vLane}')
        a.i(f'v_lshl_add_u32 v{T}, v{T+1}, 4, v{T}')
        a.i(f's_lshl_b32 s{sT}, s{sWave}, 20')
        a.i(f's_lshl_b32 s{sT+1}, s{sH}, 8')
        a.i(f's_add_u32 s{sT}, s{sT}, s{sT+1}')
        a.i(f's_lshl_b32 s{sT+1}, s{sS}, 5')
        a.i(f's_add_u32 s{sT}, s{sT}, s{sT+1}')
        a.i(f's_lshl_b32 s{sT+2}, s{sWave}, 12')
        def dummy(vid, name):
            L = Load(None, None, name); L.vid = vid; self.pro_loads.append(L)
        for k in range(4):
            a.i(f's_add_u32 m0, s{sT+2}, {L_WQ + k * 1024}')
            dummy(a.i(f'buffer_load_dwordx4 v{T}, {SRD_T}, s{sT} offen{c.pol_w} lds'), 'WQ')
            if k < 3: a.i(f's_add_u32 s{sT}, s{sT}, 262144')
        n0 = len(self.loads)
        wl = self.mk_weight_loads()
        del self.loads[n0:]
        for L in wl:
            dummy(L.emit(), L.name)
        for i in range(4): a.i(f'v_mov_b32 v{T+4+i}, -1')
        a.i(f's_lshl_b32 s{sT}, s{sWG}, 2')
        a.i(f's_add_u32 s{sT}, s{sT}, s{sWave}')
        a.i(f's_mul_i32 s{sT}, s{sT}, 3072')
        for k in range(3):
            dummy(a.i(f'buffer_store_dwordx4 v[{T+4}:{T+7}], v{vL16}, {SRD_WS}, s{sT} offen offset:{k*1024} sc1'), 'CLR')
        a.i(f's_lshl_b32 s{sR5}, s{sH}, 2')
        a.i(f's_add_u32 s{sR5}, s{sR5}, s{sS}')
        a.i(f's_sub_u32 s{sR5}, s{sR5}, 1')
        a.i(f's_mov_b32 s{sInst}, 0')
        a.i(f's_mov_b32 s{sStep}, 0')
        a.i(f's_sub_u32 s{sT+3}, s{sS}, 1')
        a.i(f's_cmp_lt_u32 s{sT+3}, 4')
        a.i(f's_cselect_b32 s{sKind}, 1, 2')
        a.i(f's_cmp_eq_u32 s{sS}, 0')
        a.i(f's_cselect_b32 s{sKind}, 0, s{sKind}')
        E = [self.marks['A_end'], self.marks['C_end'], self.marks['D_end'], None]
        def wk(role):
            if role == 'M6':
                return [c.HOOK_START, c.HOOK_START, E[0] + c.WK['M6'], E[1] + c.WK['M6']]
            return [E[0] + c.WK[role], E[1] + c.WK[role], E[2] + c.WK[role], TAILPOS]
        def setwk(vals):
            a.i(f's_mov_b32 s{sWake}, {vals[0]}')
            for i in range(3): a.i(f's_mov_b32 s{sWk[i]}, {vals[i+1]}')
        done = a.newlabel('roles')
        setwk([DONE] * 4)
        def role(cond, vals):
            nx = a.newlabel('rl')
            cond(nx)
            setwk(vals)
            a.i(f's_branch {done}')
            a.label(nx)
        def c_w(w):
            def f(nx):
                a.i(f's_cmp_eq_u32 s{sWave}, {w}'); a.i(f's_cbranch_scc0 {nx}')
            return f
        if c.tasks_off:
            a.label(done)
            return
        role(c_w(0), wk('M2'))
        role(c_w(3), wk('M6'))
        def c_m4(nx):
            a.i(f's_cmp_eq_u32 s{sWave}, 2'); a.i(f's_cbranch_scc0 {nx}')
            a.i(f's_cmp_lg_u32 s{sFsz}, 0'); a.i(f's_cbranch_scc0 {nx}')
        role(c_m4, wk('M4'))
        def c_k(k):
            def f(nx):
                a.i(f's_cmp_eq_u32 s{sWave}, 1'); a.i(f's_cbranch_scc0 {nx}')
                a.i(f's_cmp_eq_u32 s{sKind}, {k}'); a.i(f's_cbranch_scc0 {nx}')
            return f
        role(c_k(0), wk('M3'))
        role(c_k(1), wk('M5'))
        a.label(done)

    def tail(self):
        a = self.a
        lp = a.newlabel('tail'); end = a.newlabel('tailend')
        a.flush_hazards()
        a.label(lp)
        a.i('s_waitcnt vmcnt(0)')
        a.i(f's_cmpk_lt_u32 s{sWake}, {DONE}')
        a.i(f's_cbranch_scc0 {end}')
        self.call_dispatch()
        a.i(f's_sub_u32 s{sSpin}, s{sSpin}, 1')
        a.i(f's_cmp_gt_i32 s{sSpin}, 0')
        a.i(f's_cbranch_scc1 {lp}')
        a.label(end)

    def generate(self):
        c = self.c; a = self.a
        if c.timing:
            a.i('s_cmp_ge_u32 s2, 256'); a.i('s_cbranch_scc1 L_end')
            self.stamp_now()
        self.build_program_pre()
        self.prologue()
        if c.timing: self.stamp_now()
        self.build_program()
        self.schedule()
        a.wait_vm_all()
        if c.timing: self.stamp_now()
        if not c.test_attn:
            self.tail()
        if c.timing:
            self.stamp_now()
            self.write_stamps()
            a.wait_vm_all()
        a.label('L_end')
        a.i('s_endpgm')
        htext = ''
        if not c.test_attn:
            import handlers
            htext = handlers.build(c).text()
        lds = L_RET + 4 * c.NV_LDS * 1024
        assert lds <= 163840, lds
        hdr = open('interleave_layers__gqa_block_cached__glu_gated_bilinear__decode.s.ref').read().split('\n')
        head = []
        for ln in hdr:
            if ln.startswith('; @launch'):
                head.append(f'; @launch grid=(256,1,1) block=(256,1,1) lds={lds}')
            elif ln.startswith(';'):
                head.append(ln)
            else:
                break
        out = '\n'.join(head) + '\n'
        out += '.amdgcn_target "amdgcn-amd-amdhsa--gfx950"\n.text\n'
        out += f'.globl {NAME}\n.p2align 8\n.type {NAME},@function\n{NAME}:\n'
        out += a.text()
        out += htext
        out += '  s_endpgm\n'
        out += '.section .rodata,"a"\n.p2align 6\n'
        out += f'.amdhsa_kernel {NAME}\n  .amdhsa_next_free_vgpr 512\n  .amdhsa_next_free_sgpr 102\n  .amdhsa_accum_offset 256\n'
        out += '  .amdhsa_group_segment_fixed_size 0\n  .amdhsa_kernarg_size 96\n  .amdhsa_user_sgpr_count 2\n'
        out += '  .amdhsa_user_sgpr_kernarg_segment_ptr 1\n  .amdhsa_system_sgpr_workgroup_id_x 1\n.end_amdhsa_kernel\n'
        return out

if __name__ == '__main__':
    cfg = Cfg()
    for arg in sys.argv[2:]:
        k, v = arg.split('=', 1)
        setattr(cfg, k, eval(v))
    g = Gen(cfg)
    s = g.generate()
    open(sys.argv[1], 'w').write(s)
    print('instrs', g.a.ninstr, 'loads', len(g.loads), 'comps', len(g.comps), g.marks)
```

```python
import struct
NAME = 'interleave_layers__gqa_block_cached__glu_gated_bilinear__decode_kernel'
def f2u(x): return struct.unpack('<I', struct.pack('<f', x))[0]
SCALE = (128 ** -0.5) * 1.4426950408889634

sWave, sH, sS, sWG = 24, 25, 26, 27
sB = [28, 29]
sBp = [30, 31]
sOffK, sOffV = 32, 33
sLdsRet, sQG = 34, 35
sM = {'X': 36, 'Y': 37}
sNV = 38
sSpin = 39
sPX = [42, 44]
sClr = 41
sPidx = 40
sT = 46
SRD_K, SRD_V, SRD_WS, SRD_OUT, SRD_T = 's[4:7]', 's[8:11]', 's[12:15]', 's[16:19]', 's[20:23]'
SRD_X = 's[64:67]'
P_X, P_K, P_V, P_WQ, P_WO, P_BX, P_WG, P_WU, P_WD, P_OUT, P_DBG, P_WS = [64 + 2*i for i in range(12)]
STAMP0 = 92

NP = 28
W_PO = 0
W_PML = 0x1C0000
W_Y = 0x1C8000
W_X1 = 0x208000
W_XS = 0x209000
W_Z = 0x20A000
W_Q = 0x24A000
W_CLR_END = 0x300000
W_DBG = 0x301000
WS_BYTES = 0x330000

DPP_STEPS = ['row_ror:8 row_mask:0xf', 'row_ror:4 row_mask:0xf', 'row_ror:2 row_mask:0xf', 'row_ror:1 row_mask:0xf',
             'row_bcast:15 row_mask:0xa', 'row_bcast:31 row_mask:0xc']
def vr(b, n=4): return f'v[{b}:{b+n-1}]'
def ar(b, n=4): return f'a[{b}:{b+n-1}]'
def wave_reduce_multi(h, op, regs):
    for c in DPP_STEPS:
        for r in regs: h.i(f'{op}_dpp v{r}, v{r}, v{r} {c} bank_mask:0xf')
def rbf(h, dst, src):
    h.i(f'v_cvt_pk_bf16_f32 v{dst}, v{src}, v{src}')
    h.i(f'v_and_b32 v{dst}, 0xffff0000, v{dst}')
```

```python
from asmlib import Asm
from common import *

vLane, vL16, vL4 = 0, 1, 2
vG, vN = 3, 4
vCSQ = [5, 6]
vCSG, vCSU = 7, 8
vAaddr = 9
vZ = 10
T = 12
aWQ, aWO = 0, 128
vWG, vWU, vWD = 64, 128, 192
sFv = 41
sXB = 42
sFsz = 3

L_XB = 0
L_OB = 4096
L_OH = 8192
L_ZB = 9216
L_TMP = 17408

class Service:
    def __init__(self, cfg, a, stampfn):
        self.c = cfg; self.a = a; self.stamp = stampfn

    def spin_tail(self, lp):
        a = self.a
        a.i(f's_sub_u32 s{sSpin}, s{sSpin}, 1')
        a.i(f's_cmp_gt_i32 s{sSpin}, 0')
        a.i(f's_cbranch_scc1 {lp}')

    def srd_t(self, ptr, size):
        a = self.a
        a.i(f's_mov_b32 s20, s{ptr}')
        a.i(f's_and_b32 s21, s{ptr+1}, 0xffff')
        a.i(f's_mov_b32 s22, {size}')
        a.i(f's_mov_b32 s23, 0x20000')

    def wait_all(self):
        self.a.i('s_waitcnt vmcnt(0) lgkmcnt(0)'); self.a.vm = []; self.a.lg = []

    def stage(self, nunits, voff_reg, soff_init, soff_step, lds0):
        a = self.a
        for k in range(nunits):
            a.i(f's_mov_b32 m0, s{sT+5}')
            a.i(f'buffer_load_dwordx4 v{voff_reg}, {SRD_T}, s{sT+4} offen{self.c.pol_w} lds')
            if k + 1 < nunits:
                a.i(f's_add_u32 s{sT+4}, s{sT+4}, {soff_step}')
                a.i(f's_add_u32 s{sT+5}, s{sT+5}, 1024')
            if len(a.vm) >= 48:
                a.wait_vm(a.vm[15])

    def trread(self, dsts, addr_regs):
        a = self.a
        for (d0, d1, ad, o1, o2) in dsts:
            a.i(f'ds_read_b64_tr_b16 {d0}, v{ad} offset:{o1}')
            a.i(f'ds_read_b64_tr_b16 {d1}, v{ad} offset:{o2}')
            if len(a.lg) >= 12:
                a.wait_lg(a.lg[3])
        a.wait_lg_all()

    def colsum(self, Bregs, dst, ones):
        a = self.a
        acc = T + 8
        for j, B in enumerate(Bregs):
            c = '0' if j == 0 else vr(acc)
            a.i(f'v_mfma_f32_16x16x32_bf16 {vr(acc)}, {vr(ones)}, {B}, {c}')
        a.i(f'v_mov_b32 v{dst}, v{acc}')

    def init(self):
        a = self.a; c = self.c
        l = vLane
        a.i(f'v_lshlrev_b32 v{vL16}, 4, v{l}')
        a.i(f'v_lshlrev_b32 v{vL4}, 2, v{l}')
        a.i(f'v_lshrrev_b32 v{vG}, 4, v{l}')
        a.i(f'v_and_b32 v{vN}, 15, v{l}')
        a.i(f'v_mov_b32 v{vZ}, 0')
        a.i(f's_lshl_b32 s{sXB}, s{sWave}, 10')
        if L_XB: a.i(f's_add_u32 s{sXB}, s{sXB}, {L_XB}')
        a.i(f'v_lshlrev_b32 v{vAaddr}, 4, v{vG}')
        a.i(f'v_add_u32 v{vAaddr}, s{sXB}, v{vAaddr}')
        a.i(f's_lshl_b32 s{sT}, s{sH}, 2')
        a.i(f's_add_u32 s{sT}, s{sT}, s{sWave}')
        a.i(f's_cmp_lt_u32 s{sT}, 86')
        a.i(f's_cselect_b32 s{sFv}, 1, 0')
        a.i(f's_cmp_lt_u32 s{sH}, 22')
        a.i(f's_cselect_b32 s{sFsz}, {512 * 1376 * 2}, 0')
        self.srd_t(P_WQ, hex(512 * 4096 * 2))
        a.i(f'v_lshlrev_b32 v{T}, 13, v{vG}')
        a.i(f'v_lshl_add_u32 v{T}, v{vN}, 4, v{T}')
        a.i(f's_lshl_b32 s{sT+4}, s{sWave}, 20')
        a.i(f's_lshl_b32 s{sT}, s{sH}, 8')
        a.i(f's_add_u32 s{sT+4}, s{sT+4}, s{sT}')
        a.i(f's_lshl_b32 s{sT+5}, s{sWave}, 15')
        self.stage(32, T, None, 4 * 8192, None)
        self.wait_all()
        a.i('s_barrier')
        a.flush_hazards()
        a.i(f'v_bfe_u32 v{T+2}, v{l}, 2, 2')
        a.i(f'v_lshl_add_u32 v{T+2}, v{vG}, 3, v{T+2}')
        a.i(f'v_and_b32 v{T+3}, 3, v{l}')
        a.i(f'v_lshlrev_b32 v{T+3}, 3, v{T+3}')
        a.i(f'v_lshl_add_u32 v{T+4}, v{T+2}, 8, v{T+3}')
        a.i(f's_lshl_b32 s{sT}, s{sWave}, 6')
        a.i(f'v_add_u32 v{T+4}, s{sT}, v{T+4}')
        a.i(f'v_add_u32 v{T+5}, 0x10000, v{T+4}')
        d = []
        for cc in range(2):
            for j in range(16):
                r = aWQ + (cc * 16 + j) * 4
                ad = T + 4 if j < 8 else T + 5
                off = (j % 8) * 8192 + cc * 32
                d.append((ar(r, 2), ar(r + 2, 2), ad, off, off + 1024))
        self.trread(d, None)
        a.i('s_barrier')
        self.srd_t(P_WO, hex(4096 * 512 * 2))
        a.i(f's_lshl_b32 s{sT+4}, s{sH}, 17')
        a.i(f's_lshl_b32 s{sT}, s{sWave}, 15')
        a.i(f's_add_u32 s{sT+4}, s{sT+4}, s{sT}')
        a.i(f's_lshl_b32 s{sT+5}, s{sWave}, 15')
        a.i(f's_add_u32 s{sT+5}, s{sT+5}, {L_TMP}')
        self.stage(32, vL16, None, 1024, None)
        for i in range(4): a.i(f'v_mov_b32 v{T+4+i}, 0x3f803f80')
        for cc in range(2):
            self.colsum([ar(aWQ + (cc * 16 + j) * 4) for j in range(16)], vCSQ[cc], T + 4)
        self.clrcheck()
        self.taskQ(0)
        self.taskQ(1)
        if c.timing: self.stamp()
        self.wait_all()
        a.i('s_barrier')
        a.i(f'v_bfe_u32 v{T+2}, v{l}, 2, 2')
        a.i(f'v_lshl_add_u32 v{T+2}, v{vG}, 3, v{T+2}')
        a.i(f'v_and_b32 v{T+3}, 3, v{l}')
        a.i(f'v_lshlrev_b32 v{T+3}, 3, v{T+3}')
        a.i(f'v_lshl_add_u32 v{T+4}, v{T+2}, 10, v{T+3}')
        a.i(f's_lshl_b32 s{sT}, s{sWave}, 8')
        a.i(f's_add_u32 s{sT}, s{sT}, {L_TMP}')
        a.i(f'v_add_u32 v{T+4}, s{sT}, v{T+4}')
        a.i(f'v_add_u32 v{T+5}, 0x10000, v{T+4}')
        d = []
        for cc in range(8):
            for j in range(4):
                r = aWO + (cc * 4 + j) * 4
                ad = T + 4 if j < 2 else T + 5
                off = (j % 2) * 32768 + cc * 32
                d.append((ar(r, 2), ar(r + 2, 2), ad, off, off + 4096))
        self.trread(d, None)
        a.i('s_barrier')
        a.i(f'v_lshrrev_b32 v{T}, 3, v{l}')
        a.i(f's_mov_b32 s{sT}, 2752')
        a.i(f'v_mul_lo_u32 v{T}, v{T}, s{sT}')
        a.i(f'v_and_b32 v{T+1}, 7, v{l}')
        a.i(f'v_lshl_add_u32 v{T}, v{T+1}, 4, v{T}')
        for (ptr, lofs) in ((P_WG, L_TMP), (P_WU, L_TMP + 65536)):
            self.srd_t(ptr, f's{sFsz}')
            a.i(f's_mul_i32 s{sT+4}, s{sWave}, {16 * 8 * 2752}')
            a.i(f's_lshl_b32 s{sT}, s{sH}, 7')
            a.i(f's_add_u32 s{sT+4}, s{sT+4}, s{sT}')
            a.i(f's_lshl_b32 s{sT+5}, s{sWave}, 14')
            a.i(f's_add_u32 s{sT+5}, s{sT+5}, {lofs}')
            self.stage(16, T, None, 8 * 2752, None)
        self.wait_all()
        a.i('s_barrier')
        a.i(f'v_lshl_add_u32 v{T+4}, v{T+2}, 7, v{T+3}')
        a.i(f's_lshl_b32 s{sT}, s{sWave}, 5')
        a.i(f's_add_u32 s{sT}, s{sT}, {L_TMP}')
        a.i(f'v_add_u32 v{T+4}, s{sT}, v{T+4}')
        a.i(f'v_add_u32 v{T+5}, 0x10000, v{T+4}')
        d = []
        for (base, ad) in ((vWG, T + 4), (vWU, T + 5)):
            for j in range(16):
                r = base + j * 4
                d.append((vr(r, 2), vr(r + 2, 2), ad, j * 4096, j * 4096 + 512))
        self.trread(d, None)
        a.i('s_barrier')
        self.srd_t(P_WD, f's{sFsz}')
        a.i(f's_lshl_b32 s{sT+4}, s{sH}, 16')
        a.i(f's_lshl_b32 s{sT}, s{sWave}, 14')
        a.i(f's_add_u32 s{sT+4}, s{sT+4}, s{sT}')
        a.i(f's_lshl_b32 s{sT+5}, s{sWave}, 14')
        a.i(f's_add_u32 s{sT+5}, s{sT+5}, {L_TMP}')
        self.stage(16, vL16, None, 1024, None)
        for i in range(4): a.i(f'v_mov_b32 v{T+4+i}, 0x3f803f80')
        self.colsum([vr(vWG + 4 * j) for j in range(16)], vCSG, T + 4)
        self.colsum([vr(vWU + 4 * j) for j in range(16)], vCSU, T + 4)
        self.wait_all()
        a.i(f'v_bfe_u32 v{T}, v{l}, 2, 2')
        a.i(f'v_lshlrev_b32 v{T}, 10, v{T}')
        a.i(f'v_lshl_add_u32 v{T}, v{vG}, 5, v{T}')
        a.i(f'v_add_u32 v{T}, v{T}, v{T+3}')
        a.i(f's_lshl_b32 s{sT}, s{sWave}, 14')
        a.i(f's_add_u32 s{sT}, s{sT}, {L_TMP}')
        a.i(f'v_add_u32 v{T}, s{sT}, v{T}')
        d = []
        for cc in range(8):
            for fh in range(2):
                r = vWD + (cc * 2 + fh) * 4
                off = fh * 8192 + cc * 128
                d.append((vr(r, 2), vr(r + 2, 2), T, off, off + 4096))
        self.trread(d, None)
        a.i(f's_lshl_b32 s{sT}, s{sWave}, 14')
        a.i(f's_add_u32 s{sT}, s{sT}, {L_TMP}')
        a.i(f'v_add_u32 v{T+1}, s{sT}, v{vL16}')
        for k in range(16):
            a.i(f'ds_write_b128 v{T+1}, {vr(vWD + 4 * k)} offset:{k * 1024}')
            if len(a.lg) >= 12: a.wait_lg(a.lg[3])
        a.wait_lg_all()
        a.i(f'v_lshlrev_b32 v{T+2}, 6, v{vN}')
        a.i(f'v_lshl_add_u32 v{T+2}, v{vG}, 4, v{T+2}')
        a.i(f'v_add_u32 v{T+2}, s{sT}, v{T+2}')
        for k in range(16):
            a.i(f'ds_read_b128 {vr(vWD + 4 * k)}, v{T+2} offset:{k * 1024}')
            if len(a.lg) >= 12: a.wait_lg(a.lg[3])
        a.wait_lg_all()
        a.i('s_barrier')
        if c.timing: self.stamp()

    def clrcheck(self):
        a = self.a
        ok = a.newlabel('sclok'); lp = a.newlabel('sclp')
        a.label(lp)
        a.i(f'global_load_dword v{T+8}, v{vZ}, s[{P_DBG}:{P_DBG+1}] sc1')
        a.i('s_waitcnt vmcnt(0)'); a.vm = []
        a.i(f'v_readfirstlane_b32 s{sT}, v{T+8}')
        a.i(f's_cmp_eq_u32 s{sT}, 224')
        a.i(f's_cbranch_scc1 {ok}')
        a.i('s_sleep 4')
        self.spin_tail(lp)
        a.label(ok)
        a.flush_hazards()

    def bad_scc(self, regs, tmp):
        a = self.a
        regs = list(regs)
        a.i(f'v_max_u32 v{tmp}, v{regs[0]}, v{regs[1]}')
        k = 2
        while k < len(regs):
            if k + 1 < len(regs):
                a.i(f'v_max3_u32 v{tmp}, v{tmp}, v{regs[k]}, v{regs[k+1]}'); k += 2
            else:
                a.i(f'v_max_u32 v{tmp}, v{tmp}, v{regs[k]}'); k += 1
        a.i(f'v_cmp_eq_u32 vcc, -1, v{tmp}')
        a.i(f's_cmp_lg_u64 vcc, 0')

    def x_acquire(self, srd, soff_expr, sc1):
        a = self.a
        lp = a.newlabel('xa'); ok = a.newlabel('xaok')
        a.flush_hazards()
        a.label(lp)
        a.i(f'buffer_load_dwordx4 {vr(T)}, v{vL16}, {srd}, {soff_expr} offen{sc1}')
        a.i('s_waitcnt vmcnt(0)'); a.vm = []
        if sc1:
            self.bad_scc(range(T, T + 4), T + 4)
            a.i(f's_cbranch_scc0 {ok}')
            a.i(f's_sleep {self.c.SLEEP}')
            self.spin_tail(lp)
            a.label(ok)
        a.flush_hazards()
        a.i(f'v_add_u32 v{T+4}, s{sXB}, v{vL16}')
        a.i(f'ds_write_b128 v{T+4}, {vr(T)}')

    def gemv2_stats(self, B0, B1, cs0, cs1):
        a = self.a
        acc0, acc1 = T + 8, T + 12
        Ab = [T + 16, T + 20, T + 24, T + 28]
        S = T + 32
        ids = {}
        def issue(j): ids[j] = a.i(f'ds_read_b128 {vr(Ab[j % 4])}, v{vAaddr} offset:{j * 64}')
        for j in range(4): issue(j)
        g = []
        def step(j):
            def f():
                a.wait_lg(ids[j])
                c0 = '0' if j == 0 else vr(acc0); c1 = '0' if j == 0 else vr(acc1)
                a.i(f'v_mfma_f32_16x16x32_bf16 {vr(acc0)}, {vr(Ab[j % 4])}, {B0[j]}, {c0}')
                a.i(f'v_mfma_f32_16x16x32_bf16 {vr(acc1)}, {vr(Ab[j % 4])}, {B1[j]}, {c1}')
                if j + 4 < 16: issue(j + 4)
            return f
        g = [step(j) for j in range(16)]
        st = []
        I = lambda t: st.append(lambda: a.i(t))
        for k in range(4):
            I(f'v_lshlrev_b32 v{S+6}, 16, v{T+k}')
            I(f'v_and_b32 v{S+7}, 0xffff0000, v{T+k}')
            if k == 0:
                I(f'v_add_f32 v{S+4}, v{S+6}, v{S+7}')
                I(f'v_mul_f32 v{S+5}, v{S+6}, v{S+6}')
            else:
                I(f'v_add_f32 v{S+4}, v{S+4}, v{S+6}')
                I(f'v_fmac_f32 v{S+5}, v{S+6}, v{S+6}')
                I(f'v_add_f32 v{S+4}, v{S+4}, v{S+7}')
            I(f'v_fmac_f32 v{S+5}, v{S+7}, v{S+7}')
        for c in DPP_STEPS:
            I(f'v_add_f32_dpp v{S+4}, v{S+4}, v{S+4} {c} bank_mask:0xf')
            I(f'v_add_f32_dpp v{S+5}, v{S+5}, v{S+5} {c} bank_mask:0xf')
        I(f'v_readlane_b32 s{sT+8}, v{S+4}, 63')
        I(f'v_readlane_b32 s{sT+9}, v{S+5}, 63')
        I(f'v_mov_b32 v{S}, s{sT+8}')
        I(f'v_mov_b32 v{S+1}, s{sT+9}')
        I(f'v_mul_f32 v{S}, {hex(f2u(1.0/512))}, v{S}')
        I(f'v_mul_f32 v{S+1}, {hex(f2u(1.0/512))}, v{S+1}')
        I(f'v_fma_f32 v{S+1}, -v{S}, v{S}, v{S+1}')
        I(f'v_max_f32 v{S+1}, 0, v{S+1}')
        I(f'v_cvt_pk_bf16_f32 v{S}, v{S}, v{S}')
        I(f'v_cvt_pk_bf16_f32 v{S+1}, v{S+1}, v{S+1}')
        I(f'v_and_b32 v{S}, 0xffff0000, v{S}')
        I(f'v_and_b32 v{S+1}, 0xffff0000, v{S+1}')
        I(f'v_add_f32 v{S+1}, {hex(f2u(1e-5))}, v{S+1}')
        I(f'v_cvt_pk_bf16_f32 v{S+1}, v{S+1}, v{S+1}')
        I(f'v_and_b32 v{S+1}, 0xffff0000, v{S+1}')
        I(f'v_sqrt_f32 v{S+1}, v{S+1}')
        I(f'v_cvt_pk_bf16_f32 v{S+1}, v{S+1}, v{S+1}')
        I(f'v_and_b32 v{S+1}, 0xffff0000, v{S+1}')
        I(f'v_rcp_f32 v{S+1}, v{S+1}')
        I(f'v_mul_f32 v{S+2}, v{S}, v{cs0}')
        I(f'v_mul_f32 v{S+3}, v{S}, v{cs1}')
        n = max(len(g), len(st)); ig = ist = 0
        for stp in range(16):
            g[stp]()
            tgt = (stp + 1) * len(st) // 16
            while ist < tgt: st[ist](); ist += 1
        a.i(f'v_sub_f32 v{acc0}, v{acc0}, v{S+2}')
        a.i(f'v_sub_f32 v{acc1}, v{acc1}, v{S+3}')
        a.i(f'v_mul_f32 v{acc0}, v{acc0}, v{S+1}')
        a.i(f'v_mul_f32 v{acc1}, v{acc1}, v{S+1}')
        return acc0, acc1

    def taskQ(self, inst):
        a = self.a
        if inst < 2:
            a.i(f's_mov_b32 s{sT}, {inst * 1024}')
            self.x_acquire(SRD_X, f's{sT}', '')
        else:
            a.i(f's_mov_b32 s{sT}, {W_XS + (inst - 2) * 1024}')
            self.x_acquire(SRD_WS, f's{sT}', ' sc1')
        acc0, acc1 = self.gemv2_stats([ar(aWQ + j * 4) for j in range(16)], [ar(aWQ + (16 + j) * 4) for j in range(16)], vCSQ[0], vCSQ[1])
        a.i(f'v_mov_b32_dpp v{acc0}, v{acc1} quad_perm:[0,1,2,3] row_mask:0x2 bank_mask:0xf')
        a.i(f'v_mov_b32_dpp v{T}, v{acc0} quad_perm:[1,1,3,3] row_mask:0xf bank_mask:0xf')
        a.i(f'v_cvt_pk_bf16_f32 v{T}, v{acc0}, v{T}')
        a.i(f'v_lshlrev_b32 v{T+1}, 1, v{vLane}')
        a.i(f's_lshl_b32 s{sT}, s{sH}, 8')
        a.i(f's_lshl_b32 s{sT+1}, s{sWave}, 6')
        a.i(f's_add_u32 s{sT}, s{sT}, s{sT+1}')
        a.i(f's_add_u32 s{sT}, s{sT}, {W_Q + inst * 8192}')
        a.i('s_mov_b32 exec_lo, 0x55555555'); a.i('s_mov_b32 exec_hi, 0')
        a.i(f'buffer_store_dword v{T}, v{T+1}, {SRD_WS}, s{sT} offen sc1')
        a.i('s_mov_b64 exec, -1')

    def taskS1(self, inst):
        a = self.a
        ML = T
        lp = a.newlabel('s1'); ok = a.newlabel('s1ok')
        a.i(f's_lshl_b32 s{sT}, s{sH}, 8')
        a.i(f's_add_u32 s{sT}, s{sT}, {W_PML + inst * 8192}')
        a.i(f'v_lshlrev_b32 v{T+2}, 3, v{vLane}')
        a.i(f'v_cmp_gt_u32 vcc, {NP}, v{vLane}')
        a.i(f's_mov_b64 s[{sT+2}:{sT+3}], vcc')
        if self.c.S1_SLOW:
            lp0 = a.newlabel('s1w'); ok0 = a.newlabel('s1wok')
            a.i(f's_cmp_eq_u32 s{sWave}, 0')
            a.flush_hazards()
            a.i(f's_cbranch_scc0 {ok0}')
            a.label(lp0)
            a.i(f'v_mov_b32 v{ML}, -1')
            a.i(f's_mov_b64 exec, s[{sT+2}:{sT+3}]')
            a.i(f'buffer_load_dword v{ML}, v{T+2}, {SRD_WS}, s{sT} offen sc1')
            a.i('s_mov_b64 exec, -1')
            a.i('s_waitcnt vmcnt(0)'); a.vm = []
            a.i(f'v_cmp_ne_u32 vcc, -1, v{ML}')
            a.i(f's_bcnt1_i32_b64 s{sT+4}, vcc')
            a.i(f's_cmp_ge_u32 s{sT+4}, {self.c.S1_FIRST}')
            a.i(f's_cbranch_scc1 {ok0}')
            a.i(f's_sleep {self.c.S1_SLOW}')
            self.spin_tail(lp0)
            a.label(ok0)
            a.flush_hazards()
            a.i('s_barrier')
        a.flush_hazards()
        a.label(lp)
        a.i(f'v_mov_b32 v{ML}, 0'); a.i(f'v_mov_b32 v{ML+1}, 0')
        a.i(f's_mov_b64 exec, s[{sT+2}:{sT+3}]')
        a.i(f'buffer_load_dwordx2 {vr(ML, 2)}, v{T+2}, {SRD_WS}, s{sT} offen sc1')
        a.i('s_mov_b64 exec, -1')
        a.i('s_waitcnt vmcnt(0)'); a.vm = []
        self.bad_scc([ML, ML + 1], T + 3)
        a.i(f's_cbranch_scc0 {ok}')
        a.i(f's_sleep {self.c.SLEEP}')
        self.spin_tail(lp)
        a.label(ok)
        a.flush_hazards()
        a.i(f's_mul_i32 s{sT}, s{sH}, {NP}')
        a.i(f's_mul_i32 s{sT+1}, s{sWave}, 7')
        a.i(f's_add_u32 s{sT}, s{sT}, s{sT+1}')
        a.i(f's_lshl_b32 s{sT}, s{sT}, 9')
        a.i(f's_add_u32 s{sT}, s{sT}, {W_PO + inst * 32 * NP * 512}')
        a.i(f'v_lshlrev_b32 v{T+2}, 3, v{vLane}')
        O = T + 8
        lp2 = a.newlabel('s1g'); ok2 = a.newlabel('s1gok')
        a.label(lp2)
        for k in range(7):
            a.i(f'buffer_load_dwordx2 {vr(O + 2*k, 2)}, v{T+2}, {SRD_WS}, s{sT} offen offset:{k*512} sc1')
        a.i(f'v_mov_b32 v{T+3}, 0xff800000')
        a.i(f'v_cndmask_b32 v{T+4}, v{T+3}, v{ML}, s[{sT+2}:{sT+3}]')
        a.i(f'v_mov_b32 v{T+5}, v{T+4}')
        wave_reduce_multi(a, 'v_max_f32', [T + 5])
        a.i(f'v_readlane_b32 s{sT+4}, v{T+5}, 63')
        a.i(f'v_subrev_f32 v{T+4}, s{sT+4}, v{T+4}')
        a.i(f'v_exp_f32 v{T+4}, v{T+4}')
        a.i(f'v_mul_f32 v{T+5}, v{T+4}, v{ML+1}')
        wave_reduce_multi(a, 'v_add_f32', [T + 5])
        a.i(f'v_readlane_b32 s{sT+4}, v{T+5}, 63')
        a.i(f'v_mov_b32 v{T+5}, s{sT+4}')
        a.i(f'v_rcp_f32 v{T+5}, v{T+5}')
        a.i(f'v_mul_f32 v{T+4}, v{T+4}, v{T+5}')
        a.i(f's_mul_i32 s{sT+5}, s{sWave}, 7')
        for k in range(7):
            a.i(f's_add_u32 s{sT+6}, s{sT+5}, {k}')
            a.i(f'v_readlane_b32 s{sT+8+k}, v{T+4}, s{sT+6}')
        a.i('s_waitcnt vmcnt(0)'); a.vm = []
        self.bad_scc(range(O, O + 14), T + 6)
        a.i(f's_cbranch_scc0 {ok2}')
        self.spin_tail(lp2)
        a.label(ok2)
        a.flush_hazards()
        a.i(f'v_mul_f32 v{T+6}, s{sT+8}, v{O}')
        a.i(f'v_mul_f32 v{T+7}, s{sT+8}, v{O+1}')
        for k in range(1, 7):
            a.i(f'v_fmac_f32 v{T+6}, s{sT+8+k}, v{O+2*k}')
            a.i(f'v_fmac_f32 v{T+7}, s{sT+8+k}, v{O+2*k+1}')
        a.i(f's_lshl_b32 s{sT}, s{sWave}, 9')
        a.i(f's_add_u32 s{sT}, s{sT}, {L_OB + (inst & 1) * 2048}')
        a.i(f'v_add_u32 v{T+3}, s{sT}, v{T+2}')
        a.i(f'ds_write_b64 v{T+3}, {vr(T+6, 2)}')
        a.wait_lg_all()
        a.i('s_barrier')
        a.i(f'v_add_u32 v{T+3}, {L_OB + (inst & 1) * 2048}, v{T+2}')
        for k in range(4): a.i(f'ds_read_b64 {vr(T+8+2*k, 2)}, v{T+3} offset:{k*512}')
        a.wait_lg_all()
        a.i(f'v_add_f32 v{T+8}, v{T+8}, v{T+10}')
        a.i(f'v_add_f32 v{T+9}, v{T+9}, v{T+11}')
        a.i(f'v_add_f32 v{T+12}, v{T+12}, v{T+14}')
        a.i(f'v_add_f32 v{T+13}, v{T+13}, v{T+15}')
        a.i(f'v_add_f32 v{T+8}, v{T+8}, v{T+12}')
        a.i(f'v_add_f32 v{T+9}, v{T+9}, v{T+13}')
        a.i(f'v_cvt_pk_bf16_f32 v{T+8}, v{T+8}, v{T+9}')
        a.i(f's_lshl_b32 s{sT}, s{sWave}, 8')
        a.i(f's_add_u32 s{sT}, s{sT}, {L_OH}')
        a.i(f'v_add_u32 v{T+3}, s{sT}, v{vL4}')
        a.i(f'ds_write_b32 v{T+3}, v{T+8}')
        a.i(f'v_lshlrev_b32 v{T+3}, 4, v{vG}')
        a.i(f'v_add_u32 v{T+3}, s{sT}, v{T+3}')
        A = T + 8
        for j in range(4): a.i(f'ds_read_b128 {vr(A + 4*j)}, v{T+3} offset:{j*64}')
        a.wait_lg_all()
        accs = [T + 24, T + 28, T + 32, T + 36]
        Y0, Y1 = T + 40, T + 41
        for cc in range(8):
            ac = accs[cc % 4]
            for j in range(4):
                c = '0' if j == 0 else vr(ac)
                a.i(f'v_mfma_f32_16x16x32_bf16 {vr(ac)}, {vr(A + 4*j)}, {ar(aWO + (cc*4 + j)*4)}, {c}')
            if cc >= 2:
                p = cc - 2
                a.i(f'v_mov_b32_dpp v{Y0 if p < 4 else Y1}, v{accs[p % 4]} quad_perm:[0,1,2,3] row_mask:{hex(1 << (p % 4))} bank_mask:0xf')
        for p in (6, 7):
            a.i(f'v_mov_b32_dpp v{Y1}, v{accs[p % 4]} quad_perm:[0,1,2,3] row_mask:{hex(1 << (p % 4))} bank_mask:0xf')
        a.i(f'v_lshlrev_b32 v{T+3}, 11, v{vG}')
        a.i(f'v_lshl_add_u32 v{T+3}, v{vN}, 2, v{T+3}')
        a.i(f's_lshl_b32 s{sT}, s{sWave}, 14')
        a.i(f's_lshl_b32 s{sT+1}, s{sH}, 6')
        a.i(f's_add_u32 s{sT}, s{sT}, s{sT+1}')
        a.i(f's_add_u32 s{sT}, s{sT}, {W_Y + inst * 65536}')
        a.i(f'buffer_store_dword v{Y0}, v{T+3}, {SRD_WS}, s{sT} offen sc1')
        a.i(f's_add_u32 s{sT}, s{sT}, 8192')
        a.i(f'buffer_store_dword v{Y1}, v{T+3}, {SRD_WS}, s{sT} offen sc1')

    def reduce16(self, inst, src_base, nprod, xsrc, dst):
        a = self.a
        lp = a.newlabel('r16'); ok = a.newlabel('r16ok')
        a.i(f's_lshl_b32 s{sT}, s{sH}, 11')
        a.i(f's_add_u32 s{sT}, s{sT}, {src_base + inst * 65536}')
        srd, xo, sc = xsrc
        a.i(f's_lshl_b32 s{sT+1}, s{sH}, 5')
        a.i(f's_add_u32 s{sT+1}, s{sT+1}, {xo}')
        a.i(f'v_and_b32 v{T+12}, 3, v{vLane}')
        a.i(f'v_lshlrev_b32 v{T+12}, 3, v{T+12}')
        if nprod < 32:
            a.i(f'v_cmp_gt_u32 vcc, {(nprod - 16) * 4}, v{vLane}')
            a.i(f's_mov_b64 s[{sT+2}:{sT+3}], vcc')
        a.flush_hazards()
        a.label(lp)
        a.i(f'buffer_load_dwordx4 {vr(T)}, v{vL16}, {SRD_WS}, s{sT} offen sc1')
        if nprod < 32:
            for i in range(4): a.i(f'v_mov_b32 v{T+4+i}, 0')
            a.i(f's_mov_b64 exec, s[{sT+2}:{sT+3}]')
        a.i(f'buffer_load_dwordx4 {vr(T+4)}, v{vL16}, {SRD_WS}, s{sT} offen offset:1024 sc1')
        a.i('s_mov_b64 exec, -1')
        a.i(f'buffer_load_dwordx2 {vr(T+8, 2)}, v{T+12}, {srd}, s{sT+1} offen{sc}')
        a.i('s_waitcnt vmcnt(0)'); a.vm = []
        self.bad_scc(range(T, T + 10) if sc else range(T, T + 8), T + 13)
        a.i(f's_cbranch_scc0 {ok}')
        a.i(f's_sleep {self.c.SLEEP}')
        self.spin_tail(lp)
        a.label(ok)
        a.flush_hazards()
        for i in range(4): a.i(f'v_add_f32 v{T+i}, v{T+i}, v{T+4+i}')
        for cdp in ('row_ror:4', 'row_ror:8'):
            for i in range(4): a.i(f'v_add_f32_dpp v{T+i}, v{T+i}, v{T+i} {cdp} row_mask:0xf bank_mask:0xf')
        for i in range(4): a.i(f'v_mov_b32 v{T+4+i}, v{T+i}')
        for i in range(4): a.i(f'v_permlane32_swap_b32 v{T+i}, v{T+4+i}')
        for i in range(4): a.i(f'v_add_f32 v{T+i}, v{T+i}, v{T+4+i}')
        for i in range(4): a.i(f'v_mov_b32 v{T+4+i}, v{T+i}')
        for i in range(4): a.i(f'v_permlane16_swap_b32 v{T+i}, v{T+4+i}')
        for i in range(4): a.i(f'v_add_f32 v{T+i}, v{T+i}, v{T+4+i}')
        a.i(f'v_lshlrev_b32 v{T+4}, 16, v{T+8}')
        a.i(f'v_and_b32 v{T+5}, 0xffff0000, v{T+8}')
        a.i(f'v_lshlrev_b32 v{T+6}, 16, v{T+9}')
        a.i(f'v_and_b32 v{T+7}, 0xffff0000, v{T+9}')
        for i in range(4): rbf(a, T + i, T + i)
        for i in range(4): a.i(f'v_add_f32 v{T+i}, v{T+i}, v{T+4+i}')
        a.i(f'v_cvt_pk_bf16_f32 v{T+8}, v{T}, v{T+1}')
        a.i(f'v_cvt_pk_bf16_f32 v{T+9}, v{T+2}, v{T+3}')
        dsrd, do, dsc = dst
        a.i(f's_lshl_b32 s{sT}, s{sH}, 5')
        a.i(f's_add_u32 s{sT}, s{sT}, {do}')
        a.i('s_mov_b64 exec, 0xf')
        a.i(f'buffer_store_dwordx2 {vr(T+8, 2)}, v{T+12}, {dsrd}, s{sT} offen{dsc}')
        a.i('s_mov_b64 exec, -1')

    def xs_src(self, inst):
        return (SRD_X, inst * 1024, '') if inst < 2 else (SRD_WS, W_XS + (inst - 2) * 1024, ' sc1')

    def taskS2(self, inst):
        self.reduce16(inst, W_Y, 32, self.xs_src(inst), (SRD_WS, W_X1 + inst * 1024, ' sc1'))
    def taskS4a(self, inst):
        dst = (SRD_WS, W_XS + inst * 1024, ' sc1') if inst < 2 else (SRD_OUT, (inst & 1) * 1024, '')
        self.reduce16(inst, W_Z, 22, (SRD_WS, W_X1 + inst * 1024, ' sc1'), dst)

    def taskS3(self, inst):
        a = self.a
        a.i(f's_mov_b32 s{sT}, {W_X1 + inst * 1024}')
        self.x_acquire(SRD_WS, f's{sT}', ' sc1')
        g, u = self.gemv2_stats([vr(vWG + 4*j) for j in range(16)], [vr(vWU + 4*j) for j in range(16)], vCSG, vCSU)
        rbf(a, g, g); rbf(a, u, u)
        a.i(f'v_mul_f32 v{T}, v{g}, v{u}')
        a.i(f'v_cvt_pk_bf16_f32 v{T}, v{T}, v{T}')
        a.i(f's_cmp_eq_u32 s{sFv}, 0')
        a.i(f's_cselect_b32 s{sT+24-24}, 0, -1')
        a.i(f'v_and_b32 v{T+1}, 3, v{vLane}')
        a.i(f'v_cmp_eq_u32 vcc, v{T+1}, v{vG}')
        a.i(f'v_cndmask_b32 v{T+1}, 0, -1, vcc')
        a.i(f'v_and_b32 v{T+1}, s{sT}, v{T+1}')
        A0, A1 = T + 16, T + 20
        for half, A in ((0, A0), (1, A1)):
            for f in range(8): a.i(f'v_readlane_b32 s{sT+2+f}, v{T}, {8*half + f}')
            for r in range(4): a.i(f's_pack_ll_b32_b16 s{sT+10+r}, s{sT+2+2*r}, s{sT+3+2*r}')
            for r in range(4): a.i(f'v_and_b32 v{A+r}, s{sT+10+r}, v{T+1}')
        a.i(f's_lshl_b32 s{sT}, s{sWave}, 11')
        a.i(f's_add_u32 s{sT}, s{sT}, {L_ZB}')
        a.i(f'v_lshlrev_b32 v{T+2}, 4, v{vN}')
        a.i(f'v_add_u32 v{T+2}, s{sT}, v{T+2}')
        accs = [T + 24, T + 28, T + 32, T + 36]
        pend = []
        for cc in range(8):
            ac = accs[cc % 4]
            a.i(f'v_mfma_f32_16x16x32_bf16 {vr(ac)}, {vr(A0)}, {vr(vWD + (cc*2)*4)}, 0')
            a.i(f'v_mfma_f32_16x16x32_bf16 {vr(ac)}, {vr(A1)}, {vr(vWD + (cc*2+1)*4)}, {vr(ac)}')
            if cc >= 2:
                p = cc - 2
                a.i('s_mov_b64 exec, 0xffff')
                a.i(f'ds_write_b128 v{T+2}, {vr(accs[p % 4])} offset:{p*256}')
                a.i('s_mov_b64 exec, -1')
        for p in (6, 7):
            a.i('s_mov_b64 exec, 0xffff')
            a.i(f'ds_write_b128 v{T+2}, {vr(accs[p % 4])} offset:{p*256}')
            a.i('s_mov_b64 exec, -1')
        a.wait_lg_all()
        a.i('s_barrier')
        a.i(f's_lshl_b32 s{sT}, s{sWave}, 9')
        a.i(f's_add_u32 s{sT}, s{sT}, {L_ZB}')
        a.i(f'v_lshlrev_b32 v{T+2}, 3, v{vLane}')
        a.i(f'v_add_u32 v{T+3}, s{sT}, v{T+2}')
        for k in range(4): a.i(f'ds_read_b64 {vr(T+8+2*k, 2)}, v{T+3} offset:{k*2048}')
        a.wait_lg_all()
        a.i(f'v_add_f32 v{T+8}, v{T+8}, v{T+10}')
        a.i(f'v_add_f32 v{T+9}, v{T+9}, v{T+11}')
        a.i(f'v_add_f32 v{T+12}, v{T+12}, v{T+14}')
        a.i(f'v_add_f32 v{T+13}, v{T+13}, v{T+15}')
        a.i(f'v_add_f32 v{T+8}, v{T+8}, v{T+12}')
        a.i(f'v_add_f32 v{T+9}, v{T+9}, v{T+13}')
        a.i(f'v_lshrrev_b32 v{T+2}, 3, v{vLane}')
        a.i(f'v_lshlrev_b32 v{T+2}, 11, v{T+2}')
        a.i(f'v_and_b32 v{T+3}, 7, v{vLane}')
        a.i(f'v_lshl_add_u32 v{T+2}, v{T+3}, 3, v{T+2}')
        a.i(f's_lshl_b32 s{sT}, s{sWave}, 14')
        a.i(f's_lshl_b32 s{sT+1}, s{sH}, 6')
        a.i(f's_add_u32 s{sT}, s{sT}, s{sT+1}')
        a.i(f's_add_u32 s{sT}, s{sT}, {W_Z + inst * 65536}')
        a.i(f'buffer_store_dwordx2 {vr(T+8, 2)}, v{T+2}, {SRD_WS}, s{sT} offen sc1')
        a.i('s_barrier')

    def run(self):
        a = self.a; c = self.c
        self.init()
        for inst in range(4):
            self.taskS1(inst)
            if c.timing: self.stamp()
            sk = a.newlabel('w0');
            a.i(f's_cmp_eq_u32 s{sWave}, 0'); a.flush_hazards(); a.i(f's_cbranch_scc0 {sk}')
            self.taskS2(inst)
            a.flush_hazards(); a.label(sk)
            sk3 = a.newlabel('f3')
            a.i(f's_cmp_lt_u32 s{sH}, 22'); a.flush_hazards(); a.i(f's_cbranch_scc0 {sk3}')
            self.taskS3(inst)
            a.flush_hazards(); a.label(sk3)
            sk = a.newlabel('w1')
            a.i(f's_cmp_eq_u32 s{sWave}, 1'); a.flush_hazards(); a.i(f's_cbranch_scc0 {sk}')
            self.taskS4a(inst)
            a.flush_hazards(); a.label(sk)
            if inst < 2:
                self.taskQ(inst + 2)
            if c.timing and inst in (0, 3): self.stamp()
```

```python
from asmlib import Asm
from common import *

vKoff, vVoff, vV8, vL16, vLdsRet = 0, 1, 2, 3, 4
vBP = 5
vMask = [6, 7, 8, 9]
vL = {'X': 10, 'Y': 11}
vQ = 12
vP = {'X': 20, 'Y': 26}
vO = {'X': 32, 'Y': 36}
T = 40
vACC = [40, 44]
vAT = [48, 52]
vLT = [56, 56]
vRING = 60
NEGINF = 0xff800000

L_QG = 0
L_RET = 2048

def lane(a, r):
    a.i(f'v_lshrrev_b32 v{r}, 4, v{vL16}')

class Load:
    def __init__(self, emit, after=None, name='', w=1.0):
        self.emit = emit; self.after = after; self.name = name; self.vid = None; self.idx = None; self.w = w
class Comp:
    def __init__(self, emit, needs=(), name=''):
        self.emit = emit; self.needs = list(needs); self.name = name; self.done = False

HALF_B = [('F', 0), ('F', 1), ('F', 2), ('F', 3), ('H', 0)]
HALF_A = [('F', 4), ('F', 5), ('F', 6), ('F', 7), ('H', 1), ('P',)]

def k_units(tile):
    n = {'F': 8, 'H': 4, 'P': 2}[tile[0]]
    return [(g, jj) for g in range(n) for jj in range(2)]
def v_units(tile):
    return list(range({'F': 16, 'H': 8, 'P': 4}[tile[0]]))

class Stream:
    def __init__(self, cfg, a):
        self.c = cfg
        self.a = a
        self.loads = []; self.comps = []
        self.pend = []
        self.accsel = 0; self.atsel = 0; self.ltsel = 0
        self.ring = 0
        self.ring_reader = [None] * cfg.NRING
        self.vRET = vRING + 4 * cfg.NRING
        self.NVREG = (256 - self.vRET) // 4
        self.KX = 72 - 64
        self.NV_REG = self.NVREG - self.KX
        self.NV_LDS = 72 - self.NV_REG
        assert L_RET + 4 * self.NV_LDS * 1024 <= 163840, (self.NV_LDS,)
        self.k_reader = [None] * 72
        self.v_reader = [None] * 72
        self.curK = None; self.curV = None
        self.marks = {}
        self.nstamp = 0
        self.pro_loads = []
        self.uid = 0

    def set_off(self, which, b, tile, const):
        a = self.a
        base = sBp[b] if tile[0] == 'P' else sB[b]
        key = (base, const)
        reg = sOffK if which == 'K' else sOffV
        cur = self.curK if which == 'K' else self.curV
        if cur != key:
            if const == 0: a.i(f's_mov_b32 s{reg}, s{base}')
            else: a.i(f's_add_u32 s{reg}, s{base}, {const}')
            if which == 'K': self.curK = key
            else: self.curV = key
        return f's{reg}'

    def add_load(self, L): self.loads.append(L); return L
    def add_comp(self, C): self.comps.append(C); return C
    def ring_slot(self):
        s = self.ring % self.c.NRING; self.ring += 1
        return s

    def k_addr(self, tile, g, jj):
        if tile[0] == 'F': return tile[1] * 65536 + (g >> 1) * 4096, (g & 1) * 2048 + jj * 128
        if tile[0] == 'H': return 8 * 65536 + tile[1] * 8192 + (g >> 1) * 4096, (g & 1) * 2048 + jj * 128
        return 0, g * 2048 + jj * 128
    def v_addr(self, tile, t):
        if tile[0] == 'F': return tile[1] * 65536, t * 256, vVoff
        if tile[0] == 'H': return 8 * 65536 + tile[1] * 8192, t * 256, vV8
        return 0, t * 1024, vL16
    def k_place(self, tile, g):
        if tile[0] == 'F': return g >> 1, g & 1
        if tile[0] == 'H': return g, 0
        return 0, g

    def mk_kload(self, b, tile, g, jj, dst, after):
        def emit():
            const, imm = self.k_addr(tile, g, jj)
            so = self.set_off('K', b, tile, const)
            return self.a.i(f'buffer_load_dwordx4 {dst}, v{vKoff}, {SRD_K}, {so} offen offset:{imm}{self.c.pol}')
        return self.add_load(Load(emit, after, f'K b{b} {tile} g{g} j{jj}'))
    def mk_vload(self, b, tile, t, dst, after):
        def emit():
            const, imm, vo = self.v_addr(tile, t)
            so = self.set_off('V', b, tile, const)
            return self.a.i(f'buffer_load_dwordx4 {dst}, v{vo}, {SRD_V}, {so} offen offset:{imm}{self.c.pol}')
        return self.add_load(Load(emit, after, f'V b{b} {tile} u{t}'))
    def mk_vload_lds(self, b, tile, t, slot, after):
        def emit():
            const, imm, vo = self.v_addr(tile, t)
            so = self.set_off('V', b, tile, const)
            self.a.i(f's_add_u32 m0, s{sLdsRet}, {slot * 1024 - imm + 4096}')
            return self.a.i(f'buffer_load_dwordx4 v{vo}, {SRD_V}, {so} offen offset:{imm}{self.c.pol} lds')
        return self.add_load(Load(emit, after, f'VL b{b} {tile} u{t}'))

    def flush_adds(self, acc=None):
        a = self.a
        keep = []
        for (ac, S, row, hh) in self.pend:
            if acc is None or ac == acc:
                if hh == 0:
                    a.i(f'v_add_f32_dpp v{S}, v{ac+1}, v{ac} row_ror:8 row_mask:{hex(1 << row)} bank_mask:0x3')
                else:
                    a.i(f'v_add_f32_dpp v{S}, v{ac}, v{ac+1} row_ror:8 row_mask:{hex(1 << row)} bank_mask:0xc')
            else:
                keep.append((ac, S, row, hh))
        self.pend = keep

    def mk_qk(self, B0, B1, S, tile, g, needs):
        def emit():
            a = self.a
            if g == 0 and tile[0] in 'HP':
                a.i(f'v_mov_b32 v{S}, {hex(NEGINF)}')
            ac = vACC[self.accsel]; self.accsel ^= 1
            self.flush_adds(ac)
            a.i(f'v_mfma_f32_16x16x32_bf16 {vr(ac)}, {vr(vQ)}, {B0}, 0')
            a.i(f'v_mfma_f32_16x16x32_bf16 {vr(ac)}, {vr(vQ+4)}, {B1}, {vr(ac)}')
            row, hh = self.k_place(tile, g)
            self.pend.append((ac, S, row, hh))
        return self.add_comp(Comp(emit, needs, f'QK {tile} g{g}'))

    def pv_core(self, B, P, t, O, mid=None):
        a = self.a
        at = vAT[self.atsel]; self.atsel ^= 1
        for r in range(4):
            a.i(f'v_and_b32_dpp v{at+r}, v{P}, v{vMask[r]} row_newbcast:{t} row_mask:0xf bank_mask:0xf')
        if mid: mid()
        a.i(f'v_mfma_f32_16x16x32_bf16 {vr(O)}, {vr(at)}, {B}, {vr(O)}')
    def mk_pv(self, B, P, t, O, needs):
        return self.add_comp(Comp(lambda: self.pv_core(B, P, t, O), needs, f'PV t{t}'))
    def mk_pv_lds(self, slot, P, t, O, needs):
        def emit():
            a = self.a
            lt = vLT[self.ltsel]; self.ltsel ^= 1
            lid = a.i(f'ds_read_b128 {vr(lt)}, v{vLdsRet} offset:{slot * 1024}')
            self.pv_core(vr(lt), P, t, O, mid=lambda: a.wait_lg(lid))
        return self.add_comp(Comp(emit, needs, f'PVL t{t}'))

    def mk_softmax(self, Pset, Iset, first, tiles):
        n = len(tiles)
        def emit():
            a = self.a
            self.flush_adds()
            S = vP[Pset]; O = vO[Iset]; Lr = vL[Iset]; m = sM[Iset]
            t0, t1, t2, t3 = T, T+1, T+2, T+3
            if tiles[-1][0] == 'P':
                k = n - 1
                lid = a.i(f'ds_bpermute_b32 v{S+k}, v{vBP}, v{S+k}')
                a.wait_lg(lid)
            for i in range(n): a.i(f'v_mul_f32 v{S+i}, {hex(f2u(SCALE))}, v{S+i}')
            a.i(f'v_max3_f32 v{t0}, v{S}, v{S+1}, v{S+2}')
            a.i(f'v_max3_f32 v{t0}, v{t0}, v{S+3}, v{S+4}')
            if n == 6: a.i(f'v_max_f32 v{t0}, v{t0}, v{S+5}')
            if not first: a.i(f'v_max_f32 v{t0}, s{m}, v{t0}')
            wave_reduce_multi(a, 'v_max_f32', [t0])
            a.i(f'v_readlane_b32 s{sT}, v{t0}, 63')
            if not first:
                a.i(f'v_mov_b32 v{t1}, s{sT}')
                a.i(f'v_sub_f32 v{t1}, s{m}, v{t1}')
                a.i(f'v_exp_f32 v{t1}, v{t1}')
                for i in range(4): a.i(f'v_mul_f32 v{O+i}, v{O+i}, v{t1}')
                a.i(f'v_mul_f32 v{Lr}, v{Lr}, v{t1}')
            else:
                for i in range(4): a.i(f'v_mov_b32 v{O+i}, 0')
            a.i(f's_mov_b32 s{m}, s{sT}')
            for i in range(n): a.i(f'v_subrev_f32 v{S+i}, s{m}, v{S+i}')
            for i in range(n): a.i(f'v_exp_f32 v{S+i}, v{S+i}')
            a.i(f'v_add_f32 v{t2}, v{S}, v{S+1}')
            a.i(f'v_add_f32 v{t3}, v{S+2}, v{S+3}')
            a.i(f'v_add_f32 v{t2}, v{t2}, v{S+4}')
            if n == 6: a.i(f'v_add_f32 v{t3}, v{t3}, v{S+5}')
            if first:
                a.i(f'v_add_f32 v{Lr}, v{t2}, v{t3}')
            else:
                a.i(f'v_add_f32 v{t2}, v{t2}, v{t3}')
                a.i(f'v_add_f32 v{Lr}, v{Lr}, v{t2}')
            for i in range(n): a.i(f'v_cvt_pk_bf16_f32 v{S+i}, v{S+i}, v{S+i}')
        return self.add_comp(Comp(emit, (), f'softmax {Pset} {Iset} {first}'))

    def cond_begin(self):
        self.a.flush_hazards()
        self._snap = (list(self.a.vm), list(self.a.lg))
    def cond_end(self):
        self.a.flush_hazards()
        self.a.vm, self.a.lg = self._snap

    def mk_publish(self, inst):
        Iset = 'X' if (inst & 1) == 0 else 'Y'
        def emit():
            a = self.a
            O = vO[Iset]; Lr = vL[Iset]; m = sM[Iset]
            t = T
            wave_reduce_multi(a, 'v_add_f32', [Lr])
            lane(a, t+5)
            a.i(f'v_and_b32 v{t}, 15, v{t+5}')
            a.i(f'v_lshlrev_b32 v{t}, 5, v{t}')
            a.i(f'v_lshrrev_b32 v{t+1}, 4, v{t+5}')
            a.i(f'v_lshl_add_u32 v{t}, v{t+1}, 4, v{t}')
            a.i(f's_mul_i32 s{sT}, s{sH}, {NP}')
            a.i(f's_add_u32 s{sT}, s{sT}, s{sPidx}')
            a.i(f's_lshl_b32 s{sT}, s{sT}, 9')
            a.i(f's_add_u32 s{sT}, s{sT}, {W_PO + inst * 32 * NP * 512}')
            a.i(f's_mov_b32 exec_hi, 0')
            a.i(f'buffer_store_dwordx4 {vr(O)}, v{t}, {SRD_WS}, s{sT} offen sc1')
            a.i(f's_lshl_b32 s{sT}, s{sH}, 8')
            a.i(f's_lshl_b32 s{sT+1}, s{sPidx}, 3')
            a.i(f's_add_u32 s{sT}, s{sT}, s{sT+1}')
            a.i(f's_add_u32 s{sT}, s{sT}, {W_PML + inst * 8192}')
            a.i(f's_mov_b64 exec, -1')
            a.i(f'v_mov_b32 v{t+2}, s{m}')
            a.i(f'v_mov_b32 v{t+3}, v{Lr}')
            a.i(f'v_mov_b32 v{t+4}, 0')
            a.i(f's_mov_b32 exec_lo, 0')
            a.i(f's_mov_b32 exec_hi, 0x80000000')
            a.i(f'buffer_store_dwordx2 v[{t+2}:{t+3}], v{t+4}, {SRD_WS}, s{sT} offen sc1')
            a.i(f's_mov_b64 exec, -1')
        return self.add_comp(Comp(emit, (), f'publish {inst}'))

    def mk_qgather(self, inst):
        def emit():
            a = self.a
            a.i(f's_lshl_b32 s{sT}, s{sH}, 8')
            a.i(f's_add_u32 s{sT}, s{sT}, {W_Q + inst * 8192}')
            a.i(f's_add_u32 m0, s{sQG}, {(inst & 1) * 256}')
            a.i(f'v_lshrrev_b32 v{T+19}, 2, v{vL16}')
            return a.i(f'buffer_load_dword v{T+19}, {SRD_WS}, s{sT} offen sc1 lds')
        return self.add_load(Load(emit, None, f'QG {inst}'))
    def q_read(self, inst):
        a = self.a; t = T
        lane(a, t+1)
        a.i(f'v_and_b32 v{t}, 1, v{t+1}')
        a.i(f'v_lshlrev_b32 v{t}, 6, v{t}')
        a.i(f'v_lshrrev_b32 v{t+1}, 4, v{t+1}')
        a.i(f'v_lshl_add_u32 v{t}, v{t+1}, 4, v{t}')
        a.i(f'v_add_u32 v{t}, s{sQG}, v{t}')
        a.i(f'ds_read_b128 {vr(vQ)}, v{t} offset:{(inst & 1) * 256}')
        lid = a.i(f'ds_read_b128 {vr(vQ+4)}, v{t} offset:{(inst & 1) * 256 + 128}')
        a.wait_lg(lid)
    def q_bad(self):
        a = self.a; t = T + 2
        a.i(f'v_max3_u32 v{t}, v{vQ}, v{vQ+1}, v{vQ+2}')
        a.i(f'v_max3_u32 v{t}, v{t}, v{vQ+3}, v{vQ+4}')
        a.i(f'v_max3_u32 v{t}, v{t}, v{vQ+5}, v{vQ+6}')
        a.i(f'v_max_u32 v{t}, v{t}, v{vQ+7}')
        a.i(f'v_cmp_eq_u32 vcc, -1, v{t}')
        a.i(f's_cmp_lg_u64 vcc, 0')
    def mk_acquire(self, inst, gather):
        def emit():
            a = self.a
            self.flush_adds()
            self.q_read(inst)
            if gather is not None and not self.c.test_attn:
                ok = a.newlabel('qok'); lp = a.newlabel('qretry')
                self.q_bad()
                self.cond_begin()
                a.i(f's_cbranch_scc0 {ok}')
                a.label(lp)
                a.i('s_sleep 2')
                a.i(f's_lshl_b32 s{sT}, s{sH}, 8')
                a.i(f's_add_u32 s{sT}, s{sT}, {W_Q + inst * 8192}')
                a.i(f's_add_u32 m0, s{sQG}, {(inst & 1) * 256}')
                a.i(f'v_lshrrev_b32 v{T+19}, 2, v{vL16}')
                a.i(f'buffer_load_dword v{T+19}, {SRD_WS}, s{sT} offen sc1 lds')
                a.i('s_waitcnt vmcnt(0)')
                self.q_read(inst)
                self.q_bad()
                a.i(f's_cbranch_scc0 {ok}')
                a.i(f's_sub_u32 s{sSpin}, s{sSpin}, 1')
                a.i(f's_cmp_gt_i32 s{sSpin}, 0')
                a.i(f's_cbranch_scc1 {lp}')
                self.cond_end()
                a.label(ok)
        return self.add_comp(Comp(emit, [gather] if gather else [], f'acquire {inst}'))

    def mk_b1(self):
        def emit():
            a = self.a
            a.i('s_barrier')
            skip = a.newlabel('b1')
            a.i(f's_cmp_eq_u32 s{sWave}, 0')
            self.cond_begin()
            a.i(f's_cbranch_scc0 {skip}')
            a.i(f'v_mov_b32 v{T}, 0')
            a.i(f'v_mov_b32 v{T+1}, 1')
            a.i('s_mov_b64 exec, 1')
            a.i(f'global_atomic_add v{T}, v{T+1}, s[{P_DBG}:{P_DBG+1}]')
            a.i('s_mov_b64 exec, -1')
            self.cond_end()
            a.label(skip)
        return self.add_comp(Comp(emit, self.pro_loads, 'B1'))
    def mk_clrload(self):
        def emit():
            a = self.a
            a.i(f'v_mov_b32 v{T+18}, 0')
            return a.i(f'global_load_dword v{T+19}, v{T+18}, s[{P_DBG}:{P_DBG+1}] sc1')
        return self.add_load(Load(emit, None, 'CLR'))
    def mk_clrcheck(self, cl):
        def emit():
            a = self.a
            ok = a.newlabel('clok'); lp = a.newlabel('clp')
            a.i(f'v_readfirstlane_b32 s{sT}, v{T+19}')
            a.i(f's_cmp_eq_u32 s{sT}, 224')
            self.cond_begin()
            a.i(f's_cbranch_scc1 {ok}')
            a.label(lp)
            a.i(f'global_load_dword v{T+19}, v{T+18}, s[{P_DBG}:{P_DBG+1}] sc1')
            a.i('s_waitcnt vmcnt(0)')
            a.i(f'v_readfirstlane_b32 s{sT}, v{T+19}')
            a.i(f's_cmp_eq_u32 s{sT}, 224')
            a.i(f's_cbranch_scc1 {ok}')
            a.i(f's_sub_u32 s{sSpin}, s{sSpin}, 1')
            a.i(f's_cmp_gt_i32 s{sSpin}, 0')
            a.i(f's_cbranch_scc1 {lp}')
            self.cond_end()
            a.label(ok)
        return self.add_comp(Comp(emit, [cl], 'clrcheck'))

    def kslot(self, u):
        return ar(4 * u) if u < 64 else vr(self.vRET + 4 * (u - 64))
    def stream_k(self, inst, Pset, tiles):
        b = inst & 1
        for ti, tile in enumerate(tiles):
            ku = k_units(tile)
            for gi in range(0, len(ku), 2):
                g = ku[gi][0]
                ls = []; regs = []
                for jj in range(2):
                    s = self.ring_slot()
                    ls.append(self.mk_kload(b, tile, g, jj, vr(vRING + 4*s), self.ring_reader[s])); regs.append(s)
                C = self.mk_qk(vr(vRING + 4*regs[0]), vr(vRING + 4*regs[1]), vP[Pset] + ti, tile, g, ls)
                for s in regs: self.ring_reader[s] = C
    def stream_v(self, inst, Pset, tiles):
        b = inst & 1
        Iset = 'X' if b == 0 else 'Y'
        for ti, tile in enumerate(tiles):
            for t in v_units(tile):
                s = self.ring_slot()
                L = self.mk_vload(b, tile, t, vr(vRING + 4*s), self.ring_reader[s])
                self.ring_reader[s] = self.mk_pv(vr(vRING + 4*s), vP[Pset] + ti, t, vO[Iset], [L])
    def b_kunits(self):
        out = []
        for ti, tile in enumerate(HALF_B):
            for (g, jj) in k_units(tile): out.append((ti, tile, g, jj))
        assert len(out) == 72
        return out
    def b_vunits(self):
        out = []
        for ti, tile in enumerate(HALF_B):
            for t in v_units(tile): out.append((ti, tile, t))
        assert len(out) == 72
        return out
    def halfB_loadK(self, b):
        return [self.mk_kload(b, tile, g, jj, self.kslot(u), self.k_reader[u]) for u, (ti, tile, g, jj) in enumerate(self.b_kunits())]
    def halfB_loadV(self, b):
        Ls = []
        for u, (ti, tile, t) in enumerate(self.b_vunits()):
            if u < self.NV_REG:
                Ls.append(self.mk_vload(b, tile, t, vr(self.vRET + 4 * (self.KX + u)), self.v_reader[u]))
            else:
                Ls.append(self.mk_vload_lds(b, tile, t, u - self.NV_REG, self.v_reader[u]))
        return Ls
    def halfB_qk(self, Pset, Ls):
        ku = self.b_kunits()
        for u in range(0, 72, 2):
            ti, tile, g, _ = ku[u]
            needs = [Ls[u], Ls[u+1]] if Ls else []
            C = self.mk_qk(self.kslot(u), self.kslot(u + 1), vP[Pset] + ti, tile, g, needs)
            self.k_reader[u] = C; self.k_reader[u+1] = C
    def halfB_pv(self, inst, Pset, Ls):
        Iset = 'X' if (inst & 1) == 0 else 'Y'
        for u, (ti, tile, t) in enumerate(self.b_vunits()):
            needs = [Ls[u]] if Ls else []
            if u < self.NV_REG:
                C = self.mk_pv(vr(self.vRET + 4 * (self.KX + u)), vP[Pset] + ti, t, vO[Iset], needs)
            else:
                C = self.mk_pv_lds(u - self.NV_REG, vP[Pset] + ti, t, vO[Iset], needs)
            self.v_reader[u] = C

    def mark(self, name):
        self.marks[name] = len(self.loads)
        if self.c.timing and self.c.stamp_pos is None: self.add_comp(Comp(self.stamp_now, (), 'stamp'))
    def stamp_now(self):
        a = self.a
        k = self.nstamp; self.nstamp += 1
        a.smem(f's_memrealtime s[{sT}:{sT+1}]')
        a.raw('  s_waitcnt lgkmcnt(0)'); a.t += 1; a.lg = []
        a.i(f's_mov_b32 s{STAMP0 + k}, s{sT}')

    def place_before_end(self, L, n):
        self.loads.remove(L); self.loads.insert(len(self.loads) - n, L)

    def build(self):
        c = self.c
        if not c.test_attn: self.mk_b1()
        KL = self.halfB_loadK(0)
        if not c.test_attn:
            cl = self.mk_clrload()
            self.loads.remove(cl); self.loads.insert(c.CLR_POS, cl)
            self.mk_clrcheck(cl)
        VL = self.halfB_loadV(0)
        qg0 = self.mk_qgather(0)
        self.loads.remove(qg0); self.loads.insert(c.QG0_POS, qg0)
        self.mk_acquire(0, qg0)
        self.halfB_qk('X', KL)
        self.mk_softmax('X', 'X', True, HALF_B)
        n0 = len(self.comps)
        self.halfB_pv(0, 'X', VL)
        cB = self.comps[n0:]; del self.comps[n0:]
        self.stream_k(0, 'Y', HALF_A)
        cA = self.comps[n0:]; del self.comps[n0:]
        self.comps += self.interleave(cB, cA, 2)
        qg1 = self.mk_qgather(1)
        self.mk_softmax('Y', 'X', False, HALF_A)
        self.stream_v(0, 'Y', HALF_A)
        self.mk_publish(0)
        self.mark('A')
        self.mk_acquire(1, qg1)
        self.stream_k(1, 'Y', HALF_A)
        self.mk_softmax('Y', 'Y', True, HALF_A)
        self.stream_v(1, 'Y', HALF_A)
        qg2 = self.mk_qgather(2); self.place_before_end(qg2, c.QG_LEAD)
        self.mark('B')
        self.mk_acquire(2, qg2)
        self.halfB_qk('X', None)
        self.mk_softmax('X', 'X', True, HALF_B)
        self.halfB_pv(2, 'X', None)
        KL = self.halfB_loadK(1)
        VL = self.halfB_loadV(1)
        self.mk_acquire(1, None)
        self.halfB_qk('Y', KL)
        self.mk_softmax('Y', 'Y', False, HALF_B)
        self.halfB_pv(1, 'Y', VL)
        self.mk_publish(1)
        self.mark('C')
        self.mk_acquire(2, None)
        self.stream_k(2, 'X', HALF_A)
        self.mk_softmax('X', 'X', False, HALF_A)
        self.stream_v(2, 'X', HALF_A)
        qg3 = self.mk_qgather(3); self.place_before_end(qg3, c.QG_LEAD)
        self.mk_publish(2)
        self.mark('D')
        self.mk_acquire(3, qg3)
        n0 = len(self.comps)
        self.stream_k(3, 'X', HALF_A)
        compsA = self.comps[n0:]; del self.comps[n0:]
        self.halfB_qk('Y', None)
        self.mk_softmax('Y', 'Y', True, HALF_B)
        self.halfB_pv(3, 'Y', None)
        compsB = self.comps[n0:]; del self.comps[n0:]
        self.comps += self.interleave(compsB, compsA, 3)
        self.mk_softmax('X', 'Y', False, HALF_A)
        self.stream_v(3, 'X', HALF_A)
        self.mk_publish(3)
        self.mark('E')

    def interleave(self, main, other, every):
        ia = 0; merged = []
        for k, C in enumerate(main):
            merged.append(C)
            if k % every == every - 1 and ia < len(other):
                merged.append(other[ia]); ia += 1
        merged += other[ia:]
        return merged

    def emit_comp(self, C):
        for L in C.needs:
            assert L.vid is not None, ('load not issued before its consumer', C.name, L.name)
            self.a.wait_vm(L.vid)
        C.emit(); C.done = True

    def schedule(self):
        c = self.c; a = self.a
        ci = 0; comps = self.comps
        for li, L in enumerate(self.loads):
            L.idx = li
            if L.after is not None and not L.after.done:
                while not L.after.done:
                    self.emit_comp(comps[ci]); ci += 1
            if li >= max(c.D, c.BURST):
                a.wait_vm(self.loads[li - c.D].vid)
            L.vid = L.emit()
            if c.stamp_pos is not None and li in c.stamp_pos: self.stamp_now()
            n = 0
            while ci < len(comps) and n < c.budget:
                C = comps[ci]
                if all(x.vid is not None and a.vm_done(x.vid) for x in C.needs):
                    self.emit_comp(C); ci += 1; n += 1
                else:
                    break
        while ci < len(comps):
            self.emit_comp(comps[ci]); ci += 1

    def prologue(self):
        a = self.a; c = self.c
        l = T + 8
        a.i(f'v_mov_b32 v{l}, v0')
        a.i(f's_mul_i32 s{sT}, s{sS}, 292')
        a.i(f's_min_u32 s{sT+1}, s{sS}, 4')
        a.i(f's_add_u32 s{sT}, s{sT}, s{sT+1}')
        a.i(f's_lshl_b32 s{sT}, s{sT}, 11')
        a.i(f's_lshl_b32 s{sT+1}, s{sH}, 22')
        a.i(f's_add_u32 s{sT}, s{sT}, s{sT+1}')
        a.i(f's_lshl_b32 s{sT+1}, s{sWave}, 14')
        a.i(f's_add_u32 s{sB[0]}, s{sT}, s{sT+1}')
        a.i(f's_add_u32 s{sB[1]}, s{sB[0]}, 0x8000000')
        a.i(f's_lshl_b32 s{sT+1}, s{sWave}, 12')
        a.i(f's_add_u32 s{sBp[0]}, s{sT}, s{sT+1}')
        a.i(f's_add_u32 s{sBp[0]}, s{sBp[0]}, {9 * 65536}')
        a.i(f's_add_u32 s{sBp[1]}, s{sBp[0]}, 0x8000000')
        a.i(f's_cmp_lt_u32 s{sS}, 4')
        a.i(f's_cselect_b32 s{sT}, 5, 4')
        a.i(f's_lshl_b32 s{sT+1}, s{sWave}, 1')
        a.i(f's_sub_i32 s{sT}, s{sT}, s{sT+1}')
        a.i(f's_max_i32 s{sT}, s{sT}, 0')
        a.i(f's_min_i32 s{sT}, s{sT}, 2')
        a.i(f's_lshl_b32 s{sNV}, s{sT}, 3')
        a.i(f's_lshl_b32 s{sPidx}, s{sS}, 2')
        a.i(f's_add_u32 s{sPidx}, s{sPidx}, s{sWave}')
        a.i(f's_mul_i32 s{sLdsRet}, s{sWave}, {self.NV_LDS * 1024}')
        a.i(f's_add_u32 s{sLdsRet}, s{sLdsRet}, {L_RET}')
        a.i(f's_lshl_b32 s{sQG}, s{sWave}, 9')
        if L_QG: a.i(f's_add_u32 s{sQG}, s{sQG}, {L_QG}')
        a.i(f'v_lshlrev_b32 v{vL16}, 4, v{l}')
        a.i(f'v_add_u32 v{vLdsRet}, s{sLdsRet}, v{vL16}')
        a.i(f's_sub_u32 s{sLdsRet}, s{sLdsRet}, 4096')
        a.i(f'v_and_b32 v{T}, 7, v{l}')
        a.i(f'v_lshlrev_b32 v{vKoff}, 8, v{T}')
        a.i(f'v_bfe_u32 v{T}, v{l}, 3, 1')
        a.i(f'v_lshl_add_u32 v{vKoff}, v{T}, 6, v{vKoff}')
        a.i(f'v_lshrrev_b32 v{T+1}, 4, v{l}')
        a.i(f'v_lshl_add_u32 v{vKoff}, v{T+1}, 4, v{vKoff}')
        a.i(f'v_and_b32 v{T}, 15, v{l}')
        a.i(f'v_lshlrev_b32 v{vVoff}, 4, v{T}')
        a.i(f'v_lshl_add_u32 v{vV8}, v{T+1}, 11, v{vVoff}')
        a.i(f'v_lshl_add_u32 v{vVoff}, v{T+1}, 12, v{vVoff}')
        a.i(f'v_lshl_add_u32 v{T+2}, v{T}, 2, v{T+1}')
        a.i(f'v_cmp_gt_u32 vcc, s{sNV}, v{T+2}')
        a.i(f'v_cndmask_b32 v{T+2}, 16, v{T+2}, vcc')
        a.i(f'v_lshlrev_b32 v{vBP}, 2, v{T+2}')
        a.i(f'v_and_b32 v{T+2}, 1, v{l}')
        a.i(f'v_lshlrev_b32 v{T+2}, 4, v{T+2}')
        a.i(f'v_mov_b32 v{T+3}, 0xffff')
        a.i(f'v_lshlrev_b32 v{T+3}, v{T+2}, v{T+3}')
        a.i(f'v_lshrrev_b32 v{T+4}, 1, v{T}')
        for r in range(4):
            a.i(f'v_cmp_eq_u32 vcc, {r}, v{T+4}')
            a.i(f'v_cndmask_b32 v{vMask[r]}, 0, v{T+3}, vcc')

    def clear(self):
        a = self.a
        for i in range(4): a.i(f'v_mov_b32 v{T+4+i}, -1')
        a.i(f's_sub_u32 s{sT}, s{sWG}, 32')
        a.i(f's_lshl_b32 s{sT}, s{sT}, 2')
        a.i(f's_add_u32 s{sT}, s{sT}, s{sWave}')
        a.i(f's_mul_i32 s{sT}, s{sT}, 3072')
        for k in range(3):
            vid = a.i(f'buffer_store_dwordx4 v[{T+4}:{T+7}], v{vL16}, {SRD_WS}, s{sT} offen offset:{k*1024} sc1')
            L = Load(None, None, 'CLR'); L.vid = vid; self.pro_loads.append(L)

    def write_stamps(self, extra=()):
        a = self.a
        a.i(f's_lshl_b32 s{sT}, s{sWG}, 2')
        a.i(f's_add_u32 s{sT}, s{sT}, s{sWave}')
        a.i(f's_lshl_b32 s{sT}, s{sT}, 6')
        a.i(f's_add_u32 s{sT}, s{sT}, {W_DBG}')
        a.i(f's_mov_b64 exec, 1')
        a.i(f'v_mov_b32 v{T+1}, 0')
        for k in range(self.nstamp):
            a.i(f'v_mov_b32 v{T}, s{STAMP0 + k}')
            a.i(f'buffer_store_dword v{T}, v{T+1}, {SRD_WS}, s{sT} offen offset:{4*k}')
        a.i(f'v_mov_b32 v{T}, s{sSpin}')
        a.i(f'buffer_store_dword v{T}, v{T+1}, {SRD_WS}, s{sT} offen offset:48')
        a.i(f's_mov_b64 exec, -1')
```

```python
import sys
from asmlib import Asm
from common import *
import stream as ST
import service as SV

class Cfg:
    D = 7; NRING = 8; BURST = 8; budget = 4
    pol = ' nt'; pol_w = ' nt'; polA = ['', '', ' nt', ' nt']; mallK = [16, 16]; mallV = [16, 16]
    test_attn = False; timing = False
    CLR_POS = 34; QG0_POS = 125; QG_LEAD = 12
    S1_SLOW = 16; S1_FIRST = 20
    SPIN = 200000; SLEEP = 2; stamp_pos = None

def generate(c):
    a = Asm()
    st = ST.Stream(c, a)
    a.i('s_cmp_ge_u32 s2, 256'); a.i('s_cbranch_scc1 L_end')
    if c.timing: st.stamp_now()
    a.smem('s_load_dwordx16 s[64:79], s[0:1], 0')
    a.smem('s_load_dwordx8 s[80:87], s[0:1], 64')
    a.i('v_lshrrev_b32 v1, 6, v0')
    a.i('v_and_b32 v0, 63, v0')
    a.i(f'v_readfirstlane_b32 s{sWave}, v1')
    a.i(f's_mov_b32 s{sWG}, s2')
    a.i(f's_and_b32 s{sT}, s2, 7')
    a.i(f's_lshr_b32 s{sT+1}, s2, 3')
    a.i(f's_mov_b32 s{sSpin}, {c.SPIN}')
    a.raw('  s_waitcnt lgkmcnt(0)'); a.t += 1
    def srd(base, ptr, size):
        a.i(f's_mov_b32 s{base}, s{ptr}')
        a.i(f's_and_b32 s{base+1}, s{ptr+1}, 0xffff')
        a.i(f's_mov_b32 s{base+2}, {hex(size)}')
        a.i(f's_mov_b32 s{base+3}, 0x20000')
    srd(4, P_K, 1 << 28); srd(8, P_V, 1 << 28); srd(12, P_WS, WS_BYTES); srd(16, P_OUT, 2048)
    srd(20, P_WQ, 512 * 4096 * 2)
    a.i('s_and_b32 s65, s65, 0xffff'); a.i('s_mov_b32 s66, 2048'); a.i('s_mov_b32 s67, 0x20000')
    a.i(f's_cmp_lt_u32 s{sT+1}, 4')
    a.i('s_cbranch_scc1 L_service')
    a.i(f's_sub_u32 s{sT+1}, s{sT+1}, 4')
    a.i(f's_mul_i32 s{sT+2}, s{sT+1}, 37')
    a.i(f's_lshr_b32 s{sT+2}, s{sT+2}, 8')
    a.i(f's_lshl_b32 s{sH}, s{sT}, 2')
    a.i(f's_add_u32 s{sH}, s{sH}, s{sT+2}')
    a.i(f's_mul_i32 s{sT+2}, s{sT+2}, 7')
    a.i(f's_sub_u32 s{sS}, s{sT+1}, s{sT+2}')
    st.prologue()
    if not c.test_attn: st.clear()
    if c.timing: st.stamp_now()
    st.build()
    st.schedule()
    a.wait_vm_all()
    if c.timing:
        st.stamp_now()
        st.write_stamps()
        a.wait_vm_all()
    a.i('s_endpgm')
    nst_stream = st.nstamp
    b = Asm()
    b.uid = 100000
    b.label('L_service')
    b.i(f's_lshl_b32 s{sH}, s{sT}, 2')
    b.i(f's_add_u32 s{sH}, s{sH}, s{sT+1}')
    st2 = ST.Stream(c, b); st2.nstamp = 1
    if not c.test_attn:
        sv = SV.Service(c, b, st2.stamp_now)
        sv.run()
        b.i('s_waitcnt vmcnt(0)')
        if c.timing:
            st2.stamp_now()
            st2.write_stamps()
            b.i('s_waitcnt vmcnt(0)')
    b.label('L_end')
    b.i('s_endpgm')
    lds = ST.L_RET + 4 * st.NV_LDS * 1024
    lds = max(lds, SV.L_TMP + 131072)
    assert lds <= 163840
    hdr = open('interleave_layers__gqa_block_cached__glu_gated_bilinear__decode.s.ref').read().split('\n')
    head = []
    for ln in hdr:
        if ln.startswith('; @launch'): head.append(f'; @launch grid=(256,1,1) block=(256,1,1) lds={lds}')
        elif ln.startswith(';'): head.append(ln)
        else: break
    out = '\n'.join(head) + '\n'
    out += '.amdgcn_target "amdgcn-amd-amdhsa--gfx950"\n.text\n'
    out += f'.globl {NAME}\n.p2align 8\n.type {NAME},@function\n{NAME}:\n'
    out += a.text() + b.text()
    out += '.section .rodata,"a"\n.p2align 6\n'
    out += f'.amdhsa_kernel {NAME}\n  .amdhsa_next_free_vgpr 512\n  .amdhsa_next_free_sgpr 102\n  .amdhsa_accum_offset 256\n'
    out += '  .amdhsa_group_segment_fixed_size 0\n  .amdhsa_kernarg_size 96\n  .amdhsa_user_sgpr_count 2\n'
    out += '  .amdhsa_user_sgpr_kernarg_segment_ptr 1\n  .amdhsa_system_sgpr_workgroup_id_x 1\n.end_amdhsa_kernel\n'
    print('instrs stream', a.ninstr, 'service', b.ninstr, 'loads', len(st.loads), st.marks, 'lds', lds, 'stamps', nst_stream, st2.nstamp)
    return out

if __name__ == '__main__':
    c = Cfg()
    for arg in sys.argv[2:]:
        k, v = arg.split('=', 1); setattr(c, k, eval(v))
    open(sys.argv[1], 'w').write(generate(c))
```

```python
from asmlib import Asm
from common import *

vKoff, vVoff, vV8, vL16, vLdsRet = 0, 1, 2, 3, 4
vBP = 5
vMask = [6, 7, 8, 9]
vL = {'X': 10, 'Y': 11}
vQ = 12
vP = {'X': 20, 'Y': 26}
vO = {'X': 32, 'Y': 36}
T = 40
vACC = [40, 44]
vAT = [48, 52]
vLT = [56, 56]
vRING = 60
NEGINF = 0xff800000

L_QG = 0
L_RET = 2048

def lane(a, r):
    a.i(f'v_lshrrev_b32 v{r}, 4, v{vL16}')

class Load:
    def __init__(self, emit, after=None, name='', w=1.0):
        self.emit = emit; self.after = after; self.name = name; self.vid = None; self.idx = None; self.w = w
class Comp:
    def __init__(self, emit, needs=(), name=''):
        self.emit = emit; self.needs = list(needs); self.name = name; self.done = False

HALF_B = [('F', 0), ('F', 1), ('F', 2), ('F', 3), ('H', 0)]
HALF_A = [('F', 4), ('F', 5), ('F', 6), ('F', 7), ('H', 1), ('P',)]

def k_units(tile):
    n = {'F': 8, 'H': 4, 'P': 2}[tile[0]]
    return [(g, jj) for g in range(n) for jj in range(2)]
def v_units(tile):
    return list(range({'F': 16, 'H': 8, 'P': 4}[tile[0]]))

class Stream:
    def __init__(self, cfg, a):
        self.c = cfg
        self.a = a
        self.loads = []; self.comps = []
        self.pend = []
        self.accsel = 0; self.atsel = 0; self.ltsel = 0
        self.ring = 0
        self.ring_reader = [None] * cfg.NRING
        self.vRET = vRING + 4 * cfg.NRING
        self.NVREG = (256 - self.vRET) // 4
        self.KX = 72 - 64
        self.NV_REG = self.NVREG - self.KX
        self.NV_LDS = 72 - self.NV_REG
        assert L_RET + 4 * self.NV_LDS * 1024 <= 163840, (self.NV_LDS,)
        self.k_reader = [None] * 72
        self.v_reader = [None] * 72
        self.curK = None; self.curV = None
        self.marks = {}
        self.nstamp = 0
        self.pro_loads = []
        self.uid = 0
        self.curpol = cfg.pol

    def set_off(self, which, b, tile, const):
        a = self.a
        base = sBp[b] if tile[0] == 'P' else sB[b]
        key = (base, const)
        reg = sOffK if which == 'K' else sOffV
        cur = self.curK if which == 'K' else self.curV
        if cur != key:
            if const == 0: a.i(f's_mov_b32 s{reg}, s{base}')
            else: a.i(f's_add_u32 s{reg}, s{base}, {const}')
            if which == 'K': self.curK = key
            else: self.curV = key
        return f's{reg}'

    def add_load(self, L): self.loads.append(L); return L
    def add_comp(self, C): self.comps.append(C); return C
    def ring_slot(self):
        s = self.ring % self.c.NRING; self.ring += 1
        return s

    def k_addr(self, tile, g, jj):
        if tile[0] == 'F': return tile[1] * 65536 + (g >> 1) * 4096, (g & 1) * 2048 + jj * 128
        if tile[0] == 'H': return 8 * 65536 + tile[1] * 8192 + (g >> 1) * 4096, (g & 1) * 2048 + jj * 128
        return 0, g * 2048 + jj * 128
    def v_addr(self, tile, t):
        if tile[0] == 'F': return tile[1] * 65536, t * 256, vVoff
        if tile[0] == 'H': return 8 * 65536 + tile[1] * 8192, t * 256, vV8
        return 0, t * 1024, vL16
    def k_place(self, tile, g):
        if tile[0] == 'F': return g >> 1, g & 1
        if tile[0] == 'H': return g, 0
        return 0, g

    def mk_kload(self, b, tile, g, jj, dst, after):
        pol = self.curpol
        def emit():
            const, imm = self.k_addr(tile, g, jj)
            so = self.set_off('K', b, tile, const)
            return self.a.i(f'buffer_load_dwordx4 {dst}, v{vKoff}, {SRD_K}, {so} offen offset:{imm}{pol}')
        return self.add_load(Load(emit, after, f'K b{b} {tile} g{g} j{jj}'))
    def mk_vload(self, b, tile, t, dst, after):
        pol = self.curpol
        def emit():
            const, imm, vo = self.v_addr(tile, t)
            so = self.set_off('V', b, tile, const)
            return self.a.i(f'buffer_load_dwordx4 {dst}, v{vo}, {SRD_V}, {so} offen offset:{imm}{pol}')
        return self.add_load(Load(emit, after, f'V b{b} {tile} u{t}'))
    def mk_vload_lds(self, b, tile, t, slot, after):
        def emit():
            const, imm, vo = self.v_addr(tile, t)
            so = self.set_off('V', b, tile, const)
            self.a.i(f's_add_u32 m0, s{sLdsRet}, {slot * 1024 - imm + 4096}')
            return self.a.i(f'buffer_load_dwordx4 v{vo}, {SRD_V}, {so} offen offset:{imm}{self.c.pol} lds')
        return self.add_load(Load(emit, after, f'VL b{b} {tile} u{t}'))

    def flush_adds(self, acc=None):
        a = self.a
        keep = []
        for (ac, S, row, hh) in self.pend:
            if acc is None or ac == acc:
                if hh == 0:
                    a.i(f'v_add_f32_dpp v{S}, v{ac+1}, v{ac} row_ror:8 row_mask:{hex(1 << row)} bank_mask:0x3')
                else:
                    a.i(f'v_add_f32_dpp v{S}, v{ac}, v{ac+1} row_ror:8 row_mask:{hex(1 << row)} bank_mask:0xc')
            else:
                keep.append((ac, S, row, hh))
        self.pend = keep

    def mk_qk(self, B0, B1, S, tile, g, needs):
        def emit():
            a = self.a
            if g == 0 and tile[0] in 'HP':
                a.i(f'v_mov_b32 v{S}, {hex(NEGINF)}')
            ac = vACC[self.accsel]; self.accsel ^= 1
            self.flush_adds(ac)
            a.i(f'v_mfma_f32_16x16x32_bf16 {vr(ac)}, {vr(vQ)}, {B0}, 0')
            a.i(f'v_mfma_f32_16x16x32_bf16 {vr(ac)}, {vr(vQ+4)}, {B1}, {vr(ac)}')
            row, hh = self.k_place(tile, g)
            self.pend.append((ac, S, row, hh))
        return self.add_comp(Comp(emit, needs, f'QK {tile} g{g}'))

    def pv_core(self, B, P, t, O, mid=None):
        a = self.a
        at = vAT[self.atsel]; self.atsel ^= 1
        for r in range(4):
            a.i(f'v_and_b32_dpp v{at+r}, v{P}, v{vMask[r]} row_newbcast:{t} row_mask:0xf bank_mask:0xf')
        if mid: mid()
        a.i(f'v_mfma_f32_16x16x32_bf16 {vr(O)}, {vr(at)}, {B}, {vr(O)}')
    def mk_pv(self, B, P, t, O, needs):
        return self.add_comp(Comp(lambda: self.pv_core(B, P, t, O), needs, f'PV t{t}'))
    def mk_pv_lds(self, slot, P, t, O, needs):
        def emit():
            a = self.a
            lt = vLT[self.ltsel]; self.ltsel ^= 1
            lid = a.i(f'ds_read_b128 {vr(lt)}, v{vLdsRet} offset:{slot * 1024}')
            self.pv_core(vr(lt), P, t, O, mid=lambda: a.wait_lg(lid))
        return self.add_comp(Comp(emit, needs, f'PVL t{t}'))

    def mk_softmax(self, Pset, Iset, first, tiles):
        n = len(tiles)
        def emit():
            a = self.a
            self.flush_adds()
            S = vP[Pset]; O = vO[Iset]; Lr = vL[Iset]; m = sM[Iset]
            t0, t1, t2, t3 = T, T+1, T+2, T+3
            if tiles[-1][0] == 'P':
                k = n - 1
                lid = a.i(f'ds_bpermute_b32 v{S+k}, v{vBP}, v{S+k}')
                a.wait_lg(lid)
            for i in range(n): a.i(f'v_mul_f32 v{S+i}, {hex(f2u(SCALE))}, v{S+i}')
            a.i(f'v_max3_f32 v{t0}, v{S}, v{S+1}, v{S+2}')
            a.i(f'v_max3_f32 v{t0}, v{t0}, v{S+3}, v{S+4}')
            if n == 6: a.i(f'v_max_f32 v{t0}, v{t0}, v{S+5}')
            if not first: a.i(f'v_max_f32 v{t0}, s{m}, v{t0}')
            wave_reduce_multi(a, 'v_max_f32', [t0])
            a.i(f'v_readlane_b32 s{sT}, v{t0}, 63')
            if not first:
                a.i(f'v_mov_b32 v{t1}, s{sT}')
                a.i(f'v_sub_f32 v{t1}, s{m}, v{t1}')
                a.i(f'v_exp_f32 v{t1}, v{t1}')
                for i in range(4): a.i(f'v_mul_f32 v{O+i}, v{O+i}, v{t1}')
                a.i(f'v_mul_f32 v{Lr}, v{Lr}, v{t1}')
            else:
                for i in range(4): a.i(f'v_mov_b32 v{O+i}, 0')
            a.i(f's_mov_b32 s{m}, s{sT}')
            for i in range(n): a.i(f'v_subrev_f32 v{S+i}, s{m}, v{S+i}')
            for i in range(n): a.i(f'v_exp_f32 v{S+i}, v{S+i}')
            a.i(f'v_add_f32 v{t2}, v{S}, v{S+1}')
            a.i(f'v_add_f32 v{t3}, v{S+2}, v{S+3}')
            a.i(f'v_add_f32 v{t2}, v{t2}, v{S+4}')
            if n == 6: a.i(f'v_add_f32 v{t3}, v{t3}, v{S+5}')
            if first:
                a.i(f'v_add_f32 v{Lr}, v{t2}, v{t3}')
            else:
                a.i(f'v_add_f32 v{t2}, v{t2}, v{t3}')
                a.i(f'v_add_f32 v{Lr}, v{Lr}, v{t2}')
            for i in range(n): a.i(f'v_cvt_pk_bf16_f32 v{S+i}, v{S+i}, v{S+i}')
        return self.add_comp(Comp(emit, (), f'softmax {Pset} {Iset} {first}'))

    def cond_begin(self):
        self.a.flush_hazards()
        self._snap = (list(self.a.vm), list(self.a.lg))
    def cond_end(self):
        self.a.flush_hazards()
        self.a.vm, self.a.lg = self._snap

    def mk_publish(self, inst):
        Iset = 'X' if (inst & 1) == 0 else 'Y'
        def emit():
            a = self.a
            O = vO[Iset]; Lr = vL[Iset]; m = sM[Iset]
            t = T
            wave_reduce_multi(a, 'v_add_f32', [Lr])
            lane(a, t+5)
            a.i(f'v_and_b32 v{t}, 15, v{t+5}')
            a.i(f'v_lshlrev_b32 v{t}, 5, v{t}')
            a.i(f'v_lshrrev_b32 v{t+1}, 4, v{t+5}')
            a.i(f'v_lshl_add_u32 v{t}, v{t+1}, 4, v{t}')
            a.i(f's_mul_i32 s{sT}, s{sH}, {NP}')
            a.i(f's_add_u32 s{sT}, s{sT}, s{sPidx}')
            a.i(f's_lshl_b32 s{sT}, s{sT}, 9')
            a.i(f's_add_u32 s{sT}, s{sT}, {W_PO + inst * 32 * NP * 512}')
            a.i(f's_mov_b32 exec_hi, 0')
            a.i(f'buffer_store_dwordx4 {vr(O)}, v{t}, {SRD_WS}, s{sT} offen sc1')
            a.i(f's_lshl_b32 s{sT}, s{sH}, 8')
            a.i(f's_lshl_b32 s{sT+1}, s{sPidx}, 3')
            a.i(f's_add_u32 s{sT}, s{sT}, s{sT+1}')
            a.i(f's_add_u32 s{sT}, s{sT}, {W_PML + inst * 8192}')
            a.i(f's_mov_b64 exec, -1')
            a.i(f'v_mov_b32 v{t+2}, s{m}')
            a.i(f'v_mov_b32 v{t+3}, v{Lr}')
            a.i(f'v_mov_b32 v{t+4}, 0')
            a.i(f's_mov_b32 exec_lo, 0')
            a.i(f's_mov_b32 exec_hi, 0x80000000')
            a.i(f'buffer_store_dwordx2 v[{t+2}:{t+3}], v{t+4}, {SRD_WS}, s{sT} offen sc1')
            a.i(f's_mov_b64 exec, -1')
        return self.add_comp(Comp(emit, (), f'publish {inst}'))

    def mk_qgather(self, inst):
        def emit():
            a = self.a
            a.i(f's_lshl_b32 s{sT}, s{sH}, 8')
            a.i(f's_add_u32 s{sT}, s{sT}, {W_Q + inst * 8192}')
            a.i(f's_add_u32 m0, s{sQG}, {(inst & 1) * 256}')
            a.i(f'v_lshrrev_b32 v{T+19}, 2, v{vL16}')
            return a.i(f'buffer_load_dword v{T+19}, {SRD_WS}, s{sT} offen sc1 lds')
        return self.add_load(Load(emit, None, f'QG {inst}'))
    def q_read(self, inst):
        a = self.a; t = T
        lane(a, t+1)
        a.i(f'v_and_b32 v{t}, 1, v{t+1}')
        a.i(f'v_lshlrev_b32 v{t}, 6, v{t}')
        a.i(f'v_lshrrev_b32 v{t+1}, 4, v{t+1}')
        a.i(f'v_lshl_add_u32 v{t}, v{t+1}, 4, v{t}')
        a.i(f'v_add_u32 v{t}, s{sQG}, v{t}')
        a.i(f'ds_read_b128 {vr(vQ)}, v{t} offset:{(inst & 1) * 256}')
        lid = a.i(f'ds_read_b128 {vr(vQ+4)}, v{t} offset:{(inst & 1) * 256 + 128}')
        a.wait_lg(lid)
    def q_bad(self):
        a = self.a; t = T + 2
        a.i(f'v_max3_u32 v{t}, v{vQ}, v{vQ+1}, v{vQ+2}')
        a.i(f'v_max3_u32 v{t}, v{t}, v{vQ+3}, v{vQ+4}')
        a.i(f'v_max3_u32 v{t}, v{t}, v{vQ+5}, v{vQ+6}')
        a.i(f'v_max_u32 v{t}, v{t}, v{vQ+7}')
        a.i(f'v_cmp_eq_u32 vcc, -1, v{t}')
        a.i(f's_cmp_lg_u64 vcc, 0')
    def mk_acquire(self, inst, gather):
        def emit():
            a = self.a
            self.flush_adds()
            self.q_read(inst)
            if gather is not None and not self.c.test_attn:
                ok = a.newlabel('qok'); lp = a.newlabel('qretry')
                self.q_bad()
                self.cond_begin()
                a.i(f's_cbranch_scc0 {ok}')
                a.label(lp)
                a.i('s_sleep 2')
                a.i(f's_lshl_b32 s{sT}, s{sH}, 8')
                a.i(f's_add_u32 s{sT}, s{sT}, {W_Q + inst * 8192}')
                a.i(f's_add_u32 m0, s{sQG}, {(inst & 1) * 256}')
                a.i(f'v_lshrrev_b32 v{T+19}, 2, v{vL16}')
                a.i(f'buffer_load_dword v{T+19}, {SRD_WS}, s{sT} offen sc1 lds')
                a.i('s_waitcnt vmcnt(0)')
                self.q_read(inst)
                self.q_bad()
                a.i(f's_cbranch_scc0 {ok}')
                a.i(f's_sub_u32 s{sSpin}, s{sSpin}, 1')
                a.i(f's_cmp_gt_i32 s{sSpin}, 0')
                a.i(f's_cbranch_scc1 {lp}')
                self.cond_end()
                a.label(ok)
        return self.add_comp(Comp(emit, [gather] if gather else [], f'acquire {inst}'))

    def mk_b1(self):
        def emit():
            a = self.a
            a.i('s_barrier')
            skip = a.newlabel('b1')
            a.i(f's_cmp_eq_u32 s{sWave}, 0')
            self.cond_begin()
            a.i(f's_cbranch_scc0 {skip}')
            a.i(f'v_mov_b32 v{T}, 0')
            a.i(f'v_mov_b32 v{T+1}, 1')
            a.i('s_mov_b64 exec, 1')
            a.i(f'global_atomic_add v{T}, v{T+1}, s[{P_DBG}:{P_DBG+1}]')
            a.i('s_mov_b64 exec, -1')
            self.cond_end()
            a.label(skip)
        return self.add_comp(Comp(emit, self.pro_loads, 'B1'))
    def mk_clrload(self):
        def emit():
            a = self.a
            a.i(f'v_mov_b32 v{T+18}, 0')
            return a.i(f'global_load_dword v{T+19}, v{T+18}, s[{P_DBG}:{P_DBG+1}] sc1')
        return self.add_load(Load(emit, None, 'CLR'))
    def mk_clrcheck(self, cl):
        def emit():
            a = self.a
            ok = a.newlabel('clok'); lp = a.newlabel('clp')
            a.i(f'v_readfirstlane_b32 s{sT}, v{T+19}')
            a.i(f's_cmp_eq_u32 s{sT}, 224')
            self.cond_begin()
            a.i(f's_cbranch_scc1 {ok}')
            a.label(lp)
            a.i(f'global_load_dword v{T+19}, v{T+18}, s[{P_DBG}:{P_DBG+1}] sc1')
            a.i('s_waitcnt vmcnt(0)')
            a.i(f'v_readfirstlane_b32 s{sT}, v{T+19}')
            a.i(f's_cmp_eq_u32 s{sT}, 224')
            a.i(f's_cbranch_scc1 {ok}')
            a.i(f's_sub_u32 s{sSpin}, s{sSpin}, 1')
            a.i(f's_cmp_gt_i32 s{sSpin}, 0')
            a.i(f's_cbranch_scc1 {lp}')
            self.cond_end()
            a.label(ok)
        return self.add_comp(Comp(emit, [cl], 'clrcheck'))

    def kslot(self, u):
        return ar(4 * u) if u < 64 else vr(self.vRET + 4 * (u - 64))
    def stream_k(self, inst, Pset, tiles):
        b = inst & 1
        self.curpol = self.c.polA[inst]
        for ti, tile in enumerate(tiles):
            self.curpol = self.c.polA[inst] if ti < self.c.mall_tiles[inst & 1] else ' nt'
            ku = k_units(tile)
            for gi in range(0, len(ku), 2):
                g = ku[gi][0]
                ls = []; regs = []
                for jj in range(2):
                    s = self.ring_slot()
                    ls.append(self.mk_kload(b, tile, g, jj, vr(vRING + 4*s), self.ring_reader[s])); regs.append(s)
                C = self.mk_qk(vr(vRING + 4*regs[0]), vr(vRING + 4*regs[1]), vP[Pset] + ti, tile, g, ls)
                for s in regs: self.ring_reader[s] = C
    def stream_v(self, inst, Pset, tiles):
        b = inst & 1
        self.curpol = self.c.polA[inst]
        Iset = 'X' if b == 0 else 'Y'
        for ti, tile in enumerate(tiles):
            self.curpol = self.c.polA[inst] if ti < self.c.mall_tiles[inst & 1] else ' nt'
            for t in v_units(tile):
                s = self.ring_slot()
                L = self.mk_vload(b, tile, t, vr(vRING + 4*s), self.ring_reader[s])
                self.ring_reader[s] = self.mk_pv(vr(vRING + 4*s), vP[Pset] + ti, t, vO[Iset], [L])
    def b_kunits(self):
        out = []
        for ti, tile in enumerate(HALF_B):
            for (g, jj) in k_units(tile): out.append((ti, tile, g, jj))
        assert len(out) == 72
        return out
    def b_vunits(self):
        out = []
        for ti, tile in enumerate(HALF_B):
            for t in v_units(tile): out.append((ti, tile, t))
        assert len(out) == 72
        return out
    def halfB_loadK(self, b):
        self.curpol = self.c.pol
        return [self.mk_kload(b, tile, g, jj, self.kslot(u), self.k_reader[u]) for u, (ti, tile, g, jj) in enumerate(self.b_kunits())]
    def halfB_loadV(self, b):
        self.curpol = self.c.pol
        Ls = []
        for u, (ti, tile, t) in enumerate(self.b_vunits()):
            if u < self.NV_REG:
                Ls.append(self.mk_vload(b, tile, t, vr(self.vRET + 4 * (self.KX + u)), self.v_reader[u]))
            else:
                Ls.append(self.mk_vload_lds(b, tile, t, u - self.NV_REG, self.v_reader[u]))
        return Ls
    def halfB_qk(self, Pset, Ls):
        ku = self.b_kunits()
        for u in range(0, 72, 2):
            ti, tile, g, _ = ku[u]
            needs = [Ls[u], Ls[u+1]] if Ls else []
            C = self.mk_qk(self.kslot(u), self.kslot(u + 1), vP[Pset] + ti, tile, g, needs)
            self.k_reader[u] = C; self.k_reader[u+1] = C
    def halfB_pv(self, inst, Pset, Ls):
        Iset = 'X' if (inst & 1) == 0 else 'Y'
        for u, (ti, tile, t) in enumerate(self.b_vunits()):
            needs = [Ls[u]] if Ls else []
            if u < self.NV_REG:
                C = self.mk_pv(vr(self.vRET + 4 * (self.KX + u)), vP[Pset] + ti, t, vO[Iset], needs)
            else:
                C = self.mk_pv_lds(u - self.NV_REG, vP[Pset] + ti, t, vO[Iset], needs)
            self.v_reader[u] = C

    def mark(self, name):
        self.marks[name] = len(self.loads)
        if self.c.timing and self.c.stamp_pos is None: self.add_comp(Comp(self.stamp_now, (), 'stamp'))
    def stamp_now(self):
        a = self.a
        k = self.nstamp; self.nstamp += 1
        a.smem(f's_memrealtime s[{sT}:{sT+1}]')
        a.raw('  s_waitcnt lgkmcnt(0)'); a.t += 1; a.lg = []
        a.i(f's_mov_b32 s{STAMP0 + k}, s{sT}')

    def place_before_end(self, L, n):
        self.loads.remove(L); self.loads.insert(len(self.loads) - n, L)

    def build(self):
        c = self.c
        if not c.test_attn: self.mk_b1()
        KL = self.halfB_loadK(0)
        if not c.test_attn:
            cl = self.mk_clrload()
            self.loads.remove(cl); self.loads.insert(c.CLR_POS, cl)
            self.mk_clrcheck(cl)
        VL = self.halfB_loadV(0)
        qg0 = self.mk_qgather(0)
        self.loads.remove(qg0); self.loads.insert(c.QG0_POS, qg0)
        self.mk_acquire(0, qg0)
        self.halfB_qk('X', KL)
        self.mk_softmax('X', 'X', True, HALF_B)
        n0 = len(self.comps)
        self.halfB_pv(0, 'X', VL)
        cB = self.comps[n0:]; del self.comps[n0:]
        self.stream_k(0, 'Y', HALF_A)
        cA = self.comps[n0:]; del self.comps[n0:]
        self.comps += self.interleave(cB, cA, 2)
        qg1 = self.mk_qgather(1)
        self.mk_softmax('Y', 'X', False, HALF_A)
        self.stream_v(0, 'Y', HALF_A)
        self.mk_publish(0)
        self.mark('A')
        self.mk_acquire(1, qg1)
        self.stream_k(1, 'Y', HALF_A)
        self.mk_softmax('Y', 'Y', True, HALF_A)
        self.stream_v(1, 'Y', HALF_A)
        qg2 = self.mk_qgather(2); self.place_before_end(qg2, c.QG_LEAD)
        self.mark('B')
        self.mk_acquire(2, qg2)
        self.halfB_qk('X', None)
        self.mk_softmax('X', 'X', True, HALF_B)
        self.halfB_pv(2, 'X', None)
        KL = self.halfB_loadK(1)
        VL = self.halfB_loadV(1)
        self.mk_acquire(1, None)
        self.halfB_qk('Y', KL)
        self.mk_softmax('Y', 'Y', False, HALF_B)
        self.halfB_pv(1, 'Y', VL)
        self.mk_publish(1)
        self.mark('C')
        self.mk_acquire(2, None)
        self.stream_k(2, 'X', HALF_A)
        self.mk_softmax('X', 'X', False, HALF_A)
        self.stream_v(2, 'X', HALF_A)
        qg3 = self.mk_qgather(3); self.place_before_end(qg3, c.QG_LEAD)
        self.mk_publish(2)
        self.mark('D')
        self.mk_acquire(3, qg3)
        n0 = len(self.comps)
        self.stream_k(3, 'X', HALF_A)
        compsA = self.comps[n0:]; del self.comps[n0:]
        self.halfB_qk('Y', None)
        self.mk_softmax('Y', 'Y', True, HALF_B)
        self.halfB_pv(3, 'Y', None)
        compsB = self.comps[n0:]; del self.comps[n0:]
        self.comps += self.interleave(compsB, compsA, 3)
        self.mk_softmax('X', 'Y', False, HALF_A)
        self.stream_v(3, 'X', HALF_A)
        self.mk_publish(3)
        self.mark('E')

    def interleave(self, main, other, every):
        ia = 0; merged = []
        for k, C in enumerate(main):
            merged.append(C)
            if k % every == every - 1 and ia < len(other):
                merged.append(other[ia]); ia += 1
        merged += other[ia:]
        return merged

    def emit_comp(self, C):
        for L in C.needs:
            assert L.vid is not None, ('load not issued before its consumer', C.name, L.name)
            self.a.wait_vm(L.vid)
        C.emit(); C.done = True

    def schedule(self):
        c = self.c; a = self.a
        ci = 0; comps = self.comps
        for li, L in enumerate(self.loads):
            L.idx = li
            if L.after is not None and not L.after.done:
                while not L.after.done:
                    self.emit_comp(comps[ci]); ci += 1
            if li >= max(c.D, c.BURST):
                a.wait_vm(self.loads[li - c.D].vid)
            L.vid = L.emit()
            if c.stamp_pos is not None and li in c.stamp_pos: self.stamp_now()
            n = 0
            while ci < len(comps) and n < c.budget:
                C = comps[ci]
                if all(x.vid is not None and a.vm_done(x.vid) for x in C.needs):
                    self.emit_comp(C); ci += 1; n += 1
                else:
                    break
        while ci < len(comps):
            self.emit_comp(comps[ci]); ci += 1

    def prologue(self):
        a = self.a; c = self.c
        l = T + 8
        a.i(f'v_mov_b32 v{l}, v0')
        a.i(f's_mul_i32 s{sT}, s{sS}, 292')
        a.i(f's_min_u32 s{sT+1}, s{sS}, 4')
        a.i(f's_add_u32 s{sT}, s{sT}, s{sT+1}')
        a.i(f's_lshl_b32 s{sT}, s{sT}, 11')
        a.i(f's_lshl_b32 s{sT+1}, s{sH}, 22')
        a.i(f's_add_u32 s{sT}, s{sT}, s{sT+1}')
        a.i(f's_lshl_b32 s{sT+1}, s{sWave}, 14')
        a.i(f's_add_u32 s{sB[0]}, s{sT}, s{sT+1}')
        a.i(f's_add_u32 s{sB[1]}, s{sB[0]}, 0x8000000')
        a.i(f's_lshl_b32 s{sT+1}, s{sWave}, 12')
        a.i(f's_add_u32 s{sBp[0]}, s{sT}, s{sT+1}')
        a.i(f's_add_u32 s{sBp[0]}, s{sBp[0]}, {9 * 65536}')
        a.i(f's_add_u32 s{sBp[1]}, s{sBp[0]}, 0x8000000')
        a.i(f's_cmp_lt_u32 s{sS}, 4')
        a.i(f's_cselect_b32 s{sT}, 5, 4')
        a.i(f's_lshl_b32 s{sT+1}, s{sWave}, 1')
        a.i(f's_sub_i32 s{sT}, s{sT}, s{sT+1}')
        a.i(f's_max_i32 s{sT}, s{sT}, 0')
        a.i(f's_min_i32 s{sT}, s{sT}, 2')
        a.i(f's_lshl_b32 s{sNV}, s{sT}, 3')
        a.i(f's_lshl_b32 s{sPidx}, s{sS}, 2')
        a.i(f's_add_u32 s{sPidx}, s{sPidx}, s{sWave}')
        a.i(f's_mul_i32 s{sLdsRet}, s{sWave}, {self.NV_LDS * 1024}')
        a.i(f's_add_u32 s{sLdsRet}, s{sLdsRet}, {L_RET}')
        a.i(f's_lshl_b32 s{sQG}, s{sWave}, 9')
        if L_QG: a.i(f's_add_u32 s{sQG}, s{sQG}, {L_QG}')
        a.i(f'v_lshlrev_b32 v{vL16}, 4, v{l}')
        a.i(f'v_add_u32 v{vLdsRet}, s{sLdsRet}, v{vL16}')
        a.i(f's_sub_u32 s{sLdsRet}, s{sLdsRet}, 4096')
        a.i(f'v_and_b32 v{T}, 7, v{l}')
        a.i(f'v_lshlrev_b32 v{vKoff}, 8, v{T}')
        a.i(f'v_bfe_u32 v{T}, v{l}, 3, 1')
        a.i(f'v_lshl_add_u32 v{vKoff}, v{T}, 6, v{vKoff}')
        a.i(f'v_lshrrev_b32 v{T+1}, 4, v{l}')
        a.i(f'v_lshl_add_u32 v{vKoff}, v{T+1}, 4, v{vKoff}')
        a.i(f'v_and_b32 v{T}, 15, v{l}')
        a.i(f'v_lshlrev_b32 v{vVoff}, 4, v{T}')
        a.i(f'v_lshl_add_u32 v{vV8}, v{T+1}, 11, v{vVoff}')
        a.i(f'v_lshl_add_u32 v{vVoff}, v{T+1}, 12, v{vVoff}')
        a.i(f'v_lshl_add_u32 v{T+2}, v{T}, 2, v{T+1}')
        a.i(f'v_cmp_gt_u32 vcc, s{sNV}, v{T+2}')
        a.i(f'v_cndmask_b32 v{T+2}, 16, v{T+2}, vcc')
        a.i(f'v_lshlrev_b32 v{vBP}, 2, v{T+2}')
        a.i(f'v_and_b32 v{T+2}, 1, v{l}')
        a.i(f'v_lshlrev_b32 v{T+2}, 4, v{T+2}')
        a.i(f'v_mov_b32 v{T+3}, 0xffff')
        a.i(f'v_lshlrev_b32 v{T+3}, v{T+2}, v{T+3}')
        a.i(f'v_lshrrev_b32 v{T+4}, 1, v{T}')
        for r in range(4):
            a.i(f'v_cmp_eq_u32 vcc, {r}, v{T+4}')
            a.i(f'v_cndmask_b32 v{vMask[r]}, 0, v{T+3}, vcc')

    def clear(self):
        a = self.a
        for i in range(4): a.i(f'v_mov_b32 v{T+4+i}, -1')
        a.i(f's_sub_u32 s{sT}, s{sWG}, 32')
        a.i(f's_lshl_b32 s{sT}, s{sT}, 2')
        a.i(f's_add_u32 s{sT}, s{sT}, s{sWave}')
        a.i(f's_mul_i32 s{sT}, s{sT}, 3072')
        for k in range(3):
            vid = a.i(f'buffer_store_dwordx4 v[{T+4}:{T+7}], v{vL16}, {SRD_WS}, s{sT} offen offset:{k*1024} sc1')
            L = Load(None, None, 'CLR'); L.vid = vid; self.pro_loads.append(L)

    def write_stamps(self, extra=()):
        a = self.a
        a.i(f's_lshl_b32 s{sT}, s{sWG}, 2')
        a.i(f's_add_u32 s{sT}, s{sT}, s{sWave}')
        a.i(f's_lshl_b32 s{sT}, s{sT}, 6')
        a.i(f's_add_u32 s{sT}, s{sT}, {W_DBG}')
        a.i(f's_mov_b64 exec, 1')
        a.i(f'v_mov_b32 v{T+1}, 0')
        for k in range(self.nstamp):
            a.i(f'v_mov_b32 v{T}, s{STAMP0 + k}')
            a.i(f'buffer_store_dword v{T}, v{T+1}, {SRD_WS}, s{sT} offen offset:{4*k}')
        a.i(f'v_mov_b32 v{T}, s{sSpin}')
        a.i(f'buffer_store_dword v{T}, v{T+1}, {SRD_WS}, s{sT} offen offset:48')
        a.i(f's_mov_b64 exec, -1')
```

```python
from asmlib import Asm
from common import *

vKoff, vVoff, vV8, vL16, vLdsRet = 0, 1, 2, 3, 4
vBP = 5
vMask = [6, 7, 8, 9]
vL = {'X': 10, 'Y': 11}
vQ = 12
vP = {'X': 20, 'Y': 26}
vO = {'X': 32, 'Y': 36}
T = 40
vACC = [40, 44]
vAT = [48, 52]
vLT = [56, 56]
vRING = 60
NEGINF = 0xff800000

L_QG = 0
L_RET = 2048

def lane(a, r):
    a.i(f'v_lshrrev_b32 v{r}, 4, v{vL16}')

class Load:
    def __init__(self, emit, after=None, name='', w=1.0):
        self.emit = emit; self.after = after; self.name = name; self.vid = None; self.idx = None; self.w = w
class Comp:
    def __init__(self, emit, needs=(), name=''):
        self.emit = emit; self.needs = list(needs); self.name = name; self.done = False

HALF_B = [('F', 0), ('F', 1), ('F', 2), ('F', 3), ('H', 0)]
HALF_A = [('F', 4), ('F', 5), ('F', 6), ('F', 7), ('H', 1), ('P',)]

def k_units(tile):
    n = {'F': 8, 'H': 4, 'P': 2}[tile[0]]
    return [(g, jj) for g in range(n) for jj in range(2)]
def v_units(tile):
    return list(range({'F': 16, 'H': 8, 'P': 4}[tile[0]]))

class Stream:
    def __init__(self, cfg, a):
        self.c = cfg
        self.a = a
        self.loads = []; self.comps = []
        self.pend = []
        self.accsel = 0; self.atsel = 0; self.ltsel = 0
        self.ring = 0
        self.ring_reader = [None] * cfg.NRING
        self.vRET = vRING + 4 * cfg.NRING
        self.NVREG = (256 - self.vRET) // 4
        self.KX = 72 - 64
        self.NV_REG = self.NVREG - self.KX
        self.NV_LDS = 72 - self.NV_REG
        assert L_RET + 4 * self.NV_LDS * 1024 <= 163840, (self.NV_LDS,)
        self.k_reader = [None] * 72
        self.v_reader = [None] * 72
        self.curK = None; self.curV = None
        self.marks = {}
        self.nstamp = 0
        self.pro_loads = []
        self.uid = 0
        self.curpol = cfg.pol

    def set_off(self, which, b, tile, const):
        a = self.a
        base = sBp[b] if tile[0] == 'P' else sB[b]
        key = (base, const)
        reg = sOffK if which == 'K' else sOffV
        cur = self.curK if which == 'K' else self.curV
        if cur != key:
            if const == 0: a.i(f's_mov_b32 s{reg}, s{base}')
            else: a.i(f's_add_u32 s{reg}, s{base}, {const}')
            if which == 'K': self.curK = key
            else: self.curV = key
        return f's{reg}'

    def add_load(self, L): self.loads.append(L); return L
    def add_comp(self, C): self.comps.append(C); return C
    def ring_slot(self):
        s = self.ring % self.c.NRING; self.ring += 1
        return s

    def k_addr(self, tile, g, jj):
        if tile[0] == 'F': return tile[1] * 65536 + (g >> 1) * 4096, (g & 1) * 2048 + jj * 128
        if tile[0] == 'H': return 8 * 65536 + tile[1] * 8192 + (g >> 1) * 4096, (g & 1) * 2048 + jj * 128
        return 0, g * 2048 + jj * 128
    def v_addr(self, tile, t):
        if tile[0] == 'F': return tile[1] * 65536, t * 256, vVoff
        if tile[0] == 'H': return 8 * 65536 + tile[1] * 8192, t * 256, vV8
        return 0, t * 1024, vL16
    def k_place(self, tile, g):
        if tile[0] == 'F': return g >> 1, g & 1
        if tile[0] == 'H': return g, 0
        return 0, g

    def mk_kload(self, b, tile, g, jj, dst, after):
        pol = self.curpol
        def emit():
            const, imm = self.k_addr(tile, g, jj)
            so = self.set_off('K', b, tile, const)
            return self.a.i(f'buffer_load_dwordx4 {dst}, v{vKoff}, {SRD_K}, {so} offen offset:{imm}{pol}')
        return self.add_load(Load(emit, after, f'K b{b} {tile} g{g} j{jj}'))
    def mk_vload(self, b, tile, t, dst, after):
        pol = self.curpol
        def emit():
            const, imm, vo = self.v_addr(tile, t)
            so = self.set_off('V', b, tile, const)
            return self.a.i(f'buffer_load_dwordx4 {dst}, v{vo}, {SRD_V}, {so} offen offset:{imm}{pol}')
        return self.add_load(Load(emit, after, f'V b{b} {tile} u{t}'))
    def mk_vload_lds(self, b, tile, t, slot, after):
        def emit():
            const, imm, vo = self.v_addr(tile, t)
            so = self.set_off('V', b, tile, const)
            self.a.i(f's_add_u32 m0, s{sLdsRet}, {slot * 1024 - imm + 4096}')
            return self.a.i(f'buffer_load_dwordx4 v{vo}, {SRD_V}, {so} offen offset:{imm}{self.c.pol} lds')
        return self.add_load(Load(emit, after, f'VL b{b} {tile} u{t}'))

    def flush_adds(self, acc=None):
        a = self.a
        keep = []
        for (ac, S, row, hh) in self.pend:
            if acc is None or ac == acc:
                if hh == 0:
                    a.i(f'v_add_f32_dpp v{S}, v{ac+1}, v{ac} row_ror:8 row_mask:{hex(1 << row)} bank_mask:0x3')
                else:
                    a.i(f'v_add_f32_dpp v{S}, v{ac}, v{ac+1} row_ror:8 row_mask:{hex(1 << row)} bank_mask:0xc')
            else:
                keep.append((ac, S, row, hh))
        self.pend = keep

    def mk_qk(self, B0, B1, S, tile, g, needs):
        def emit():
            a = self.a
            if g == 0 and tile[0] in 'HP':
                a.i(f'v_mov_b32 v{S}, {hex(NEGINF)}')
            ac = vACC[self.accsel]; self.accsel ^= 1
            self.flush_adds(ac)
            a.i(f'v_mfma_f32_16x16x32_bf16 {vr(ac)}, {vr(vQ)}, {B0}, 0')
            a.i(f'v_mfma_f32_16x16x32_bf16 {vr(ac)}, {vr(vQ+4)}, {B1}, {vr(ac)}')
            row, hh = self.k_place(tile, g)
            self.pend.append((ac, S, row, hh))
        return self.add_comp(Comp(emit, needs, f'QK {tile} g{g}'))

    def pv_core(self, B, P, t, O, mid=None):
        a = self.a
        at = vAT[self.atsel]; self.atsel ^= 1
        for r in range(4):
            a.i(f'v_and_b32_dpp v{at+r}, v{P}, v{vMask[r]} row_newbcast:{t} row_mask:0xf bank_mask:0xf')
        if mid: mid()
        a.i(f'v_mfma_f32_16x16x32_bf16 {vr(O)}, {vr(at)}, {B}, {vr(O)}')
    def mk_pv(self, B, P, t, O, needs):
        return self.add_comp(Comp(lambda: self.pv_core(B, P, t, O), needs, f'PV t{t}'))
    def mk_pv_lds(self, slot, P, t, O, needs):
        def emit():
            a = self.a
            lt = vLT[self.ltsel]; self.ltsel ^= 1
            lid = a.i(f'ds_read_b128 {vr(lt)}, v{vLdsRet} offset:{slot * 1024}')
            self.pv_core(vr(lt), P, t, O, mid=lambda: a.wait_lg(lid))
        return self.add_comp(Comp(emit, needs, f'PVL t{t}'))

    def mk_softmax(self, Pset, Iset, first, tiles):
        n = len(tiles)
        def emit():
            a = self.a
            self.flush_adds()
            S = vP[Pset]; O = vO[Iset]; Lr = vL[Iset]; m = sM[Iset]
            t0, t1, t2, t3 = T, T+1, T+2, T+3
            if tiles[-1][0] == 'P':
                k = n - 1
                lid = a.i(f'ds_bpermute_b32 v{S+k}, v{vBP}, v{S+k}')
                a.wait_lg(lid)
            for i in range(n): a.i(f'v_mul_f32 v{S+i}, {hex(f2u(SCALE))}, v{S+i}')
            a.i(f'v_max3_f32 v{t0}, v{S}, v{S+1}, v{S+2}')
            a.i(f'v_max3_f32 v{t0}, v{t0}, v{S+3}, v{S+4}')
            if n == 6: a.i(f'v_max_f32 v{t0}, v{t0}, v{S+5}')
            if not first: a.i(f'v_max_f32 v{t0}, s{m}, v{t0}')
            wave_reduce_multi(a, 'v_max_f32', [t0])
            a.i(f'v_readlane_b32 s{sT}, v{t0}, 63')
            if not first:
                a.i(f'v_mov_b32 v{t1}, s{sT}')
                a.i(f'v_sub_f32 v{t1}, s{m}, v{t1}')
                a.i(f'v_exp_f32 v{t1}, v{t1}')
                for i in range(4): a.i(f'v_mul_f32 v{O+i}, v{O+i}, v{t1}')
                a.i(f'v_mul_f32 v{Lr}, v{Lr}, v{t1}')
            else:
                for i in range(4): a.i(f'v_mov_b32 v{O+i}, 0')
            a.i(f's_mov_b32 s{m}, s{sT}')
            for i in range(n): a.i(f'v_subrev_f32 v{S+i}, s{m}, v{S+i}')
            for i in range(n): a.i(f'v_exp_f32 v{S+i}, v{S+i}')
            a.i(f'v_add_f32 v{t2}, v{S}, v{S+1}')
            a.i(f'v_add_f32 v{t3}, v{S+2}, v{S+3}')
            a.i(f'v_add_f32 v{t2}, v{t2}, v{S+4}')
            if n == 6: a.i(f'v_add_f32 v{t3}, v{t3}, v{S+5}')
            if first:
                a.i(f'v_add_f32 v{Lr}, v{t2}, v{t3}')
            else:
                a.i(f'v_add_f32 v{t2}, v{t2}, v{t3}')
                a.i(f'v_add_f32 v{Lr}, v{Lr}, v{t2}')
            for i in range(n): a.i(f'v_cvt_pk_bf16_f32 v{S+i}, v{S+i}, v{S+i}')
        return self.add_comp(Comp(emit, (), f'softmax {Pset} {Iset} {first}'))

    def cond_begin(self):
        self.a.flush_hazards()
        self._snap = (list(self.a.vm), list(self.a.lg))
    def cond_end(self):
        self.a.flush_hazards()
        self.a.vm, self.a.lg = self._snap

    def mk_publish(self, inst):
        Iset = 'X' if (inst & 1) == 0 else 'Y'
        def emit():
            a = self.a
            O = vO[Iset]; Lr = vL[Iset]; m = sM[Iset]
            t = T
            wave_reduce_multi(a, 'v_add_f32', [Lr])
            lane(a, t+5)
            a.i(f'v_and_b32 v{t}, 15, v{t+5}')
            a.i(f'v_lshlrev_b32 v{t}, 5, v{t}')
            a.i(f'v_lshrrev_b32 v{t+1}, 4, v{t+5}')
            a.i(f'v_lshl_add_u32 v{t}, v{t+1}, 4, v{t}')
            a.i(f's_mul_i32 s{sT}, s{sH}, {NP}')
            a.i(f's_add_u32 s{sT}, s{sT}, s{sPidx}')
            a.i(f's_lshl_b32 s{sT}, s{sT}, 9')
            a.i(f's_add_u32 s{sT}, s{sT}, {W_PO + inst * 32 * NP * 512}')
            a.i(f's_mov_b32 exec_hi, 0')
            a.i(f'buffer_store_dwordx4 {vr(O)}, v{t}, {SRD_WS}, s{sT} offen sc1')
            a.i(f's_lshl_b32 s{sT}, s{sH}, 8')
            a.i(f's_lshl_b32 s{sT+1}, s{sPidx}, 3')
            a.i(f's_add_u32 s{sT}, s{sT}, s{sT+1}')
            a.i(f's_add_u32 s{sT}, s{sT}, {W_PML + inst * 8192}')
            a.i(f's_mov_b64 exec, -1')
            a.i(f'v_mov_b32 v{t+2}, s{m}')
            a.i(f'v_mov_b32 v{t+3}, v{Lr}')
            a.i(f'v_mov_b32 v{t+4}, 0')
            a.i(f's_mov_b32 exec_lo, 0')
            a.i(f's_mov_b32 exec_hi, 0x80000000')
            a.i(f'buffer_store_dwordx2 v[{t+2}:{t+3}], v{t+4}, {SRD_WS}, s{sT} offen sc1')
            a.i(f's_mov_b64 exec, -1')
        return self.add_comp(Comp(emit, (), f'publish {inst}'))

    def mk_qgather(self, inst):
        def emit():
            a = self.a
            a.i(f's_lshl_b32 s{sT}, s{sH}, 8')
            a.i(f's_add_u32 s{sT}, s{sT}, {W_Q + inst * 8192}')
            a.i(f's_add_u32 m0, s{sQG}, {(inst & 1) * 256}')
            a.i(f'v_lshrrev_b32 v{T+19}, 2, v{vL16}')
            return a.i(f'buffer_load_dword v{T+19}, {SRD_WS}, s{sT} offen sc1 lds')
        return self.add_load(Load(emit, None, f'QG {inst}'))
    def q_read(self, inst):
        a = self.a; t = T
        lane(a, t+1)
        a.i(f'v_and_b32 v{t}, 1, v{t+1}')
        a.i(f'v_lshlrev_b32 v{t}, 6, v{t}')
        a.i(f'v_lshrrev_b32 v{t+1}, 4, v{t+1}')
        a.i(f'v_lshl_add_u32 v{t}, v{t+1}, 4, v{t}')
        a.i(f'v_add_u32 v{t}, s{sQG}, v{t}')
        a.i(f'ds_read_b128 {vr(vQ)}, v{t} offset:{(inst & 1) * 256}')
        lid = a.i(f'ds_read_b128 {vr(vQ+4)}, v{t} offset:{(inst & 1) * 256 + 128}')
        a.wait_lg(lid)
    def q_bad(self):
        a = self.a; t = T + 2
        a.i(f'v_max3_u32 v{t}, v{vQ}, v{vQ+1}, v{vQ+2}')
        a.i(f'v_max3_u32 v{t}, v{t}, v{vQ+3}, v{vQ+4}')
        a.i(f'v_max3_u32 v{t}, v{t}, v{vQ+5}, v{vQ+6}')
        a.i(f'v_max_u32 v{t}, v{t}, v{vQ+7}')
        a.i(f'v_cmp_eq_u32 vcc, -1, v{t}')
        a.i(f's_cmp_lg_u64 vcc, 0')
    def mk_acquire(self, inst, gather):
        def emit():
            a = self.a
            self.flush_adds()
            self.q_read(inst)
            if gather is not None and not self.c.test_attn:
                ok = a.newlabel('qok'); lp = a.newlabel('qretry')
                self.q_bad()
                self.cond_begin()
                a.i(f's_cbranch_scc0 {ok}')
                a.label(lp)
                a.i('s_sleep 2')
                a.i(f's_lshl_b32 s{sT}, s{sH}, 8')
                a.i(f's_add_u32 s{sT}, s{sT}, {W_Q + inst * 8192}')
                a.i(f's_add_u32 m0, s{sQG}, {(inst & 1) * 256}')
                a.i(f'v_lshrrev_b32 v{T+19}, 2, v{vL16}')
                a.i(f'buffer_load_dword v{T+19}, {SRD_WS}, s{sT} offen sc1 lds')
                a.i('s_waitcnt vmcnt(0)')
                self.q_read(inst)
                self.q_bad()
                a.i(f's_cbranch_scc0 {ok}')
                a.i(f's_sub_u32 s{sSpin}, s{sSpin}, 1')
                a.i(f's_cmp_gt_i32 s{sSpin}, 0')
                a.i(f's_cbranch_scc1 {lp}')
                self.cond_end()
                a.label(ok)
        return self.add_comp(Comp(emit, [gather] if gather else [], f'acquire {inst}'))

    def mk_b1(self):
        def emit():
            a = self.a
            a.i('s_barrier')
            skip = a.newlabel('b1')
            a.i(f's_cmp_eq_u32 s{sWave}, 0')
            self.cond_begin()
            a.i(f's_cbranch_scc0 {skip}')
            a.i(f'v_mov_b32 v{T}, 0')
            a.i(f'v_mov_b32 v{T+1}, 1')
            a.i('s_mov_b64 exec, 1')
            a.i(f'global_atomic_add v{T}, v{T+1}, s[{P_DBG}:{P_DBG+1}]')
            a.i('s_mov_b64 exec, -1')
            self.cond_end()
            a.label(skip)
        return self.add_comp(Comp(emit, self.pro_loads, 'B1'))
    def mk_clrload(self):
        def emit():
            a = self.a
            a.i(f'v_mov_b32 v{T+18}, 0')
            return a.i(f'global_load_dword v{T+19}, v{T+18}, s[{P_DBG}:{P_DBG+1}] sc1')
        return self.add_load(Load(emit, None, 'CLR'))
    def mk_clrcheck(self, cl):
        def emit():
            a = self.a
            ok = a.newlabel('clok'); lp = a.newlabel('clp')
            a.i(f'v_readfirstlane_b32 s{sT}, v{T+19}')
            a.i(f's_cmp_eq_u32 s{sT}, 224')
            self.cond_begin()
            a.i(f's_cbranch_scc1 {ok}')
            a.label(lp)
            a.i(f'global_load_dword v{T+19}, v{T+18}, s[{P_DBG}:{P_DBG+1}] sc1')
            a.i('s_waitcnt vmcnt(0)')
            a.i(f'v_readfirstlane_b32 s{sT}, v{T+19}')
            a.i(f's_cmp_eq_u32 s{sT}, 224')
            a.i(f's_cbranch_scc1 {ok}')
            a.i(f's_sub_u32 s{sSpin}, s{sSpin}, 1')
            a.i(f's_cmp_gt_i32 s{sSpin}, 0')
            a.i(f's_cbranch_scc1 {lp}')
            self.cond_end()
            a.label(ok)
        return self.add_comp(Comp(emit, [cl], 'clrcheck'))

    def kslot(self, u):
        return ar(4 * u) if u < 64 else vr(self.vRET + 4 * (u - 64))
    def stream_k(self, inst, Pset, tiles):
        b = inst & 1
        cnt = 0
        for ti, tile in enumerate(tiles):
            ku = k_units(tile)
            for gi in range(0, len(ku), 2):
                g = ku[gi][0]
                ls = []; regs = []
                self.curpol = self.c.polA[inst] if cnt < self.c.mallK[inst & 1] else ' nt'
                cnt += 2
                for jj in range(2):
                    s = self.ring_slot()
                    ls.append(self.mk_kload(b, tile, g, jj, vr(vRING + 4*s), self.ring_reader[s])); regs.append(s)
                C = self.mk_qk(vr(vRING + 4*regs[0]), vr(vRING + 4*regs[1]), vP[Pset] + ti, tile, g, ls)
                for s in regs: self.ring_reader[s] = C
    def stream_v(self, inst, Pset, tiles):
        b = inst & 1
        cnt = 0
        Iset = 'X' if b == 0 else 'Y'
        for ti, tile in enumerate(tiles):
            for t in v_units(tile):
                self.curpol = self.c.polA[inst] if cnt < self.c.mallV[inst & 1] else ' nt'
                cnt += 1
                s = self.ring_slot()
                L = self.mk_vload(b, tile, t, vr(vRING + 4*s), self.ring_reader[s])
                self.ring_reader[s] = self.mk_pv(vr(vRING + 4*s), vP[Pset] + ti, t, vO[Iset], [L])
    def b_kunits(self):
        out = []
        for ti, tile in enumerate(HALF_B):
            for (g, jj) in k_units(tile): out.append((ti, tile, g, jj))
        assert len(out) == 72
        return out
    def b_vunits(self):
        out = []
        for ti, tile in enumerate(HALF_B):
            for t in v_units(tile): out.append((ti, tile, t))
        assert len(out) == 72
        return out
    def halfB_loadK(self, b):
        self.curpol = self.c.pol
        return [self.mk_kload(b, tile, g, jj, self.kslot(u), self.k_reader[u]) for u, (ti, tile, g, jj) in enumerate(self.b_kunits())]
    def halfB_loadV(self, b):
        self.curpol = self.c.pol
        Ls = []
        for u, (ti, tile, t) in enumerate(self.b_vunits()):
            if u < self.NV_REG:
                Ls.append(self.mk_vload(b, tile, t, vr(self.vRET + 4 * (self.KX + u)), self.v_reader[u]))
            else:
                Ls.append(self.mk_vload_lds(b, tile, t, u - self.NV_REG, self.v_reader[u]))
        return Ls
    def halfB_qk(self, Pset, Ls):
        ku = self.b_kunits()
        for u in range(0, 72, 2):
            ti, tile, g, _ = ku[u]
            needs = [Ls[u], Ls[u+1]] if Ls else []
            C = self.mk_qk(self.kslot(u), self.kslot(u + 1), vP[Pset] + ti, tile, g, needs)
            self.k_reader[u] = C; self.k_reader[u+1] = C
    def halfB_pv(self, inst, Pset, Ls):
        Iset = 'X' if (inst & 1) == 0 else 'Y'
        for u, (ti, tile, t) in enumerate(self.b_vunits()):
            needs = [Ls[u]] if Ls else []
            if u < self.NV_REG:
                C = self.mk_pv(vr(self.vRET + 4 * (self.KX + u)), vP[Pset] + ti, t, vO[Iset], needs)
            else:
                C = self.mk_pv_lds(u - self.NV_REG, vP[Pset] + ti, t, vO[Iset], needs)
            self.v_reader[u] = C

    def mark(self, name):
        self.marks[name] = len(self.loads)
        if self.c.timing and self.c.stamp_pos is None: self.add_comp(Comp(self.stamp_now, (), 'stamp'))
    def stamp_now(self):
        a = self.a
        k = self.nstamp; self.nstamp += 1
        a.smem(f's_memrealtime s[{sT}:{sT+1}]')
        a.raw('  s_waitcnt lgkmcnt(0)'); a.t += 1; a.lg = []
        a.i(f's_mov_b32 s{STAMP0 + k}, s{sT}')

    def place_before_end(self, L, n):
        self.loads.remove(L); self.loads.insert(len(self.loads) - n, L)

    def build(self):
        c = self.c
        if not c.test_attn: self.mk_b1()
        KL = self.halfB_loadK(0)
        if not c.test_attn:
            cl = self.mk_clrload()
            self.loads.remove(cl); self.loads.insert(c.CLR_POS, cl)
            self.mk_clrcheck(cl)
        VL = self.halfB_loadV(0)
        qg0 = self.mk_qgather(0)
        self.loads.remove(qg0); self.loads.insert(c.QG0_POS, qg0)
        self.mk_acquire(0, qg0)
        self.halfB_qk('X', KL)
        self.mk_softmax('X', 'X', True, HALF_B)
        n0 = len(self.comps)
        self.halfB_pv(0, 'X', VL)
        cB = self.comps[n0:]; del self.comps[n0:]
        self.stream_k(0, 'Y', HALF_A)
        cA = self.comps[n0:]; del self.comps[n0:]
        self.comps += self.interleave(cB, cA, 2)
        qg1 = self.mk_qgather(1)
        self.mk_softmax('Y', 'X', False, HALF_A)
        self.stream_v(0, 'Y', HALF_A)
        self.mk_publish(0)
        self.mark('A')
        self.mk_acquire(1, qg1)
        self.stream_k(1, 'Y', HALF_A)
        self.mk_softmax('Y', 'Y', True, HALF_A)
        self.stream_v(1, 'Y', HALF_A)
        qg2 = self.mk_qgather(2); self.place_before_end(qg2, c.QG_LEAD)
        self.mark('B')
        self.mk_acquire(2, qg2)
        self.halfB_qk('X', None)
        self.mk_softmax('X', 'X', True, HALF_B)
        self.halfB_pv(2, 'X', None)
        KL = self.halfB_loadK(1)
        VL = self.halfB_loadV(1)
        self.mk_acquire(1, None)
        self.halfB_qk('Y', KL)
        self.mk_softmax('Y', 'Y', False, HALF_B)
        self.halfB_pv(1, 'Y', VL)
        self.mk_publish(1)
        self.mark('C')
        self.mk_acquire(2, None)
        self.stream_k(2, 'X', HALF_A)
        self.mk_softmax('X', 'X', False, HALF_A)
        self.stream_v(2, 'X', HALF_A)
        qg3 = self.mk_qgather(3); self.place_before_end(qg3, c.QG_LEAD)
        self.mk_publish(2)
        self.mark('D')
        self.mk_acquire(3, qg3)
        n0 = len(self.comps)
        self.stream_k(3, 'X', HALF_A)
        compsA = self.comps[n0:]; del self.comps[n0:]
        self.halfB_qk('Y', None)
        self.mk_softmax('Y', 'Y', True, HALF_B)
        self.halfB_pv(3, 'Y', None)
        compsB = self.comps[n0:]; del self.comps[n0:]
        self.comps += self.interleave(compsB, compsA, 3)
        self.mk_softmax('X', 'Y', False, HALF_A)
        self.stream_v(3, 'X', HALF_A)
        self.mk_publish(3)
        self.mark('E')

    def interleave(self, main, other, every):
        ia = 0; merged = []
        for k, C in enumerate(main):
            merged.append(C)
            if k % every == every - 1 and ia < len(other):
                merged.append(other[ia]); ia += 1
        merged += other[ia:]
        return merged

    def emit_comp(self, C):
        for L in C.needs:
            assert L.vid is not None, ('load not issued before its consumer', C.name, L.name)
            self.a.wait_vm(L.vid)
        C.emit(); C.done = True

    def schedule(self):
        c = self.c; a = self.a
        ci = 0; comps = self.comps
        for li, L in enumerate(self.loads):
            L.idx = li
            if L.after is not None and not L.after.done:
                while not L.after.done:
                    self.emit_comp(comps[ci]); ci += 1
            if li >= max(c.D, c.BURST):
                a.wait_vm(self.loads[li - c.D].vid)
            L.vid = L.emit()
            if c.stamp_pos is not None and li in c.stamp_pos: self.stamp_now()
            n = 0
            while ci < len(comps) and n < c.budget:
                C = comps[ci]
                if all(x.vid is not None and a.vm_done(x.vid) for x in C.needs):
                    self.emit_comp(C); ci += 1; n += 1
                else:
                    break
        while ci < len(comps):
            self.emit_comp(comps[ci]); ci += 1

    def prologue(self):
        a = self.a; c = self.c
        l = T + 8
        a.i(f'v_mov_b32 v{l}, v0')
        a.i(f's_mul_i32 s{sT}, s{sS}, 292')
        a.i(f's_min_u32 s{sT+1}, s{sS}, 4')
        a.i(f's_add_u32 s{sT}, s{sT}, s{sT+1}')
        a.i(f's_lshl_b32 s{sT}, s{sT}, 11')
        a.i(f's_lshl_b32 s{sT+1}, s{sH}, 22')
        a.i(f's_add_u32 s{sT}, s{sT}, s{sT+1}')
        a.i(f's_lshl_b32 s{sT+1}, s{sWave}, 14')
        a.i(f's_add_u32 s{sB[0]}, s{sT}, s{sT+1}')
        a.i(f's_add_u32 s{sB[1]}, s{sB[0]}, 0x8000000')
        a.i(f's_lshl_b32 s{sT+1}, s{sWave}, 12')
        a.i(f's_add_u32 s{sBp[0]}, s{sT}, s{sT+1}')
        a.i(f's_add_u32 s{sBp[0]}, s{sBp[0]}, {9 * 65536}')
        a.i(f's_add_u32 s{sBp[1]}, s{sBp[0]}, 0x8000000')
        a.i(f's_cmp_lt_u32 s{sS}, 4')
        a.i(f's_cselect_b32 s{sT}, 5, 4')
        a.i(f's_lshl_b32 s{sT+1}, s{sWave}, 1')
        a.i(f's_sub_i32 s{sT}, s{sT}, s{sT+1}')
        a.i(f's_max_i32 s{sT}, s{sT}, 0')
        a.i(f's_min_i32 s{sT}, s{sT}, 2')
        a.i(f's_lshl_b32 s{sNV}, s{sT}, 3')
        a.i(f's_lshl_b32 s{sPidx}, s{sS}, 2')
        a.i(f's_add_u32 s{sPidx}, s{sPidx}, s{sWave}')
        a.i(f's_mul_i32 s{sLdsRet}, s{sWave}, {self.NV_LDS * 1024}')
        a.i(f's_add_u32 s{sLdsRet}, s{sLdsRet}, {L_RET}')
        a.i(f's_lshl_b32 s{sQG}, s{sWave}, 9')
        if L_QG: a.i(f's_add_u32 s{sQG}, s{sQG}, {L_QG}')
        a.i(f'v_lshlrev_b32 v{vL16}, 4, v{l}')
        a.i(f'v_add_u32 v{vLdsRet}, s{sLdsRet}, v{vL16}')
        a.i(f's_sub_u32 s{sLdsRet}, s{sLdsRet}, 4096')
        a.i(f'v_and_b32 v{T}, 7, v{l}')
        a.i(f'v_lshlrev_b32 v{vKoff}, 8, v{T}')
        a.i(f'v_bfe_u32 v{T}, v{l}, 3, 1')
        a.i(f'v_lshl_add_u32 v{vKoff}, v{T}, 6, v{vKoff}')
        a.i(f'v_lshrrev_b32 v{T+1}, 4, v{l}')
        a.i(f'v_lshl_add_u32 v{vKoff}, v{T+1}, 4, v{vKoff}')
        a.i(f'v_and_b32 v{T}, 15, v{l}')
        a.i(f'v_lshlrev_b32 v{vVoff}, 4, v{T}')
        a.i(f'v_lshl_add_u32 v{vV8}, v{T+1}, 11, v{vVoff}')
        a.i(f'v_lshl_add_u32 v{vVoff}, v{T+1}, 12, v{vVoff}')
        a.i(f'v_lshl_add_u32 v{T+2}, v{T}, 2, v{T+1}')
        a.i(f'v_cmp_gt_u32 vcc, s{sNV}, v{T+2}')
        a.i(f'v_cndmask_b32 v{T+2}, 16, v{T+2}, vcc')
        a.i(f'v_lshlrev_b32 v{vBP}, 2, v{T+2}')
        a.i(f'v_and_b32 v{T+2}, 1, v{l}')
        a.i(f'v_lshlrev_b32 v{T+2}, 4, v{T+2}')
        a.i(f'v_mov_b32 v{T+3}, 0xffff')
        a.i(f'v_lshlrev_b32 v{T+3}, v{T+2}, v{T+3}')
        a.i(f'v_lshrrev_b32 v{T+4}, 1, v{T}')
        for r in range(4):
            a.i(f'v_cmp_eq_u32 vcc, {r}, v{T+4}')
            a.i(f'v_cndmask_b32 v{vMask[r]}, 0, v{T+3}, vcc')

    def clear(self):
        a = self.a
        for i in range(4): a.i(f'v_mov_b32 v{T+4+i}, -1')
        a.i(f's_sub_u32 s{sT}, s{sWG}, 32')
        a.i(f's_lshl_b32 s{sT}, s{sT}, 2')
        a.i(f's_add_u32 s{sT}, s{sT}, s{sWave}')
        a.i(f's_mul_i32 s{sT}, s{sT}, 3072')
        for k in range(3):
            vid = a.i(f'buffer_store_dwordx4 v[{T+4}:{T+7}], v{vL16}, {SRD_WS}, s{sT} offen offset:{k*1024} sc1')
            L = Load(None, None, 'CLR'); L.vid = vid; self.pro_loads.append(L)

    def write_stamps(self, extra=()):
        a = self.a
        a.i(f's_lshl_b32 s{sT}, s{sWG}, 2')
        a.i(f's_add_u32 s{sT}, s{sT}, s{sWave}')
        a.i(f's_lshl_b32 s{sT}, s{sT}, 6')
        a.i(f's_add_u32 s{sT}, s{sT}, {W_DBG}')
        a.i(f's_mov_b64 exec, 1')
        a.i(f'v_mov_b32 v{T+1}, 0')
        for k in range(self.nstamp):
            a.i(f'v_mov_b32 v{T}, s{STAMP0 + k}')
            a.i(f'buffer_store_dword v{T}, v{T+1}, {SRD_WS}, s{sT} offen offset:{4*k}')
        a.i(f'v_mov_b32 v{T}, s{sSpin}')
        a.i(f'buffer_store_dword v{T}, v{T+1}, {SRD_WS}, s{sT} offen offset:48')
        a.i(f's_mov_b64 exec, -1')
```

```python
from asmlib import Asm
from common import *

vLane, vL16, vL4 = 0, 1, 2
vG, vN = 3, 4
vCSQ = [5, 6]
vCSG, vCSU = 7, 8
vAaddr = 9
vZ = 10
T = 12
aWQ, aWO = 0, 128
vWG, vWU, vWD = 64, 128, 192
sFv = 41
sXB = 42
sFsz = 3

L_XB = 0
L_OB = 4096
L_OH = 8192
L_ZB = 9216
L_TMP = 17408

class Service:
    def __init__(self, cfg, a, stampfn):
        self.c = cfg; self.a = a; self.stamp = stampfn
        self.slp = cfg.SLEEP

    def spin_tail(self, lp):
        a = self.a
        a.i(f's_sub_u32 s{sSpin}, s{sSpin}, 1')
        a.i(f's_cmp_gt_i32 s{sSpin}, 0')
        a.i(f's_cbranch_scc1 {lp}')

    def srd_t(self, ptr, size):
        a = self.a
        a.i(f's_mov_b32 s20, s{ptr}')
        a.i(f's_and_b32 s21, s{ptr+1}, 0xffff')
        a.i(f's_mov_b32 s22, {size}')
        a.i(f's_mov_b32 s23, 0x20000')

    def wait_all(self):
        self.a.i('s_waitcnt vmcnt(0) lgkmcnt(0)'); self.a.vm = []; self.a.lg = []

    def stage(self, nunits, voff_reg, soff_init, soff_step, lds0):
        a = self.a
        for k in range(nunits):
            a.i(f's_mov_b32 m0, s{sT+5}')
            a.i(f'buffer_load_dwordx4 v{voff_reg}, {SRD_T}, s{sT+4} offen{self.c.pol_w} lds')
            if k + 1 < nunits:
                a.i(f's_add_u32 s{sT+4}, s{sT+4}, {soff_step}')
                a.i(f's_add_u32 s{sT+5}, s{sT+5}, 1024')
            if len(a.vm) >= 48:
                a.wait_vm(a.vm[15])

    def trread(self, dsts, addr_regs):
        a = self.a
        for (d0, d1, ad, o1, o2) in dsts:
            a.i(f'ds_read_b64_tr_b16 {d0}, v{ad} offset:{o1}')
            a.i(f'ds_read_b64_tr_b16 {d1}, v{ad} offset:{o2}')
            if len(a.lg) >= 12:
                a.wait_lg(a.lg[3])
        a.wait_lg_all()

    def colsum(self, Bregs, dst, ones):
        a = self.a
        acc = T + 8
        for j, B in enumerate(Bregs):
            c = '0' if j == 0 else vr(acc)
            a.i(f'v_mfma_f32_16x16x32_bf16 {vr(acc)}, {vr(ones)}, {B}, {c}')
        a.i(f'v_mov_b32 v{dst}, v{acc}')

    def init(self):
        a = self.a; c = self.c
        l = vLane
        a.i(f'v_lshlrev_b32 v{vL16}, 4, v{l}')
        a.i(f'v_lshlrev_b32 v{vL4}, 2, v{l}')
        a.i(f'v_lshrrev_b32 v{vG}, 4, v{l}')
        a.i(f'v_and_b32 v{vN}, 15, v{l}')
        a.i(f'v_mov_b32 v{vZ}, 0')
        a.i(f's_lshl_b32 s{sXB}, s{sWave}, 10')
        if L_XB: a.i(f's_add_u32 s{sXB}, s{sXB}, {L_XB}')
        a.i(f'v_lshlrev_b32 v{vAaddr}, 4, v{vG}')
        a.i(f'v_add_u32 v{vAaddr}, s{sXB}, v{vAaddr}')
        a.i(f's_lshl_b32 s{sT}, s{sH}, 2')
        a.i(f's_add_u32 s{sT}, s{sT}, s{sWave}')
        a.i(f's_cmp_lt_u32 s{sT}, 86')
        a.i(f's_cselect_b32 s{sFv}, 1, 0')
        a.i(f's_cmp_lt_u32 s{sH}, 22')
        a.i(f's_cselect_b32 s{sFsz}, {512 * 1376 * 2}, 0')
        self.srd_t(P_WQ, hex(512 * 4096 * 2))
        a.i(f'v_lshlrev_b32 v{T}, 13, v{vG}')
        a.i(f'v_lshl_add_u32 v{T}, v{vN}, 4, v{T}')
        a.i(f's_lshl_b32 s{sT+4}, s{sWave}, 20')
        a.i(f's_lshl_b32 s{sT}, s{sH}, 8')
        a.i(f's_add_u32 s{sT+4}, s{sT+4}, s{sT}')
        a.i(f's_lshl_b32 s{sT+5}, s{sWave}, 15')
        self.stage(32, T, None, 4 * 8192, None)
        self.wait_all()
        a.i('s_barrier')
        a.flush_hazards()
        a.i(f'v_bfe_u32 v{T+2}, v{l}, 2, 2')
        a.i(f'v_lshl_add_u32 v{T+2}, v{vG}, 3, v{T+2}')
        a.i(f'v_and_b32 v{T+3}, 3, v{l}')
        a.i(f'v_lshlrev_b32 v{T+3}, 3, v{T+3}')
        a.i(f'v_lshl_add_u32 v{T+4}, v{T+2}, 8, v{T+3}')
        a.i(f's_lshl_b32 s{sT}, s{sWave}, 6')
        a.i(f'v_add_u32 v{T+4}, s{sT}, v{T+4}')
        a.i(f'v_add_u32 v{T+5}, 0x10000, v{T+4}')
        d = []
        for cc in range(2):
            for j in range(16):
                r = aWQ + (cc * 16 + j) * 4
                ad = T + 4 if j < 8 else T + 5
                off = (j % 8) * 8192 + cc * 32
                d.append((ar(r, 2), ar(r + 2, 2), ad, off, off + 1024))
        self.trread(d, None)
        a.i('s_barrier')
        self.srd_t(P_WO, hex(4096 * 512 * 2))
        a.i(f's_lshl_b32 s{sT+4}, s{sH}, 17')
        a.i(f's_lshl_b32 s{sT}, s{sWave}, 15')
        a.i(f's_add_u32 s{sT+4}, s{sT+4}, s{sT}')
        a.i(f's_lshl_b32 s{sT+5}, s{sWave}, 15')
        a.i(f's_add_u32 s{sT+5}, s{sT+5}, {L_TMP}')
        self.stage(32, vL16, None, 1024, None)
        for i in range(4): a.i(f'v_mov_b32 v{T+4+i}, 0x3f803f80')
        for cc in range(2):
            self.colsum([ar(aWQ + (cc * 16 + j) * 4) for j in range(16)], vCSQ[cc], T + 4)
        self.clrcheck()
        self.taskQ(0)
        self.taskQ(1)
        if c.timing: self.stamp()
        self.wait_all()
        a.i('s_barrier')
        a.i(f'v_bfe_u32 v{T+2}, v{l}, 2, 2')
        a.i(f'v_lshl_add_u32 v{T+2}, v{vG}, 3, v{T+2}')
        a.i(f'v_and_b32 v{T+3}, 3, v{l}')
        a.i(f'v_lshlrev_b32 v{T+3}, 3, v{T+3}')
        a.i(f'v_lshl_add_u32 v{T+4}, v{T+2}, 10, v{T+3}')
        a.i(f's_lshl_b32 s{sT}, s{sWave}, 8')
        a.i(f's_add_u32 s{sT}, s{sT}, {L_TMP}')
        a.i(f'v_add_u32 v{T+4}, s{sT}, v{T+4}')
        a.i(f'v_add_u32 v{T+5}, 0x10000, v{T+4}')
        d = []
        for cc in range(8):
            for j in range(4):
                r = aWO + (cc * 4 + j) * 4
                ad = T + 4 if j < 2 else T + 5
                off = (j % 2) * 32768 + cc * 32
                d.append((ar(r, 2), ar(r + 2, 2), ad, off, off + 4096))
        self.trread(d, None)
        a.i('s_barrier')
        a.i(f'v_lshrrev_b32 v{T}, 3, v{l}')
        a.i(f's_mov_b32 s{sT}, 2752')
        a.i(f'v_mul_lo_u32 v{T}, v{T}, s{sT}')
        a.i(f'v_and_b32 v{T+1}, 7, v{l}')
        a.i(f'v_lshl_add_u32 v{T}, v{T+1}, 4, v{T}')
        for (ptr, lofs) in ((P_WG, L_TMP), (P_WU, L_TMP + 65536)):
            self.srd_t(ptr, f's{sFsz}')
            a.i(f's_mul_i32 s{sT+4}, s{sWave}, {16 * 8 * 2752}')
            a.i(f's_lshl_b32 s{sT}, s{sH}, 7')
            a.i(f's_add_u32 s{sT+4}, s{sT+4}, s{sT}')
            a.i(f's_lshl_b32 s{sT+5}, s{sWave}, 14')
            a.i(f's_add_u32 s{sT+5}, s{sT+5}, {lofs}')
            self.stage(16, T, None, 8 * 2752, None)
        self.wait_all()
        a.i('s_barrier')
        a.i(f'v_lshl_add_u32 v{T+4}, v{T+2}, 7, v{T+3}')
        a.i(f's_lshl_b32 s{sT}, s{sWave}, 5')
        a.i(f's_add_u32 s{sT}, s{sT}, {L_TMP}')
        a.i(f'v_add_u32 v{T+4}, s{sT}, v{T+4}')
        a.i(f'v_add_u32 v{T+5}, 0x10000, v{T+4}')
        d = []
        for (base, ad) in ((vWG, T + 4), (vWU, T + 5)):
            for j in range(16):
                r = base + j * 4
                d.append((vr(r, 2), vr(r + 2, 2), ad, j * 4096, j * 4096 + 512))
        self.trread(d, None)
        a.i('s_barrier')
        self.srd_t(P_WD, f's{sFsz}')
        a.i(f's_lshl_b32 s{sT+4}, s{sH}, 16')
        a.i(f's_lshl_b32 s{sT}, s{sWave}, 14')
        a.i(f's_add_u32 s{sT+4}, s{sT+4}, s{sT}')
        a.i(f's_lshl_b32 s{sT+5}, s{sWave}, 14')
        a.i(f's_add_u32 s{sT+5}, s{sT+5}, {L_TMP}')
        self.stage(16, vL16, None, 1024, None)
        for i in range(4): a.i(f'v_mov_b32 v{T+4+i}, 0x3f803f80')
        self.colsum([vr(vWG + 4 * j) for j in range(16)], vCSG, T + 4)
        self.colsum([vr(vWU + 4 * j) for j in range(16)], vCSU, T + 4)
        self.wait_all()
        a.i(f'v_bfe_u32 v{T}, v{l}, 2, 2')
        a.i(f'v_lshlrev_b32 v{T}, 10, v{T}')
        a.i(f'v_lshl_add_u32 v{T}, v{vG}, 5, v{T}')
        a.i(f'v_add_u32 v{T}, v{T}, v{T+3}')
        a.i(f's_lshl_b32 s{sT}, s{sWave}, 14')
        a.i(f's_add_u32 s{sT}, s{sT}, {L_TMP}')
        a.i(f'v_add_u32 v{T}, s{sT}, v{T}')
        d = []
        for cc in range(8):
            for fh in range(2):
                r = vWD + (cc * 2 + fh) * 4
                off = fh * 8192 + cc * 128
                d.append((vr(r, 2), vr(r + 2, 2), T, off, off + 4096))
        self.trread(d, None)
        a.i(f's_lshl_b32 s{sT}, s{sWave}, 14')
        a.i(f's_add_u32 s{sT}, s{sT}, {L_TMP}')
        a.i(f'v_add_u32 v{T+1}, s{sT}, v{vL16}')
        for k in range(16):
            a.i(f'ds_write_b128 v{T+1}, {vr(vWD + 4 * k)} offset:{k * 1024}')
            if len(a.lg) >= 12: a.wait_lg(a.lg[3])
        a.wait_lg_all()
        a.i(f'v_lshlrev_b32 v{T+2}, 6, v{vN}')
        a.i(f'v_lshl_add_u32 v{T+2}, v{vG}, 4, v{T+2}')
        a.i(f'v_add_u32 v{T+2}, s{sT}, v{T+2}')
        for k in range(16):
            a.i(f'ds_read_b128 {vr(vWD + 4 * k)}, v{T+2} offset:{k * 1024}')
            if len(a.lg) >= 12: a.wait_lg(a.lg[3])
        a.wait_lg_all()
        a.i('s_barrier')
        if c.timing: self.stamp()

    def clrcheck(self):
        a = self.a
        ok = a.newlabel('sclok'); lp = a.newlabel('sclp')
        a.label(lp)
        a.i(f'global_load_dword v{T+8}, v{vZ}, s[{P_DBG}:{P_DBG+1}] sc1')
        a.i('s_waitcnt vmcnt(0)'); a.vm = []
        a.i(f'v_readfirstlane_b32 s{sT}, v{T+8}')
        a.i(f's_cmp_eq_u32 s{sT}, 224')
        a.i(f's_cbranch_scc1 {ok}')
        a.i('s_sleep 4')
        self.spin_tail(lp)
        a.label(ok)
        a.flush_hazards()

    def bad_scc(self, regs, tmp):
        a = self.a
        regs = list(regs)
        a.i(f'v_max_u32 v{tmp}, v{regs[0]}, v{regs[1]}')
        k = 2
        while k < len(regs):
            if k + 1 < len(regs):
                a.i(f'v_max3_u32 v{tmp}, v{tmp}, v{regs[k]}, v{regs[k+1]}'); k += 2
            else:
                a.i(f'v_max_u32 v{tmp}, v{tmp}, v{regs[k]}'); k += 1
        a.i(f'v_cmp_eq_u32 vcc, -1, v{tmp}')
        a.i(f's_cmp_lg_u64 vcc, 0')

    def x_acquire(self, srd, soff_expr, sc1):
        a = self.a
        lp = a.newlabel('xa'); ok = a.newlabel('xaok')
        a.flush_hazards()
        a.label(lp)
        a.i(f'buffer_load_dwordx4 {vr(T)}, v{vL16}, {srd}, {soff_expr} offen{sc1}')
        a.i('s_waitcnt vmcnt(0)'); a.vm = []
        if sc1:
            self.bad_scc(range(T, T + 4), T + 4)
            a.i(f's_cbranch_scc0 {ok}')
            if self.slp: a.i(f's_sleep {self.slp}')
            self.spin_tail(lp)
            a.label(ok)
        a.flush_hazards()
        a.i(f'v_add_u32 v{T+4}, s{sXB}, v{vL16}')
        a.i(f'ds_write_b128 v{T+4}, {vr(T)}')

    def gemv2_stats(self, B0, B1, cs0, cs1):
        a = self.a
        acc0, acc1 = T + 8, T + 12
        Ab = [T + 16, T + 20, T + 24, T + 28]
        S = T + 32
        ids = {}
        def issue(j): ids[j] = a.i(f'ds_read_b128 {vr(Ab[j % 4])}, v{vAaddr} offset:{j * 64}')
        for j in range(4): issue(j)
        g = []
        def step(j):
            def f():
                a.wait_lg(ids[j])
                c0 = '0' if j == 0 else vr(acc0); c1 = '0' if j == 0 else vr(acc1)
                a.i(f'v_mfma_f32_16x16x32_bf16 {vr(acc0)}, {vr(Ab[j % 4])}, {B0[j]}, {c0}')
                a.i(f'v_mfma_f32_16x16x32_bf16 {vr(acc1)}, {vr(Ab[j % 4])}, {B1[j]}, {c1}')
                if j + 4 < 16: issue(j + 4)
            return f
        g = [step(j) for j in range(16)]
        st = []
        I = lambda t: st.append(lambda: a.i(t))
        for k in range(4):
            I(f'v_lshlrev_b32 v{S+6}, 16, v{T+k}')
            I(f'v_and_b32 v{S+7}, 0xffff0000, v{T+k}')
            if k == 0:
                I(f'v_add_f32 v{S+4}, v{S+6}, v{S+7}')
                I(f'v_mul_f32 v{S+5}, v{S+6}, v{S+6}')
            else:
                I(f'v_add_f32 v{S+4}, v{S+4}, v{S+6}')
                I(f'v_fmac_f32 v{S+5}, v{S+6}, v{S+6}')
                I(f'v_add_f32 v{S+4}, v{S+4}, v{S+7}')
            I(f'v_fmac_f32 v{S+5}, v{S+7}, v{S+7}')
        for c in DPP_STEPS:
            I(f'v_add_f32_dpp v{S+4}, v{S+4}, v{S+4} {c} bank_mask:0xf')
            I(f'v_add_f32_dpp v{S+5}, v{S+5}, v{S+5} {c} bank_mask:0xf')
        I(f'v_readlane_b32 s{sT+8}, v{S+4}, 63')
        I(f'v_readlane_b32 s{sT+9}, v{S+5}, 63')
        I(f'v_mov_b32 v{S}, s{sT+8}')
        I(f'v_mov_b32 v{S+1}, s{sT+9}')
        I(f'v_mul_f32 v{S}, {hex(f2u(1.0/512))}, v{S}')
        I(f'v_mul_f32 v{S+1}, {hex(f2u(1.0/512))}, v{S+1}')
        I(f'v_fma_f32 v{S+1}, -v{S}, v{S}, v{S+1}')
        I(f'v_max_f32 v{S+1}, 0, v{S+1}')
        I(f'v_cvt_pk_bf16_f32 v{S}, v{S}, v{S}')
        I(f'v_cvt_pk_bf16_f32 v{S+1}, v{S+1}, v{S+1}')
        I(f'v_and_b32 v{S}, 0xffff0000, v{S}')
        I(f'v_and_b32 v{S+1}, 0xffff0000, v{S+1}')
        I(f'v_add_f32 v{S+1}, {hex(f2u(1e-5))}, v{S+1}')
        I(f'v_cvt_pk_bf16_f32 v{S+1}, v{S+1}, v{S+1}')
        I(f'v_and_b32 v{S+1}, 0xffff0000, v{S+1}')
        I(f'v_sqrt_f32 v{S+1}, v{S+1}')
        I(f'v_cvt_pk_bf16_f32 v{S+1}, v{S+1}, v{S+1}')
        I(f'v_and_b32 v{S+1}, 0xffff0000, v{S+1}')
        I(f'v_rcp_f32 v{S+1}, v{S+1}')
        I(f'v_mul_f32 v{S+2}, v{S}, v{cs0}')
        I(f'v_mul_f32 v{S+3}, v{S}, v{cs1}')
        n = max(len(g), len(st)); ig = ist = 0
        for stp in range(16):
            g[stp]()
            tgt = (stp + 1) * len(st) // 16
            while ist < tgt: st[ist](); ist += 1
        a.i(f'v_sub_f32 v{acc0}, v{acc0}, v{S+2}')
        a.i(f'v_sub_f32 v{acc1}, v{acc1}, v{S+3}')
        a.i(f'v_mul_f32 v{acc0}, v{acc0}, v{S+1}')
        a.i(f'v_mul_f32 v{acc1}, v{acc1}, v{S+1}')
        return acc0, acc1

    def taskQ(self, inst):
        a = self.a
        if inst < 2:
            a.i(f's_mov_b32 s{sT}, {inst * 1024}')
            self.x_acquire(SRD_X, f's{sT}', '')
        else:
            a.i(f's_mov_b32 s{sT}, {W_XS + (inst - 2) * 1024}')
            self.x_acquire(SRD_WS, f's{sT}', ' sc1')
        acc0, acc1 = self.gemv2_stats([ar(aWQ + j * 4) for j in range(16)], [ar(aWQ + (16 + j) * 4) for j in range(16)], vCSQ[0], vCSQ[1])
        a.i(f'v_mov_b32_dpp v{acc0}, v{acc1} quad_perm:[0,1,2,3] row_mask:0x2 bank_mask:0xf')
        a.i(f'v_mov_b32_dpp v{T}, v{acc0} quad_perm:[1,1,3,3] row_mask:0xf bank_mask:0xf')
        a.i(f'v_cvt_pk_bf16_f32 v{T}, v{acc0}, v{T}')
        a.i(f'v_lshlrev_b32 v{T+1}, 1, v{vLane}')
        a.i(f's_lshl_b32 s{sT}, s{sH}, 8')
        a.i(f's_lshl_b32 s{sT+1}, s{sWave}, 6')
        a.i(f's_add_u32 s{sT}, s{sT}, s{sT+1}')
        a.i(f's_add_u32 s{sT}, s{sT}, {W_Q + inst * 8192}')
        a.i('s_mov_b32 exec_lo, 0x55555555'); a.i('s_mov_b32 exec_hi, 0')
        a.i(f'buffer_store_dword v{T}, v{T+1}, {SRD_WS}, s{sT} offen sc1')
        a.i('s_mov_b64 exec, -1')

    def taskS1(self, inst):
        a = self.a
        ML = T
        lp = a.newlabel('s1'); ok = a.newlabel('s1ok')
        a.i(f's_lshl_b32 s{sT}, s{sH}, 8')
        a.i(f's_add_u32 s{sT}, s{sT}, {W_PML + inst * 8192}')
        a.i(f'v_lshlrev_b32 v{T+2}, 3, v{vLane}')
        a.i(f'v_cmp_gt_u32 vcc, {NP}, v{vLane}')
        a.i(f's_mov_b64 s[{sT+2}:{sT+3}], vcc')
        if self.c.S1_SLOW:
            lp0 = a.newlabel('s1w'); ok0 = a.newlabel('s1wok')
            a.i(f's_cmp_eq_u32 s{sWave}, 0')
            a.flush_hazards()
            a.i(f's_cbranch_scc0 {ok0}')
            a.label(lp0)
            a.i(f'v_mov_b32 v{ML}, -1')
            a.i(f's_mov_b64 exec, s[{sT+2}:{sT+3}]')
            a.i(f'buffer_load_dword v{ML}, v{T+2}, {SRD_WS}, s{sT} offen sc1')
            a.i('s_mov_b64 exec, -1')
            a.i('s_waitcnt vmcnt(0)'); a.vm = []
            a.i(f'v_cmp_ne_u32 vcc, -1, v{ML}')
            a.i(f's_bcnt1_i32_b64 s{sT+4}, vcc')
            a.i(f's_cmp_ge_u32 s{sT+4}, {self.c.S1_FIRST}')
            a.i(f's_cbranch_scc1 {ok0}')
            a.i(f's_sleep {self.c.S1_SLOW}')
            self.spin_tail(lp0)
            a.label(ok0)
            a.flush_hazards()
            a.i('s_barrier')
        O = T + 8
        fast = inst in self.c.FAST_S1
        sPO = sT + 16
        a.i(f's_mul_i32 s{sPO}, s{sH}, {NP}')
        a.i(f's_mul_i32 s{sT+1}, s{sWave}, 7')
        a.i(f's_add_u32 s{sPO}, s{sPO}, s{sT+1}')
        a.i(f's_lshl_b32 s{sPO}, s{sPO}, 9')
        a.i(f's_add_u32 s{sPO}, s{sPO}, {W_PO + inst * 32 * NP * 512}')
        def load_o():
            for k in range(7):
                a.i(f'buffer_load_dwordx2 {vr(O + 2*k, 2)}, v{T+2}, {SRD_WS}, s{sPO} offen offset:{k*512} sc1')
        def weights():
            a.i(f'v_mov_b32 v{T+3}, 0xff800000')
            a.i(f'v_cndmask_b32 v{T+4}, v{T+3}, v{ML}, s[{sT+2}:{sT+3}]')
            a.i(f'v_mov_b32 v{T+5}, v{T+4}')
            wave_reduce_multi(a, 'v_max_f32', [T + 5])
            a.i(f'v_readlane_b32 s{sT+4}, v{T+5}, 63')
            a.i(f'v_subrev_f32 v{T+4}, s{sT+4}, v{T+4}')
            a.i(f'v_exp_f32 v{T+4}, v{T+4}')
            a.i(f'v_mul_f32 v{T+5}, v{T+4}, v{ML+1}')
            wave_reduce_multi(a, 'v_add_f32', [T + 5])
            a.i(f'v_readlane_b32 s{sT+4}, v{T+5}, 63')
            a.i(f'v_mov_b32 v{T+5}, s{sT+4}')
            a.i(f'v_rcp_f32 v{T+5}, v{T+5}')
            a.i(f'v_mul_f32 v{T+4}, v{T+4}, v{T+5}')
            a.i(f's_mul_i32 s{sT+5}, s{sWave}, 7')
            for k in range(7):
                a.i(f's_add_u32 s{sT+6}, s{sT+5}, {k}')
                a.i(f'v_readlane_b32 s{sT+8+k}, v{T+4}, s{sT+6}')
        a.flush_hazards()
        a.label(lp)
        a.i(f'v_mov_b32 v{ML}, 0'); a.i(f'v_mov_b32 v{ML+1}, 0')
        a.i(f's_mov_b64 exec, s[{sT+2}:{sT+3}]')
        a.i(f'buffer_load_dwordx2 {vr(ML, 2)}, v{T+2}, {SRD_WS}, s{sT} offen sc1')
        a.i('s_mov_b64 exec, -1')
        if fast:
            load_o()
            a.i('s_waitcnt vmcnt(7)')
            weights()
            a.i('s_waitcnt vmcnt(0)'); a.vm = []
            self.bad_scc([ML, ML + 1] + list(range(O, O + 14)), T + 6)
            a.i(f's_cbranch_scc0 {ok}')
            self.spin_tail(lp)
            a.label(ok)
            a.flush_hazards()
        else:
            a.i('s_waitcnt vmcnt(0)'); a.vm = []
            self.bad_scc([ML, ML + 1], T + 3)
            a.i(f's_cbranch_scc0 {ok}')
            a.i(f's_sleep {self.c.SLEEP}')
            self.spin_tail(lp)
            a.label(ok)
            a.flush_hazards()
            lp2 = a.newlabel('s1g'); ok2 = a.newlabel('s1gok')
            a.label(lp2)
            load_o()
            weights()
            a.i('s_waitcnt vmcnt(0)'); a.vm = []
            self.bad_scc(range(O, O + 14), T + 6)
            a.i(f's_cbranch_scc0 {ok2}')
            self.spin_tail(lp2)
            a.label(ok2)
            a.flush_hazards()
        a.i(f'v_mul_f32 v{T+6}, s{sT+8}, v{O}')
        a.i(f'v_mul_f32 v{T+7}, s{sT+8}, v{O+1}')
        for k in range(1, 7):
            a.i(f'v_fmac_f32 v{T+6}, s{sT+8+k}, v{O+2*k}')
            a.i(f'v_fmac_f32 v{T+7}, s{sT+8+k}, v{O+2*k+1}')
        a.i(f's_lshl_b32 s{sT}, s{sWave}, 9')
        a.i(f's_add_u32 s{sT}, s{sT}, {L_OB + (inst & 1) * 2048}')
        a.i(f'v_add_u32 v{T+3}, s{sT}, v{T+2}')
        a.i(f'ds_write_b64 v{T+3}, {vr(T+6, 2)}')
        a.wait_lg_all()
        a.i('s_barrier')
        a.i(f'v_add_u32 v{T+3}, {L_OB + (inst & 1) * 2048}, v{T+2}')
        for k in range(4): a.i(f'ds_read_b64 {vr(T+8+2*k, 2)}, v{T+3} offset:{k*512}')
        a.wait_lg_all()
        a.i(f'v_add_f32 v{T+8}, v{T+8}, v{T+10}')
        a.i(f'v_add_f32 v{T+9}, v{T+9}, v{T+11}')
        a.i(f'v_add_f32 v{T+12}, v{T+12}, v{T+14}')
        a.i(f'v_add_f32 v{T+13}, v{T+13}, v{T+15}')
        a.i(f'v_add_f32 v{T+8}, v{T+8}, v{T+12}')
        a.i(f'v_add_f32 v{T+9}, v{T+9}, v{T+13}')
        a.i(f'v_cvt_pk_bf16_f32 v{T+8}, v{T+8}, v{T+9}')
        a.i(f's_lshl_b32 s{sT}, s{sWave}, 8')
        a.i(f's_add_u32 s{sT}, s{sT}, {L_OH}')
        a.i(f'v_add_u32 v{T+3}, s{sT}, v{vL4}')
        a.i(f'ds_write_b32 v{T+3}, v{T+8}')
        a.i(f'v_lshlrev_b32 v{T+3}, 4, v{vG}')
        a.i(f'v_add_u32 v{T+3}, s{sT}, v{T+3}')
        A = T + 8
        for j in range(4): a.i(f'ds_read_b128 {vr(A + 4*j)}, v{T+3} offset:{j*64}')
        a.wait_lg_all()
        accs = [T + 24, T + 28, T + 32, T + 36]
        Y0, Y1 = T + 40, T + 41
        for cc in range(8):
            ac = accs[cc % 4]
            for j in range(4):
                c = '0' if j == 0 else vr(ac)
                a.i(f'v_mfma_f32_16x16x32_bf16 {vr(ac)}, {vr(A + 4*j)}, {ar(aWO + (cc*4 + j)*4)}, {c}')
            if cc >= 2:
                p = cc - 2
                a.i(f'v_mov_b32_dpp v{Y0 if p < 4 else Y1}, v{accs[p % 4]} quad_perm:[0,1,2,3] row_mask:{hex(1 << (p % 4))} bank_mask:0xf')
        for p in (6, 7):
            a.i(f'v_mov_b32_dpp v{Y1}, v{accs[p % 4]} quad_perm:[0,1,2,3] row_mask:{hex(1 << (p % 4))} bank_mask:0xf')
        a.i(f'v_lshlrev_b32 v{T+3}, 11, v{vG}')
        a.i(f'v_lshl_add_u32 v{T+3}, v{vN}, 2, v{T+3}')
        a.i(f's_lshl_b32 s{sT}, s{sWave}, 14')
        a.i(f's_lshl_b32 s{sT+1}, s{sH}, 6')
        a.i(f's_add_u32 s{sT}, s{sT}, s{sT+1}')
        a.i(f's_add_u32 s{sT}, s{sT}, {W_Y + inst * 65536}')
        a.i(f'buffer_store_dword v{Y0}, v{T+3}, {SRD_WS}, s{sT} offen sc1')
        a.i(f's_add_u32 s{sT}, s{sT}, 8192')
        a.i(f'buffer_store_dword v{Y1}, v{T+3}, {SRD_WS}, s{sT} offen sc1')

    def reduce16(self, inst, src_base, nprod, xsrc, dst):
        a = self.a
        lp = a.newlabel('r16'); ok = a.newlabel('r16ok')
        a.i(f's_lshl_b32 s{sT}, s{sH}, 11')
        a.i(f's_add_u32 s{sT}, s{sT}, {src_base + inst * 65536}')
        srd, xo, sc = xsrc
        a.i(f's_lshl_b32 s{sT+1}, s{sH}, 5')
        a.i(f's_add_u32 s{sT+1}, s{sT+1}, {xo}')
        a.i(f'v_and_b32 v{T+12}, 3, v{vLane}')
        a.i(f'v_lshlrev_b32 v{T+12}, 3, v{T+12}')
        if nprod < 32:
            a.i(f'v_cmp_gt_u32 vcc, {(nprod - 16) * 4}, v{vLane}')
            a.i(f's_mov_b64 s[{sT+2}:{sT+3}], vcc')
        a.flush_hazards()
        a.label(lp)
        a.i(f'buffer_load_dwordx4 {vr(T)}, v{vL16}, {SRD_WS}, s{sT} offen sc1')
        if nprod < 32:
            for i in range(4): a.i(f'v_mov_b32 v{T+4+i}, 0')
            a.i(f's_mov_b64 exec, s[{sT+2}:{sT+3}]')
        a.i(f'buffer_load_dwordx4 {vr(T+4)}, v{vL16}, {SRD_WS}, s{sT} offen offset:1024 sc1')
        a.i('s_mov_b64 exec, -1')
        a.i(f'buffer_load_dwordx2 {vr(T+8, 2)}, v{T+12}, {srd}, s{sT+1} offen{sc}')
        a.i('s_waitcnt vmcnt(0)'); a.vm = []
        self.bad_scc(range(T, T + 10) if sc else range(T, T + 8), T + 13)
        a.i(f's_cbranch_scc0 {ok}')
        if self.slp: a.i(f's_sleep {self.slp}')
        self.spin_tail(lp)
        a.label(ok)
        a.flush_hazards()
        for i in range(4): a.i(f'v_add_f32 v{T+i}, v{T+i}, v{T+4+i}')
        for cdp in ('row_ror:4', 'row_ror:8'):
            for i in range(4): a.i(f'v_add_f32_dpp v{T+i}, v{T+i}, v{T+i} {cdp} row_mask:0xf bank_mask:0xf')
        for i in range(4): a.i(f'v_mov_b32 v{T+4+i}, v{T+i}')
        for i in range(4): a.i(f'v_permlane32_swap_b32 v{T+i}, v{T+4+i}')
        for i in range(4): a.i(f'v_add_f32 v{T+i}, v{T+i}, v{T+4+i}')
        for i in range(4): a.i(f'v_mov_b32 v{T+4+i}, v{T+i}')
        for i in range(4): a.i(f'v_permlane16_swap_b32 v{T+i}, v{T+4+i}')
        for i in range(4): a.i(f'v_add_f32 v{T+i}, v{T+i}, v{T+4+i}')
        a.i(f'v_lshlrev_b32 v{T+4}, 16, v{T+8}')
        a.i(f'v_and_b32 v{T+5}, 0xffff0000, v{T+8}')
        a.i(f'v_lshlrev_b32 v{T+6}, 16, v{T+9}')
        a.i(f'v_and_b32 v{T+7}, 0xffff0000, v{T+9}')
        for i in range(4): rbf(a, T + i, T + i)
        for i in range(4): a.i(f'v_add_f32 v{T+i}, v{T+i}, v{T+4+i}')
        a.i(f'v_cvt_pk_bf16_f32 v{T+8}, v{T}, v{T+1}')
        a.i(f'v_cvt_pk_bf16_f32 v{T+9}, v{T+2}, v{T+3}')
        dsrd, do, dsc = dst
        a.i(f's_lshl_b32 s{sT}, s{sH}, 5')
        a.i(f's_add_u32 s{sT}, s{sT}, {do}')
        a.i('s_mov_b64 exec, 0xf')
        a.i(f'buffer_store_dwordx2 {vr(T+8, 2)}, v{T+12}, {dsrd}, s{sT} offen{dsc}')
        a.i('s_mov_b64 exec, -1')

    def xs_src(self, inst):
        return (SRD_X, inst * 1024, '') if inst < 2 else (SRD_WS, W_XS + (inst - 2) * 1024, ' sc1')

    def taskS2(self, inst):
        self.reduce16(inst, W_Y, 32, self.xs_src(inst), (SRD_WS, W_X1 + inst * 1024, ' sc1'))
    def taskS4a(self, inst):
        dst = (SRD_WS, W_XS + inst * 1024, ' sc1') if inst < 2 else (SRD_OUT, (inst & 1) * 1024, '')
        self.reduce16(inst, W_Z, 22, (SRD_WS, W_X1 + inst * 1024, ' sc1'), dst)

    def taskS3(self, inst):
        a = self.a
        a.i(f's_mov_b32 s{sT}, {W_X1 + inst * 1024}')
        self.x_acquire(SRD_WS, f's{sT}', ' sc1')
        g, u = self.gemv2_stats([vr(vWG + 4*j) for j in range(16)], [vr(vWU + 4*j) for j in range(16)], vCSG, vCSU)
        rbf(a, g, g); rbf(a, u, u)
        a.i(f'v_mul_f32 v{T}, v{g}, v{u}')
        a.i(f'v_cvt_pk_bf16_f32 v{T}, v{T}, v{T}')
        a.i(f's_cmp_eq_u32 s{sFv}, 0')
        a.i(f's_cselect_b32 s{sT+24-24}, 0, -1')
        a.i(f'v_and_b32 v{T+1}, 3, v{vLane}')
        a.i(f'v_cmp_eq_u32 vcc, v{T+1}, v{vG}')
        a.i(f'v_cndmask_b32 v{T+1}, 0, -1, vcc')
        a.i(f'v_and_b32 v{T+1}, s{sT}, v{T+1}')
        A0, A1 = T + 16, T + 20
        for half, A in ((0, A0), (1, A1)):
            for f in range(8): a.i(f'v_readlane_b32 s{sT+2+f}, v{T}, {8*half + f}')
            for r in range(4): a.i(f's_pack_ll_b32_b16 s{sT+10+r}, s{sT+2+2*r}, s{sT+3+2*r}')
            for r in range(4): a.i(f'v_and_b32 v{A+r}, s{sT+10+r}, v{T+1}')
        a.i(f's_lshl_b32 s{sT}, s{sWave}, 11')
        a.i(f's_add_u32 s{sT}, s{sT}, {L_ZB}')
        a.i(f'v_lshlrev_b32 v{T+2}, 4, v{vN}')
        a.i(f'v_add_u32 v{T+2}, s{sT}, v{T+2}')
        accs = [T + 24, T + 28, T + 32, T + 36]
        pend = []
        for cc in range(8):
            ac = accs[cc % 4]
            a.i(f'v_mfma_f32_16x16x32_bf16 {vr(ac)}, {vr(A0)}, {vr(vWD + (cc*2)*4)}, 0')
            a.i(f'v_mfma_f32_16x16x32_bf16 {vr(ac)}, {vr(A1)}, {vr(vWD + (cc*2+1)*4)}, {vr(ac)}')
            if cc >= 2:
                p = cc - 2
                a.i('s_mov_b64 exec, 0xffff')
                a.i(f'ds_write_b128 v{T+2}, {vr(accs[p % 4])} offset:{p*256}')
                a.i('s_mov_b64 exec, -1')
        for p in (6, 7):
            a.i('s_mov_b64 exec, 0xffff')
            a.i(f'ds_write_b128 v{T+2}, {vr(accs[p % 4])} offset:{p*256}')
            a.i('s_mov_b64 exec, -1')
        a.wait_lg_all()
        a.i('s_barrier')
        a.i(f's_lshl_b32 s{sT}, s{sWave}, 9')
        a.i(f's_add_u32 s{sT}, s{sT}, {L_ZB}')
        a.i(f'v_lshlrev_b32 v{T+2}, 3, v{vLane}')
        a.i(f'v_add_u32 v{T+3}, s{sT}, v{T+2}')
        for k in range(4): a.i(f'ds_read_b64 {vr(T+8+2*k, 2)}, v{T+3} offset:{k*2048}')
        a.wait_lg_all()
        a.i(f'v_add_f32 v{T+8}, v{T+8}, v{T+10}')
        a.i(f'v_add_f32 v{T+9}, v{T+9}, v{T+11}')
        a.i(f'v_add_f32 v{T+12}, v{T+12}, v{T+14}')
        a.i(f'v_add_f32 v{T+13}, v{T+13}, v{T+15}')
        a.i(f'v_add_f32 v{T+8}, v{T+8}, v{T+12}')
        a.i(f'v_add_f32 v{T+9}, v{T+9}, v{T+13}')
        a.i(f'v_lshrrev_b32 v{T+2}, 3, v{vLane}')
        a.i(f'v_lshlrev_b32 v{T+2}, 11, v{T+2}')
        a.i(f'v_and_b32 v{T+3}, 7, v{vLane}')
        a.i(f'v_lshl_add_u32 v{T+2}, v{T+3}, 3, v{T+2}')
        a.i(f's_lshl_b32 s{sT}, s{sWave}, 14')
        a.i(f's_lshl_b32 s{sT+1}, s{sH}, 6')
        a.i(f's_add_u32 s{sT}, s{sT}, s{sT+1}')
        a.i(f's_add_u32 s{sT}, s{sT}, {W_Z + inst * 65536}')
        a.i(f'buffer_store_dwordx2 {vr(T+8, 2)}, v{T+2}, {SRD_WS}, s{sT} offen sc1')
        a.i('s_barrier')

    def run(self):
        a = self.a; c = self.c
        self.init()
        for inst in range(4):
            self.slp = 0 if inst == 3 else c.SLEEP
            self.taskS1(inst)
            if c.timing: self.stamp()
            sk = a.newlabel('w0');
            a.i(f's_cmp_eq_u32 s{sWave}, 0'); a.flush_hazards(); a.i(f's_cbranch_scc0 {sk}')
            self.taskS2(inst)
            a.flush_hazards(); a.label(sk)
            sk3 = a.newlabel('f3')
            a.i(f's_cmp_lt_u32 s{sH}, 22'); a.flush_hazards(); a.i(f's_cbranch_scc0 {sk3}')
            self.taskS3(inst)
            a.flush_hazards(); a.label(sk3)
            sk = a.newlabel('w1')
            a.i(f's_cmp_eq_u32 s{sWave}, 1'); a.flush_hazards(); a.i(f's_cbranch_scc0 {sk}')
            self.taskS4a(inst)
            a.flush_hazards(); a.label(sk)
            if inst < 2:
                self.taskQ(inst + 2)
            if c.timing and inst in (0, 3): self.stamp()
```

```python
from asmlib import Asm
from common import *

vKoff, vVoff, vV8, vL16, vLdsRet = 0, 1, 2, 3, 4
vBP = 5
vMask = [6, 7, 8, 9]
vL = {'X': 10, 'Y': 11}
vQ = 12
vP = {'X': 20, 'Y': 26}
vO = {'X': 32, 'Y': 36}
T = 40
vACC = [40, 44]
vAT = [48, 52]
vLT = [56, 56]
vRING = 60
NEGINF = 0xff800000

L_QG = 0
L_RET = 2048

def lane(a, r):
    a.i(f'v_lshrrev_b32 v{r}, 4, v{vL16}')

class Load:
    def __init__(self, emit, after=None, name='', w=1.0):
        self.emit = emit; self.after = after; self.name = name; self.vid = None; self.idx = None; self.w = w
class Comp:
    def __init__(self, emit, needs=(), name=''):
        self.emit = emit; self.needs = list(needs); self.name = name; self.done = False

HALF_B = [('F', 0), ('F', 1), ('F', 2), ('F', 3), ('H', 0)]
HALF_A = [('F', 4), ('F', 5), ('F', 6), ('F', 7), ('H', 1), ('P',)]

def k_units(tile):
    n = {'F': 8, 'H': 4, 'P': 2}[tile[0]]
    return [(g, jj) for g in range(n) for jj in range(2)]
def v_units(tile):
    return list(range({'F': 16, 'H': 8, 'P': 4}[tile[0]]))

class Stream:
    def __init__(self, cfg, a):
        self.c = cfg
        self.a = a
        self.loads = []; self.comps = []
        self.pend = []
        self.accsel = 0; self.atsel = 0; self.ltsel = 0
        self.ring = 0
        self.ring_reader = [None] * cfg.NRING
        self.vRET = vRING + 4 * cfg.NRING
        self.NVREG = (256 - self.vRET) // 4
        self.KX = 72 - 64
        self.NV_REG = self.NVREG - self.KX
        self.NV_LDS = 72 - self.NV_REG
        assert L_RET + 4 * self.NV_LDS * 1024 <= 163840, (self.NV_LDS,)
        self.k_reader = [None] * 72
        self.v_reader = [None] * 72
        self.curK = None; self.curV = None
        self.marks = {}
        self.nstamp = 0
        self.pro_loads = []
        self.uid = 0
        self.curpol = cfg.pol

    def set_off(self, which, b, tile, const):
        a = self.a
        base = sBp[b] if tile[0] == 'P' else sB[b]
        key = (base, const)
        reg = sOffK if which == 'K' else sOffV
        cur = self.curK if which == 'K' else self.curV
        if cur != key:
            if const == 0: a.i(f's_mov_b32 s{reg}, s{base}')
            else: a.i(f's_add_u32 s{reg}, s{base}, {const}')
            if which == 'K': self.curK = key
            else: self.curV = key
        return f's{reg}'

    def add_load(self, L): self.loads.append(L); return L
    def add_comp(self, C): self.comps.append(C); return C
    def ring_slot(self):
        s = self.ring % self.c.NRING; self.ring += 1
        return s

    def k_addr(self, tile, g, jj):
        if tile[0] == 'F': return tile[1] * 65536 + (g >> 1) * 4096, (g & 1) * 2048 + jj * 128
        if tile[0] == 'H': return 8 * 65536 + tile[1] * 8192 + (g >> 1) * 4096, (g & 1) * 2048 + jj * 128
        return 0, g * 2048 + jj * 128
    def v_addr(self, tile, t):
        if tile[0] == 'F': return tile[1] * 65536, t * 256, vVoff
        if tile[0] == 'H': return 8 * 65536 + tile[1] * 8192, t * 256, vV8
        return 0, t * 1024, vL16
    def k_place(self, tile, g):
        if tile[0] == 'F': return g >> 1, g & 1
        if tile[0] == 'H': return g, 0
        return 0, g

    def mk_kload(self, b, tile, g, jj, dst, after):
        pol = self.curpol
        def emit():
            const, imm = self.k_addr(tile, g, jj)
            so = self.set_off('K', b, tile, const)
            if tile[0] == 'P' and self.c.skip_inv: self.a.i(f's_mov_b64 exec, s[{sPX[g]}:{sPX[g]+1}]')
            r = self.a.i(f'buffer_load_dwordx4 {dst}, v{vKoff}, {SRD_K}, {so} offen offset:{imm}{pol}')
            if tile[0] == 'P' and self.c.skip_inv: self.a.i('s_mov_b64 exec, -1')
            return r
        return self.add_load(Load(emit, after, f'K b{b} {tile} g{g} j{jj}'))
    def mk_vload(self, b, tile, t, dst, after):
        pol = self.curpol
        def emit():
            const, imm, vo = self.v_addr(tile, t)
            so = self.set_off('V', b, tile, const)
            if tile[0] == 'P' and self.c.skip_inv: self.a.i(f's_mov_b64 exec, s[{sPX[t >> 1]}:{sPX[t >> 1]+1}]')
            r = self.a.i(f'buffer_load_dwordx4 {dst}, v{vo}, {SRD_V}, {so} offen offset:{imm}{pol}')
            if tile[0] == 'P' and self.c.skip_inv: self.a.i('s_mov_b64 exec, -1')
            return r
        return self.add_load(Load(emit, after, f'V b{b} {tile} u{t}'))
    def mk_vload_lds(self, b, tile, t, slot, after):
        def emit():
            const, imm, vo = self.v_addr(tile, t)
            so = self.set_off('V', b, tile, const)
            self.a.i(f's_add_u32 m0, s{sLdsRet}, {slot * 1024 - imm + 4096}')
            return self.a.i(f'buffer_load_dwordx4 v{vo}, {SRD_V}, {so} offen offset:{imm}{self.c.pol} lds')
        return self.add_load(Load(emit, after, f'VL b{b} {tile} u{t}'))

    def flush_adds(self, acc=None):
        a = self.a
        keep = []
        for (ac, S, row, hh) in self.pend:
            if acc is None or ac == acc:
                if hh == 0:
                    a.i(f'v_add_f32_dpp v{S}, v{ac+1}, v{ac} row_ror:8 row_mask:{hex(1 << row)} bank_mask:0x3')
                else:
                    a.i(f'v_add_f32_dpp v{S}, v{ac}, v{ac+1} row_ror:8 row_mask:{hex(1 << row)} bank_mask:0xc')
            else:
                keep.append((ac, S, row, hh))
        self.pend = keep

    def mk_qk(self, B0, B1, S, tile, g, needs):
        def emit():
            a = self.a
            if g == 0 and tile[0] in 'HP':
                a.i(f'v_mov_b32 v{S}, {hex(NEGINF)}')
            ac = vACC[self.accsel]; self.accsel ^= 1
            self.flush_adds(ac)
            a.i(f'v_mfma_f32_16x16x32_bf16 {vr(ac)}, {vr(vQ)}, {B0}, 0')
            a.i(f'v_mfma_f32_16x16x32_bf16 {vr(ac)}, {vr(vQ+4)}, {B1}, {vr(ac)}')
            row, hh = self.k_place(tile, g)
            self.pend.append((ac, S, row, hh))
        return self.add_comp(Comp(emit, needs, f'QK {tile} g{g}'))

    def pv_core(self, B, P, t, O, mid=None):
        a = self.a
        at = vAT[self.atsel]; self.atsel ^= 1
        for r in range(4):
            a.i(f'v_and_b32_dpp v{at+r}, v{P}, v{vMask[r]} row_newbcast:{t} row_mask:0xf bank_mask:0xf')
        if mid: mid()
        a.i(f'v_mfma_f32_16x16x32_bf16 {vr(O)}, {vr(at)}, {B}, {vr(O)}')
    def mk_pv(self, B, P, t, O, needs):
        return self.add_comp(Comp(lambda: self.pv_core(B, P, t, O), needs, f'PV t{t}'))
    def mk_pv_lds(self, slot, P, t, O, needs):
        def emit():
            a = self.a
            lt = vLT[self.ltsel]; self.ltsel ^= 1
            lid = a.i(f'ds_read_b128 {vr(lt)}, v{vLdsRet} offset:{slot * 1024}')
            self.pv_core(vr(lt), P, t, O, mid=lambda: a.wait_lg(lid))
        return self.add_comp(Comp(emit, needs, f'PVL t{t}'))

    def mk_softmax(self, Pset, Iset, first, tiles):
        n = len(tiles)
        def emit():
            a = self.a
            self.flush_adds()
            S = vP[Pset]; O = vO[Iset]; Lr = vL[Iset]; m = sM[Iset]
            t0, t1, t2, t3 = T, T+1, T+2, T+3
            if tiles[-1][0] == 'P':
                k = n - 1
                lid = a.i(f'ds_bpermute_b32 v{S+k}, v{vBP}, v{S+k}')
                a.wait_lg(lid)
            for i in range(n): a.i(f'v_mul_f32 v{S+i}, {hex(f2u(SCALE))}, v{S+i}')
            a.i(f'v_max3_f32 v{t0}, v{S}, v{S+1}, v{S+2}')
            a.i(f'v_max3_f32 v{t0}, v{t0}, v{S+3}, v{S+4}')
            if n == 6: a.i(f'v_max_f32 v{t0}, v{t0}, v{S+5}')
            if not first: a.i(f'v_max_f32 v{t0}, s{m}, v{t0}')
            wave_reduce_multi(a, 'v_max_f32', [t0])
            a.i(f'v_readlane_b32 s{sT}, v{t0}, 63')
            if not first:
                a.i(f'v_mov_b32 v{t1}, s{sT}')
                a.i(f'v_sub_f32 v{t1}, s{m}, v{t1}')
                a.i(f'v_exp_f32 v{t1}, v{t1}')
                for i in range(4): a.i(f'v_mul_f32 v{O+i}, v{O+i}, v{t1}')
                a.i(f'v_mul_f32 v{Lr}, v{Lr}, v{t1}')
            else:
                for i in range(4): a.i(f'v_mov_b32 v{O+i}, 0')
            a.i(f's_mov_b32 s{m}, s{sT}')
            for i in range(n): a.i(f'v_subrev_f32 v{S+i}, s{m}, v{S+i}')
            for i in range(n): a.i(f'v_exp_f32 v{S+i}, v{S+i}')
            a.i(f'v_add_f32 v{t2}, v{S}, v{S+1}')
            a.i(f'v_add_f32 v{t3}, v{S+2}, v{S+3}')
            a.i(f'v_add_f32 v{t2}, v{t2}, v{S+4}')
            if n == 6: a.i(f'v_add_f32 v{t3}, v{t3}, v{S+5}')
            if first:
                a.i(f'v_add_f32 v{Lr}, v{t2}, v{t3}')
            else:
                a.i(f'v_add_f32 v{t2}, v{t2}, v{t3}')
                a.i(f'v_add_f32 v{Lr}, v{Lr}, v{t2}')
            for i in range(n): a.i(f'v_cvt_pk_bf16_f32 v{S+i}, v{S+i}, v{S+i}')
        return self.add_comp(Comp(emit, (), f'softmax {Pset} {Iset} {first}'))

    def cond_begin(self):
        self.a.flush_hazards()
        self._snap = (list(self.a.vm), list(self.a.lg))
    def cond_end(self):
        self.a.flush_hazards()
        self.a.vm, self.a.lg = self._snap

    def mk_publish(self, inst):
        Iset = 'X' if (inst & 1) == 0 else 'Y'
        def emit():
            a = self.a
            O = vO[Iset]; Lr = vL[Iset]; m = sM[Iset]
            t = T
            wave_reduce_multi(a, 'v_add_f32', [Lr])
            lane(a, t+5)
            a.i(f'v_and_b32 v{t}, 15, v{t+5}')
            a.i(f'v_lshlrev_b32 v{t}, 5, v{t}')
            a.i(f'v_lshrrev_b32 v{t+1}, 4, v{t+5}')
            a.i(f'v_lshl_add_u32 v{t}, v{t+1}, 4, v{t}')
            a.i(f's_mul_i32 s{sT}, s{sH}, {NP}')
            a.i(f's_add_u32 s{sT}, s{sT}, s{sPidx}')
            a.i(f's_lshl_b32 s{sT}, s{sT}, 9')
            a.i(f's_add_u32 s{sT}, s{sT}, {W_PO + inst * 32 * NP * 512}')
            a.i(f's_mov_b32 exec_hi, 0')
            a.i(f'buffer_store_dwordx4 {vr(O)}, v{t}, {SRD_WS}, s{sT} offen sc1')
            a.i(f's_lshl_b32 s{sT}, s{sH}, 8')
            a.i(f's_lshl_b32 s{sT+1}, s{sPidx}, 3')
            a.i(f's_add_u32 s{sT}, s{sT}, s{sT+1}')
            a.i(f's_add_u32 s{sT}, s{sT}, {W_PML + inst * 8192}')
            a.i(f's_mov_b64 exec, -1')
            a.i(f'v_mov_b32 v{t+2}, s{m}')
            a.i(f'v_mov_b32 v{t+3}, v{Lr}')
            a.i(f'v_mov_b32 v{t+4}, 0')
            a.i(f's_mov_b32 exec_lo, 0')
            a.i(f's_mov_b32 exec_hi, 0x80000000')
            a.i(f'buffer_store_dwordx2 v[{t+2}:{t+3}], v{t+4}, {SRD_WS}, s{sT} offen sc1')
            a.i(f's_mov_b64 exec, -1')
        return self.add_comp(Comp(emit, (), f'publish {inst}'))

    def mk_qgather(self, inst):
        def emit():
            a = self.a
            a.i(f's_lshl_b32 s{sT}, s{sH}, 8')
            a.i(f's_add_u32 s{sT}, s{sT}, {W_Q + inst * 8192}')
            a.i(f's_add_u32 m0, s{sQG}, {(inst & 1) * 256}')
            a.i(f'v_lshrrev_b32 v{T+19}, 2, v{vL16}')
            return a.i(f'buffer_load_dword v{T+19}, {SRD_WS}, s{sT} offen sc1 lds')
        return self.add_load(Load(emit, None, f'QG {inst}'))
    def q_read(self, inst):
        a = self.a; t = T
        lane(a, t+1)
        a.i(f'v_and_b32 v{t}, 1, v{t+1}')
        a.i(f'v_lshlrev_b32 v{t}, 6, v{t}')
        a.i(f'v_lshrrev_b32 v{t+1}, 4, v{t+1}')
        a.i(f'v_lshl_add_u32 v{t}, v{t+1}, 4, v{t}')
        a.i(f'v_add_u32 v{t}, s{sQG}, v{t}')
        a.i(f'ds_read_b128 {vr(vQ)}, v{t} offset:{(inst & 1) * 256}')
        lid = a.i(f'ds_read_b128 {vr(vQ+4)}, v{t} offset:{(inst & 1) * 256 + 128}')
        a.wait_lg(lid)
    def q_bad(self):
        a = self.a; t = T + 2
        a.i(f'v_max3_u32 v{t}, v{vQ}, v{vQ+1}, v{vQ+2}')
        a.i(f'v_max3_u32 v{t}, v{t}, v{vQ+3}, v{vQ+4}')
        a.i(f'v_max3_u32 v{t}, v{t}, v{vQ+5}, v{vQ+6}')
        a.i(f'v_max_u32 v{t}, v{t}, v{vQ+7}')
        a.i(f'v_cmp_eq_u32 vcc, -1, v{t}')
        a.i(f's_cmp_lg_u64 vcc, 0')
    def mk_acquire(self, inst, gather):
        def emit():
            a = self.a
            self.flush_adds()
            self.q_read(inst)
            if gather is not None and not self.c.test_attn:
                ok = a.newlabel('qok'); lp = a.newlabel('qretry')
                self.q_bad()
                self.cond_begin()
                a.i(f's_cbranch_scc0 {ok}')
                a.label(lp)
                a.i('s_sleep 2')
                a.i(f's_lshl_b32 s{sT}, s{sH}, 8')
                a.i(f's_add_u32 s{sT}, s{sT}, {W_Q + inst * 8192}')
                a.i(f's_add_u32 m0, s{sQG}, {(inst & 1) * 256}')
                a.i(f'v_lshrrev_b32 v{T+19}, 2, v{vL16}')
                a.i(f'buffer_load_dword v{T+19}, {SRD_WS}, s{sT} offen sc1 lds')
                a.i('s_waitcnt vmcnt(0)')
                self.q_read(inst)
                self.q_bad()
                a.i(f's_cbranch_scc0 {ok}')
                a.i(f's_sub_u32 s{sSpin}, s{sSpin}, 1')
                a.i(f's_cmp_gt_i32 s{sSpin}, 0')
                a.i(f's_cbranch_scc1 {lp}')
                self.cond_end()
                a.label(ok)
        return self.add_comp(Comp(emit, [gather] if gather else [], f'acquire {inst}'))

    def mk_b1(self):
        def emit():
            a = self.a
            a.i('s_barrier')
            skip = a.newlabel('b1')
            a.i(f's_cmp_eq_u32 s{sWave}, 0')
            self.cond_begin()
            a.i(f's_cbranch_scc0 {skip}')
            a.i(f'v_mov_b32 v{T}, 0')
            a.i(f'v_mov_b32 v{T+1}, 1')
            a.i('s_mov_b64 exec, 1')
            a.i(f'global_atomic_add v{T}, v{T+1}, s[{P_DBG}:{P_DBG+1}]')
            a.i('s_mov_b64 exec, -1')
            self.cond_end()
            a.label(skip)
        return self.add_comp(Comp(emit, self.pro_loads, 'B1'))
    def mk_clrload(self):
        def emit():
            a = self.a
            a.i(f'v_mov_b32 v{T+18}, 0')
            return a.i(f'global_load_dword v{T+19}, v{T+18}, s[{P_DBG}:{P_DBG+1}] sc1')
        return self.add_load(Load(emit, None, 'CLR'))
    def mk_clrcheck(self, cl):
        def emit():
            a = self.a
            ok = a.newlabel('clok'); lp = a.newlabel('clp')
            a.i(f'v_readfirstlane_b32 s{sT}, v{T+19}')
            a.i(f's_cmp_eq_u32 s{sT}, 224')
            self.cond_begin()
            a.i(f's_cbranch_scc1 {ok}')
            a.label(lp)
            a.i(f'global_load_dword v{T+19}, v{T+18}, s[{P_DBG}:{P_DBG+1}] sc1')
            a.i('s_waitcnt vmcnt(0)')
            a.i(f'v_readfirstlane_b32 s{sT}, v{T+19}')
            a.i(f's_cmp_eq_u32 s{sT}, 224')
            a.i(f's_cbranch_scc1 {ok}')
            a.i(f's_sub_u32 s{sSpin}, s{sSpin}, 1')
            a.i(f's_cmp_gt_i32 s{sSpin}, 0')
            a.i(f's_cbranch_scc1 {lp}')
            self.cond_end()
            a.label(ok)
        return self.add_comp(Comp(emit, [cl], 'clrcheck'))

    def kslot(self, u):
        return ar(4 * u) if u < 64 else vr(self.vRET + 4 * (u - 64))
    def stream_k(self, inst, Pset, tiles):
        b = inst & 1
        cnt = 0
        for ti, tile in enumerate(tiles):
            ku = k_units(tile)
            for gi in range(0, len(ku), 2):
                g = ku[gi][0]
                ls = []; regs = []
                self.curpol = self.c.polA[inst] if cnt < self.c.mallK[inst & 1] else ' nt'
                cnt += 2
                for jj in range(2):
                    s = self.ring_slot()
                    ls.append(self.mk_kload(b, tile, g, jj, vr(vRING + 4*s), self.ring_reader[s])); regs.append(s)
                C = self.mk_qk(vr(vRING + 4*regs[0]), vr(vRING + 4*regs[1]), vP[Pset] + ti, tile, g, ls)
                for s in regs: self.ring_reader[s] = C
    def stream_v(self, inst, Pset, tiles):
        b = inst & 1
        cnt = 0
        Iset = 'X' if b == 0 else 'Y'
        for ti, tile in enumerate(tiles):
            for t in v_units(tile):
                self.curpol = self.c.polA[inst] if cnt < self.c.mallV[inst & 1] else ' nt'
                cnt += 1
                s = self.ring_slot()
                L = self.mk_vload(b, tile, t, vr(vRING + 4*s), self.ring_reader[s])
                self.ring_reader[s] = self.mk_pv(vr(vRING + 4*s), vP[Pset] + ti, t, vO[Iset], [L])
    def b_kunits(self):
        out = []
        for ti, tile in enumerate(HALF_B):
            for (g, jj) in k_units(tile): out.append((ti, tile, g, jj))
        assert len(out) == 72
        return out
    def b_vunits(self):
        out = []
        for ti, tile in enumerate(HALF_B):
            for t in v_units(tile): out.append((ti, tile, t))
        assert len(out) == 72
        return out
    def halfB_loadK(self, b):
        self.curpol = self.c.pol
        return [self.mk_kload(b, tile, g, jj, self.kslot(u), self.k_reader[u]) for u, (ti, tile, g, jj) in enumerate(self.b_kunits())]
    def halfB_loadV(self, b):
        self.curpol = self.c.pol
        Ls = []
        for u, (ti, tile, t) in enumerate(self.b_vunits()):
            if u < self.NV_REG:
                Ls.append(self.mk_vload(b, tile, t, vr(self.vRET + 4 * (self.KX + u)), self.v_reader[u]))
            else:
                Ls.append(self.mk_vload_lds(b, tile, t, u - self.NV_REG, self.v_reader[u]))
        return Ls
    def halfB_qk(self, Pset, Ls):
        ku = self.b_kunits()
        for u in range(0, 72, 2):
            ti, tile, g, _ = ku[u]
            needs = [Ls[u], Ls[u+1]] if Ls else []
            C = self.mk_qk(self.kslot(u), self.kslot(u + 1), vP[Pset] + ti, tile, g, needs)
            self.k_reader[u] = C; self.k_reader[u+1] = C
    def halfB_pv(self, inst, Pset, Ls):
        Iset = 'X' if (inst & 1) == 0 else 'Y'
        for u, (ti, tile, t) in enumerate(self.b_vunits()):
            needs = [Ls[u]] if Ls else []
            if u < self.NV_REG:
                C = self.mk_pv(vr(self.vRET + 4 * (self.KX + u)), vP[Pset] + ti, t, vO[Iset], needs)
            else:
                C = self.mk_pv_lds(u - self.NV_REG, vP[Pset] + ti, t, vO[Iset], needs)
            self.v_reader[u] = C

    def mark(self, name):
        self.marks[name] = len(self.loads)
        if self.c.timing and self.c.stamp_pos is None: self.add_comp(Comp(self.stamp_now, (), 'stamp'))
    def stamp_now(self):
        a = self.a
        k = self.nstamp; self.nstamp += 1
        a.smem(f's_memrealtime s[{sT}:{sT+1}]')
        a.raw('  s_waitcnt lgkmcnt(0)'); a.t += 1; a.lg = []
        a.i(f's_mov_b32 s{STAMP0 + k}, s{sT}')

    def place_before_end(self, L, n):
        self.loads.remove(L); self.loads.insert(len(self.loads) - n, L)

    def build(self):
        c = self.c
        KL = self.halfB_loadK(0)
        if not c.test_attn:
            cs = self.mk_clear()
            for k, L in enumerate(cs): self.loads.insert(c.CLRST_POS + k, L)
            self.pro_loads = [self.loads[c.CLRST_POS + 3 + c.B1_LAG]]
            self.mk_b1()
        if not c.test_attn:
            cl = self.mk_clrload()
            self.loads.remove(cl); self.loads.insert(c.CLR_POS, cl)
            self.mk_clrcheck(cl)
        VL = self.halfB_loadV(0)
        qg0 = self.mk_qgather(0)
        self.loads.remove(qg0); self.loads.insert(c.QG0_POS, qg0)
        self.mk_acquire(0, qg0)
        self.halfB_qk('X', KL)
        self.mk_softmax('X', 'X', True, HALF_B)
        n0 = len(self.comps)
        self.halfB_pv(0, 'X', VL)
        cB = self.comps[n0:]; del self.comps[n0:]
        self.stream_k(0, 'Y', HALF_A)
        cA = self.comps[n0:]; del self.comps[n0:]
        self.comps += self.interleave(cB, cA, 2)
        qg1 = self.mk_qgather(1)
        self.mk_softmax('Y', 'X', False, HALF_A)
        self.stream_v(0, 'Y', HALF_A)
        self.mk_publish(0)
        self.mark('A')
        self.mk_acquire(1, qg1)
        self.stream_k(1, 'Y', HALF_A)
        self.mk_softmax('Y', 'Y', True, HALF_A)
        self.stream_v(1, 'Y', HALF_A)
        qg2 = self.mk_qgather(2); self.place_before_end(qg2, c.QG_LEAD)
        self.mark('B')
        self.mk_acquire(2, qg2)
        self.halfB_qk('X', None)
        self.mk_softmax('X', 'X', True, HALF_B)
        self.halfB_pv(2, 'X', None)
        KL = self.halfB_loadK(1)
        VL = self.halfB_loadV(1)
        self.mk_acquire(1, None)
        self.halfB_qk('Y', KL)
        self.mk_softmax('Y', 'Y', False, HALF_B)
        self.halfB_pv(1, 'Y', VL)
        self.mk_publish(1)
        self.mark('C')
        self.mk_acquire(2, None)
        self.stream_k(2, 'X', HALF_A)
        self.mk_softmax('X', 'X', False, HALF_A)
        self.stream_v(2, 'X', HALF_A)
        qg3 = self.mk_qgather(3); self.place_before_end(qg3, c.QG_LEAD)
        self.mk_publish(2)
        self.mark('D')
        self.mk_acquire(3, qg3)
        n0 = len(self.comps)
        self.stream_k(3, 'X', HALF_A)
        compsA = self.comps[n0:]; del self.comps[n0:]
        self.halfB_qk('Y', None)
        self.mk_softmax('Y', 'Y', True, HALF_B)
        self.halfB_pv(3, 'Y', None)
        compsB = self.comps[n0:]; del self.comps[n0:]
        self.comps += self.interleave(compsB, compsA, 3)
        self.mk_softmax('X', 'Y', False, HALF_A)
        self.stream_v(3, 'X', HALF_A)
        self.mk_publish(3)
        self.mark('E')

    def interleave(self, main, other, every):
        ia = 0; merged = []
        for k, C in enumerate(main):
            merged.append(C)
            if k % every == every - 1 and ia < len(other):
                merged.append(other[ia]); ia += 1
        merged += other[ia:]
        return merged

    def emit_comp(self, C):
        for L in C.needs:
            assert L.vid is not None, ('load not issued before its consumer', C.name, L.name)
            self.a.wait_vm(L.vid)
        C.emit(); C.done = True

    def schedule(self):
        c = self.c; a = self.a
        ci = 0; comps = self.comps
        for li, L in enumerate(self.loads):
            L.idx = li
            if L.after is not None and not L.after.done:
                while not L.after.done:
                    self.emit_comp(comps[ci]); ci += 1
            if li >= max(c.D, c.BURST):
                a.wait_vm(self.loads[li - c.D].vid)
            L.vid = L.emit()
            if c.stamp_pos is not None and li in c.stamp_pos: self.stamp_now()
            n = 0
            while ci < len(comps) and n < c.budget:
                C = comps[ci]
                if all(x.vid is not None and a.vm_done(x.vid) for x in C.needs):
                    self.emit_comp(C); ci += 1; n += 1
                else:
                    break
        while ci < len(comps):
            self.emit_comp(comps[ci]); ci += 1

    def prologue(self):
        a = self.a; c = self.c
        l = T + 8
        a.i(f'v_mov_b32 v{l}, v0')
        a.i(f's_mul_i32 s{sT}, s{sS}, 292')
        a.i(f's_min_u32 s{sT+1}, s{sS}, 4')
        a.i(f's_add_u32 s{sT}, s{sT}, s{sT+1}')
        a.i(f's_lshl_b32 s{sT}, s{sT}, 11')
        a.i(f's_lshl_b32 s{sT+1}, s{sH}, 22')
        a.i(f's_add_u32 s{sT}, s{sT}, s{sT+1}')
        a.i(f's_lshl_b32 s{sT+1}, s{sWave}, 14')
        a.i(f's_add_u32 s{sB[0]}, s{sT}, s{sT+1}')
        a.i(f's_add_u32 s{sB[1]}, s{sB[0]}, 0x8000000')
        a.i(f's_lshl_b32 s{sT+1}, s{sWave}, 12')
        a.i(f's_add_u32 s{sBp[0]}, s{sT}, s{sT+1}')
        a.i(f's_add_u32 s{sBp[0]}, s{sBp[0]}, {9 * 65536}')
        a.i(f's_add_u32 s{sBp[1]}, s{sBp[0]}, 0x8000000')
        a.i(f's_cmp_lt_u32 s{sS}, 4')
        a.i(f's_cselect_b32 s{sT}, 5, 4')
        a.i(f's_lshl_b32 s{sT+1}, s{sWave}, 1')
        a.i(f's_sub_i32 s{sT}, s{sT}, s{sT+1}')
        a.i(f's_max_i32 s{sT}, s{sT}, 0')
        a.i(f's_min_i32 s{sT}, s{sT}, 2')
        a.i(f's_lshl_b32 s{sNV}, s{sT}, 3')
        for g in range(2):
            a.i(f's_cmp_gt_u32 s{sNV}, {8 * g}')
            a.i(f's_cselect_b64 s[{sPX[g]}:{sPX[g]+1}], -1, 0')
        a.i(f's_lshl_b32 s{sPidx}, s{sS}, 2')
        a.i(f's_add_u32 s{sPidx}, s{sPidx}, s{sWave}')
        a.i(f's_mul_i32 s{sLdsRet}, s{sWave}, {self.NV_LDS * 1024}')
        a.i(f's_add_u32 s{sLdsRet}, s{sLdsRet}, {L_RET}')
        a.i(f's_lshl_b32 s{sQG}, s{sWave}, 9')
        if L_QG: a.i(f's_add_u32 s{sQG}, s{sQG}, {L_QG}')
        a.i(f'v_lshlrev_b32 v{vL16}, 4, v{l}')
        a.i(f'v_add_u32 v{vLdsRet}, s{sLdsRet}, v{vL16}')
        a.i(f's_sub_u32 s{sLdsRet}, s{sLdsRet}, 4096')
        a.i(f'v_and_b32 v{T}, 7, v{l}')
        a.i(f'v_lshlrev_b32 v{vKoff}, 8, v{T}')
        a.i(f'v_bfe_u32 v{T}, v{l}, 3, 1')
        a.i(f'v_lshl_add_u32 v{vKoff}, v{T}, 6, v{vKoff}')
        a.i(f'v_lshrrev_b32 v{T+1}, 4, v{l}')
        a.i(f'v_lshl_add_u32 v{vKoff}, v{T+1}, 4, v{vKoff}')
        a.i(f'v_and_b32 v{T}, 15, v{l}')
        a.i(f'v_lshlrev_b32 v{vVoff}, 4, v{T}')
        a.i(f'v_lshl_add_u32 v{vV8}, v{T+1}, 11, v{vVoff}')
        a.i(f'v_lshl_add_u32 v{vVoff}, v{T+1}, 12, v{vVoff}')
        a.i(f'v_lshl_add_u32 v{T+2}, v{T}, 2, v{T+1}')
        a.i(f'v_cmp_gt_u32 vcc, s{sNV}, v{T+2}')
        a.i(f'v_cndmask_b32 v{T+2}, 16, v{T+2}, vcc')
        a.i(f'v_lshlrev_b32 v{vBP}, 2, v{T+2}')
        a.i(f'v_and_b32 v{T+2}, 1, v{l}')
        a.i(f'v_lshlrev_b32 v{T+2}, 4, v{T+2}')
        a.i(f'v_mov_b32 v{T+3}, 0xffff')
        a.i(f'v_lshlrev_b32 v{T+3}, v{T+2}, v{T+3}')
        a.i(f'v_lshrrev_b32 v{T+4}, 1, v{T}')
        for r in range(4):
            a.i(f'v_cmp_eq_u32 vcc, {r}, v{T+4}')
            a.i(f'v_cndmask_b32 v{vMask[r]}, 0, v{T+3}, vcc')

    def mk_clear(self):
        res = []
        def mk(k):
            def emit():
                a = self.a
                if k == 0:
                    for i in range(4): a.i(f'v_mov_b32 v{T+12+i}, -1')
                    a.i(f's_sub_u32 s{sClr}, s{sWG}, 32')
                    a.i(f's_lshl_b32 s{sClr}, s{sClr}, 2')
                    a.i(f's_add_u32 s{sClr}, s{sClr}, s{sWave}')
                    a.i(f's_mul_i32 s{sClr}, s{sClr}, 3072')
                return a.i(f'buffer_store_dwordx4 v[{T+12}:{T+15}], v{vL16}, {SRD_WS}, s{sClr} offen offset:{k*1024} sc1')
            return emit
        for k in range(3):
            L = Load(mk(k), None, 'CLRST'); res.append(L)
        return res

    def write_stamps(self, extra=()):
        a = self.a
        a.i(f's_lshl_b32 s{sT}, s{sWG}, 2')
        a.i(f's_add_u32 s{sT}, s{sT}, s{sWave}')
        a.i(f's_lshl_b32 s{sT}, s{sT}, 6')
        a.i(f's_add_u32 s{sT}, s{sT}, {W_DBG}')
        a.i(f's_mov_b64 exec, 1')
        a.i(f'v_mov_b32 v{T+1}, 0')
        for k in range(self.nstamp):
            a.i(f'v_mov_b32 v{T}, s{STAMP0 + k}')
            a.i(f'buffer_store_dword v{T}, v{T+1}, {SRD_WS}, s{sT} offen offset:{4*k}')
        a.i(f'v_mov_b32 v{T}, s{sSpin}')
        a.i(f'buffer_store_dword v{T}, v{T+1}, {SRD_WS}, s{sT} offen offset:48')
        a.i(f's_mov_b64 exec, -1')
```

```python
import sys
from asmlib import Asm
from common import *
import stream as ST
import service as SV

class Cfg:
    D = 7; NRING = 8; BURST = 8; budget = 4
    pol = ' nt'; pol_w = ' nt'; polA = ['', '', ' nt', ' nt']; mallK = [40, 40]; mallV = [40, 40]; FAST_S1 = (0, 1, 2, 3); FAT = (); l2tile = False; pol_l2 = ['', ' nt']; mall_mod = None; SVC_DEPTH = 48; tail_stamps = False; Dsched = []; skip_inv = True; xshift = 0; CLRST_POS = 8; B1_LAG = 4
    test_attn = False; timing = False
    CLR_POS = 64; QG0_POS = 140; QG_LEAD = 12
    S1_SLOW = 8; S1_FIRST = 20
    SPIN = 200000; SLEEP = 0; stamp_pos = None

def generate(c):
    a = Asm()
    st = ST.Stream(c, a)
    a.i('s_cmp_ge_u32 s2, 256'); a.i('s_cbranch_scc1 L_end')
    if c.timing: st.stamp_now()
    a.smem('s_load_dwordx16 s[64:79], s[0:1], 0')
    a.smem('s_load_dwordx8 s[80:87], s[0:1], 64')
    a.i('v_lshrrev_b32 v1, 6, v0')
    a.i('v_and_b32 v0, 63, v0')
    a.i(f'v_readfirstlane_b32 s{sWave}, v1')
    a.i(f's_mov_b32 s{sWG}, s2')
    a.i(f's_and_b32 s{sT}, s2, 7')
    if c.xshift:
        a.i(f's_add_u32 s{sT}, s{sT}, {c.xshift}')
        a.i(f's_and_b32 s{sT}, s{sT}, 7')
    a.i(f's_lshr_b32 s{sT+1}, s2, 3')
    a.i(f's_mov_b32 s{sSpin}, {c.SPIN}')
    a.raw('  s_waitcnt lgkmcnt(0)'); a.t += 1
    def srd(base, ptr, size):
        a.i(f's_mov_b32 s{base}, s{ptr}')
        a.i(f's_and_b32 s{base+1}, s{ptr+1}, 0xffff')
        a.i(f's_mov_b32 s{base+2}, {hex(size)}')
        a.i(f's_mov_b32 s{base+3}, 0x20000')
    srd(4, P_K, 1 << 28); srd(8, P_V, 1 << 28); srd(12, P_WS, WS_BYTES); srd(16, P_OUT, 2048)
    srd(20, P_WQ, 512 * 4096 * 2)
    a.i('s_and_b32 s65, s65, 0xffff'); a.i('s_mov_b32 s66, 2048'); a.i('s_mov_b32 s67, 0x20000')
    a.i(f's_cmp_lt_u32 s{sT+1}, 4')
    a.i('s_cbranch_scc1 L_service')
    a.i(f's_sub_u32 s{sT+1}, s{sT+1}, 4')
    a.i(f's_mul_i32 s{sT+2}, s{sT+1}, 37')
    a.i(f's_lshr_b32 s{sT+2}, s{sT+2}, 8')
    a.i(f's_lshl_b32 s{sH}, s{sT}, 2')
    a.i(f's_add_u32 s{sH}, s{sH}, s{sT+2}')
    a.i(f's_mul_i32 s{sT+2}, s{sT+2}, 7')
    a.i(f's_sub_u32 s{sS}, s{sT+1}, s{sT+2}')
    st.prologue()
    if c.timing: st.stamp_now()
    st.build()
    st.schedule()
    a.wait_vm_all()
    if c.timing:
        st.stamp_now()
        st.write_stamps()
        a.wait_vm_all()
    a.i('s_endpgm')
    nst_stream = st.nstamp
    b = Asm()
    b.uid = 100000
    b.label('L_service')
    b.i(f's_lshl_b32 s{sH}, s{sT}, 2')
    b.i(f's_add_u32 s{sH}, s{sH}, s{sT+1}')
    st2 = ST.Stream(c, b); st2.nstamp = 1
    if not c.test_attn:
        sv = SV.Service(c, b, st2.stamp_now)
        sv.run()
        b.i('s_waitcnt vmcnt(0)')
        if c.timing:
            st2.stamp_now()
            st2.write_stamps()
            b.i('s_waitcnt vmcnt(0)')
    b.label('L_end')
    b.i('s_endpgm')
    lds = ST.L_RET + 4 * st.NV_LDS * 1024
    lds = max(lds, SV.L_TMP + 131072)
    assert lds <= 163840
    hdr = open('interleave_layers__gqa_block_cached__glu_gated_bilinear__decode.s.ref').read().split('\n')
    head = []
    for ln in hdr:
        if ln.startswith('; @launch'): head.append(f'; @launch grid=(256,1,1) block=(256,1,1) lds={lds}')
        elif ln.startswith(';'): head.append(ln)
        else: break
    out = '\n'.join(head) + '\n'
    out += '.amdgcn_target "amdgcn-amd-amdhsa--gfx950"\n.text\n'
    out += f'.globl {NAME}\n.p2align 8\n.type {NAME},@function\n{NAME}:\n'
    out += a.text() + b.text()
    out += '.section .rodata,"a"\n.p2align 6\n'
    out += f'.amdhsa_kernel {NAME}\n  .amdhsa_next_free_vgpr 512\n  .amdhsa_next_free_sgpr 102\n  .amdhsa_accum_offset 256\n'
    out += '  .amdhsa_group_segment_fixed_size 0\n  .amdhsa_kernarg_size 96\n  .amdhsa_user_sgpr_count 2\n'
    out += '  .amdhsa_user_sgpr_kernarg_segment_ptr 1\n  .amdhsa_system_sgpr_workgroup_id_x 1\n.end_amdhsa_kernel\n'
    print('instrs stream', a.ninstr, 'service', b.ninstr, 'loads', len(st.loads), st.marks, 'lds', lds, 'stamps', nst_stream, st2.nstamp)
    return out

if __name__ == '__main__':
    c = Cfg()
    for arg in sys.argv[2:]:
        k, v = arg.split('=', 1); setattr(c, k, eval(v))
    open(sys.argv[1], 'w').write(generate(c))
```

```python
from asmlib import Asm
from common import *

vLane, vL16, vL4 = 0, 1, 2
vG, vN = 3, 4
vCSQ = [5, 6]
vCSG, vCSU = 7, 8
vAaddr = 9
vZ = 10
vFM = 11
T = 12
aWQ, aWO = 0, 128
vWG, vWU, vWD = 64, 128, 192
sFv = 41
sXB = 42
sFsz = 3

L_XB = 0
L_OB = 4096
L_OH = 8192
L_ZB = 9216
L_TMP = 17408

class Service:
    def __init__(self, cfg, a, stampfn):
        self.c = cfg; self.a = a; self.stamp = stampfn
        self.slp = cfg.SLEEP
        self.ts = False

    def spin_tail(self, lp):
        a = self.a
        a.i(f's_sub_u32 s{sSpin}, s{sSpin}, 1')
        a.i(f's_cmp_gt_i32 s{sSpin}, 0')
        a.i(f's_cbranch_scc1 {lp}')

    def srd_t(self, ptr, size):
        a = self.a
        a.i(f's_mov_b32 s20, s{ptr}')
        a.i(f's_and_b32 s21, s{ptr+1}, 0xffff')
        a.i(f's_mov_b32 s22, {size}')
        a.i(f's_mov_b32 s23, 0x20000')

    def wait_all(self):
        self.a.i('s_waitcnt vmcnt(0) lgkmcnt(0)'); self.a.vm = []; self.a.lg = []

    def stage(self, nunits, voff_reg, soff_init, soff_step, lds0):
        a = self.a
        for k in range(nunits):
            a.i(f's_mov_b32 m0, s{sT+5}')
            a.i(f'buffer_load_dwordx4 v{voff_reg}, {SRD_T}, s{sT+4} offen{self.c.pol_w} lds')
            if k + 1 < nunits:
                a.i(f's_add_u32 s{sT+4}, s{sT+4}, {soff_step}')
                a.i(f's_add_u32 s{sT+5}, s{sT+5}, 1024')
            if len(a.vm) >= self.c.SVC_DEPTH:
                a.wait_vm(a.vm[0])

    def trread(self, dsts, addr_regs):
        a = self.a
        for (d0, d1, ad, o1, o2) in dsts:
            a.i(f'ds_read_b64_tr_b16 {d0}, v{ad} offset:{o1}')
            a.i(f'ds_read_b64_tr_b16 {d1}, v{ad} offset:{o2}')
            if len(a.lg) >= 12:
                a.wait_lg(a.lg[3])
        a.wait_lg_all()

    def colsum(self, Bregs, dst, ones):
        a = self.a
        acc = T + 8
        for j, B in enumerate(Bregs):
            c = '0' if j == 0 else vr(acc)
            a.i(f'v_mfma_f32_16x16x32_bf16 {vr(acc)}, {vr(ones)}, {B}, {c}')
        a.i(f'v_mov_b32 v{dst}, v{acc}')

    def init(self):
        a = self.a; c = self.c
        l = vLane
        a.i(f'v_lshlrev_b32 v{vL16}, 4, v{l}')
        a.i(f'v_lshlrev_b32 v{vL4}, 2, v{l}')
        a.i(f'v_lshrrev_b32 v{vG}, 4, v{l}')
        a.i(f'v_and_b32 v{vN}, 15, v{l}')
        a.i(f'v_mov_b32 v{vZ}, 0')
        a.i(f's_lshl_b32 s{sXB}, s{sWave}, 10')
        if L_XB: a.i(f's_add_u32 s{sXB}, s{sXB}, {L_XB}')
        a.i(f'v_lshlrev_b32 v{vAaddr}, 4, v{vG}')
        a.i(f'v_add_u32 v{vAaddr}, s{sXB}, v{vAaddr}')
        a.i(f's_lshl_b32 s{sT}, s{sH}, 2')
        a.i(f's_add_u32 s{sT}, s{sT}, s{sWave}')
        a.i(f's_cmp_lt_u32 s{sT}, 86')
        a.i(f's_cselect_b32 s{sFv}, 1, 0')
        a.i(f's_cmp_eq_u32 s{sFv}, 0')
        a.i(f's_cselect_b32 s{sT}, 0, -1')
        a.i(f'v_and_b32 v{vFM}, 3, v{l}')
        a.i(f'v_cmp_eq_u32 vcc, v{vFM}, v{vG}')
        a.i(f'v_cndmask_b32 v{vFM}, 0, -1, vcc')
        a.i(f'v_and_b32 v{vFM}, s{sT}, v{vFM}')
        a.i(f's_cmp_lt_u32 s{sH}, 22')
        a.i(f's_cselect_b32 s{sFsz}, {512 * 1376 * 2}, 0')
        self.srd_t(P_WQ, hex(512 * 4096 * 2))
        a.i(f'v_lshlrev_b32 v{T}, 13, v{vG}')
        a.i(f'v_lshl_add_u32 v{T}, v{vN}, 4, v{T}')
        a.i(f's_lshl_b32 s{sT+4}, s{sWave}, 20')
        a.i(f's_lshl_b32 s{sT}, s{sH}, 8')
        a.i(f's_add_u32 s{sT+4}, s{sT+4}, s{sT}')
        a.i(f's_lshl_b32 s{sT+5}, s{sWave}, 15')
        self.stage(32, T, None, 4 * 8192, None)
        self.wait_all()
        a.i('s_barrier')
        a.flush_hazards()
        a.i(f'v_bfe_u32 v{T+2}, v{l}, 2, 2')
        a.i(f'v_lshl_add_u32 v{T+2}, v{vG}, 3, v{T+2}')
        a.i(f'v_and_b32 v{T+3}, 3, v{l}')
        a.i(f'v_lshlrev_b32 v{T+3}, 3, v{T+3}')
        a.i(f'v_lshl_add_u32 v{T+4}, v{T+2}, 8, v{T+3}')
        a.i(f's_lshl_b32 s{sT}, s{sWave}, 6')
        a.i(f'v_add_u32 v{T+4}, s{sT}, v{T+4}')
        a.i(f'v_add_u32 v{T+5}, 0x10000, v{T+4}')
        d = []
        for cc in range(2):
            for j in range(16):
                r = aWQ + (cc * 16 + j) * 4
                ad = T + 4 if j < 8 else T + 5
                off = (j % 8) * 8192 + cc * 32
                d.append((ar(r, 2), ar(r + 2, 2), ad, off, off + 1024))
        self.trread(d, None)
        a.i('s_barrier')
        self.srd_t(P_WO, hex(4096 * 512 * 2))
        a.i(f's_lshl_b32 s{sT+4}, s{sH}, 17')
        a.i(f's_lshl_b32 s{sT}, s{sWave}, 15')
        a.i(f's_add_u32 s{sT+4}, s{sT+4}, s{sT}')
        a.i(f's_lshl_b32 s{sT+5}, s{sWave}, 15')
        a.i(f's_add_u32 s{sT+5}, s{sT+5}, {L_TMP}')
        self.stage(32, vL16, None, 1024, None)
        for i in range(4): a.i(f'v_mov_b32 v{T+4+i}, 0x3f803f80')
        for cc in range(2):
            self.colsum([ar(aWQ + (cc * 16 + j) * 4) for j in range(16)], vCSQ[cc], T + 4)
        self.clrcheck()
        self.taskQ(0)
        self.taskQ(1)
        if c.timing and not c.tail_stamps: self.stamp()
        self.wait_all()
        a.i('s_barrier')
        a.i(f'v_bfe_u32 v{T+2}, v{l}, 2, 2')
        a.i(f'v_lshl_add_u32 v{T+2}, v{vG}, 3, v{T+2}')
        a.i(f'v_and_b32 v{T+3}, 3, v{l}')
        a.i(f'v_lshlrev_b32 v{T+3}, 3, v{T+3}')
        a.i(f'v_lshl_add_u32 v{T+4}, v{T+2}, 10, v{T+3}')
        a.i(f's_lshl_b32 s{sT}, s{sWave}, 8')
        a.i(f's_add_u32 s{sT}, s{sT}, {L_TMP}')
        a.i(f'v_add_u32 v{T+4}, s{sT}, v{T+4}')
        a.i(f'v_add_u32 v{T+5}, 0x10000, v{T+4}')
        d = []
        for cc in range(8):
            for j in range(4):
                r = aWO + (cc * 4 + j) * 4
                ad = T + 4 if j < 2 else T + 5
                off = (j % 2) * 32768 + cc * 32
                d.append((ar(r, 2), ar(r + 2, 2), ad, off, off + 4096))
        self.trread(d, None)
        a.i('s_barrier')
        a.i(f'v_lshrrev_b32 v{T}, 3, v{l}')
        a.i(f's_mov_b32 s{sT}, 2752')
        a.i(f'v_mul_lo_u32 v{T}, v{T}, s{sT}')
        a.i(f'v_and_b32 v{T+1}, 7, v{l}')
        a.i(f'v_lshl_add_u32 v{T}, v{T+1}, 4, v{T}')
        for (ptr, lofs) in ((P_WG, L_TMP), (P_WU, L_TMP + 65536)):
            self.srd_t(ptr, f's{sFsz}')
            a.i(f's_mul_i32 s{sT+4}, s{sWave}, {16 * 8 * 2752}')
            a.i(f's_lshl_b32 s{sT}, s{sH}, 7')
            a.i(f's_add_u32 s{sT+4}, s{sT+4}, s{sT}')
            a.i(f's_lshl_b32 s{sT+5}, s{sWave}, 14')
            a.i(f's_add_u32 s{sT+5}, s{sT+5}, {lofs}')
            self.stage(16, T, None, 8 * 2752, None)
        self.wait_all()
        a.i('s_barrier')
        a.i(f'v_lshl_add_u32 v{T+4}, v{T+2}, 7, v{T+3}')
        a.i(f's_lshl_b32 s{sT}, s{sWave}, 5')
        a.i(f's_add_u32 s{sT}, s{sT}, {L_TMP}')
        a.i(f'v_add_u32 v{T+4}, s{sT}, v{T+4}')
        a.i(f'v_add_u32 v{T+5}, 0x10000, v{T+4}')
        d = []
        for (base, ad) in ((vWG, T + 4), (vWU, T + 5)):
            for j in range(16):
                r = base + j * 4
                d.append((vr(r, 2), vr(r + 2, 2), ad, j * 4096, j * 4096 + 512))
        self.trread(d, None)
        a.i('s_barrier')
        self.srd_t(P_WD, f's{sFsz}')
        a.i(f's_lshl_b32 s{sT+4}, s{sH}, 16')
        a.i(f's_lshl_b32 s{sT}, s{sWave}, 14')
        a.i(f's_add_u32 s{sT+4}, s{sT+4}, s{sT}')
        a.i(f's_lshl_b32 s{sT+5}, s{sWave}, 14')
        a.i(f's_add_u32 s{sT+5}, s{sT+5}, {L_TMP}')
        self.stage(16, vL16, None, 1024, None)
        for i in range(4): a.i(f'v_mov_b32 v{T+4+i}, 0x3f803f80')
        self.colsum([vr(vWG + 4 * j) for j in range(16)], vCSG, T + 4)
        self.colsum([vr(vWU + 4 * j) for j in range(16)], vCSU, T + 4)
        self.wait_all()
        a.i(f'v_bfe_u32 v{T}, v{l}, 2, 2')
        a.i(f'v_lshlrev_b32 v{T}, 10, v{T}')
        a.i(f'v_lshl_add_u32 v{T}, v{vG}, 5, v{T}')
        a.i(f'v_add_u32 v{T}, v{T}, v{T+3}')
        a.i(f's_lshl_b32 s{sT}, s{sWave}, 14')
        a.i(f's_add_u32 s{sT}, s{sT}, {L_TMP}')
        a.i(f'v_add_u32 v{T}, s{sT}, v{T}')
        d = []
        for cc in range(8):
            for fh in range(2):
                r = vWD + (cc * 2 + fh) * 4
                off = fh * 8192 + cc * 128
                d.append((vr(r, 2), vr(r + 2, 2), T, off, off + 4096))
        self.trread(d, None)
        a.i(f's_lshl_b32 s{sT}, s{sWave}, 14')
        a.i(f's_add_u32 s{sT}, s{sT}, {L_TMP}')
        a.i(f'v_add_u32 v{T+1}, s{sT}, v{vL16}')
        for k in range(16):
            a.i(f'ds_write_b128 v{T+1}, {vr(vWD + 4 * k)} offset:{k * 1024}')
            if len(a.lg) >= 12: a.wait_lg(a.lg[3])
        a.wait_lg_all()
        a.i(f'v_lshlrev_b32 v{T+2}, 6, v{vN}')
        a.i(f'v_lshl_add_u32 v{T+2}, v{vG}, 4, v{T+2}')
        a.i(f'v_add_u32 v{T+2}, s{sT}, v{T+2}')
        for k in range(16):
            a.i(f'ds_read_b128 {vr(vWD + 4 * k)}, v{T+2} offset:{k * 1024}')
            if len(a.lg) >= 12: a.wait_lg(a.lg[3])
        a.wait_lg_all()
        a.i('s_barrier')
        if c.timing and not c.tail_stamps: self.stamp()

    def clrcheck(self):
        a = self.a
        ok = a.newlabel('sclok'); lp = a.newlabel('sclp')
        a.label(lp)
        a.i(f'global_load_dword v{T+8}, v{vZ}, s[{P_DBG}:{P_DBG+1}] sc1')
        a.i('s_waitcnt vmcnt(0)'); a.vm = []
        a.i(f'v_readfirstlane_b32 s{sT}, v{T+8}')
        a.i(f's_cmp_ge_u32 s{sT}, 224')
        a.i(f's_cbranch_scc1 {ok}')
        a.i('s_sleep 4')
        self.spin_tail(lp)
        a.label(ok)
        a.flush_hazards()

    def bad_scc(self, regs, tmp):
        a = self.a
        regs = list(regs)
        a.i(f'v_max_u32 v{tmp}, v{regs[0]}, v{regs[1]}')
        k = 2
        while k < len(regs):
            if k + 1 < len(regs):
                a.i(f'v_max3_u32 v{tmp}, v{tmp}, v{regs[k]}, v{regs[k+1]}'); k += 2
            else:
                a.i(f'v_max_u32 v{tmp}, v{tmp}, v{regs[k]}'); k += 1
        a.i(f'v_cmp_eq_u32 vcc, -1, v{tmp}')
        a.i(f's_cmp_lg_u64 vcc, 0')

    def x_acquire(self, srd, soff_expr, sc1):
        a = self.a
        lp = a.newlabel('xa'); ok = a.newlabel('xaok')
        a.flush_hazards()
        a.label(lp)
        a.i(f'buffer_load_dwordx4 {vr(T)}, v{vL16}, {srd}, {soff_expr} offen{sc1}')
        a.i('s_waitcnt vmcnt(0)'); a.vm = []
        if sc1:
            self.bad_scc(range(T, T + 4), T + 4)
            a.i(f's_cbranch_scc0 {ok}')
            if self.slp: a.i(f's_sleep {self.slp}')
            self.spin_tail(lp)
            a.label(ok)
        a.flush_hazards()
        a.i(f'v_add_u32 v{T+4}, s{sXB}, v{vL16}')
        a.i(f'ds_write_b128 v{T+4}, {vr(T)}')

    def gemv2_stats(self, B0, B1, cs0, cs1, aaddr=None):
        a = self.a
        acc0, acc1 = T + 8, T + 12
        Ab = [T + 16, T + 20, T + 24, T + 28]
        S = T + 32
        ids = {}
        if aaddr is None: aaddr = vAaddr
        def issue(j): ids[j] = a.i(f'ds_read_b128 {vr(Ab[j % 4])}, v{aaddr} offset:{j * 64}')
        for j in range(4): issue(j)
        g = []
        def step(j):
            def f():
                a.wait_lg(ids[j])
                c0 = '0' if j == 0 else vr(acc0); c1 = '0' if j == 0 else vr(acc1)
                a.i(f'v_mfma_f32_16x16x32_bf16 {vr(acc0)}, {vr(Ab[j % 4])}, {B0[j]}, {c0}')
                a.i(f'v_mfma_f32_16x16x32_bf16 {vr(acc1)}, {vr(Ab[j % 4])}, {B1[j]}, {c1}')
                if j + 4 < 16: issue(j + 4)
            return f
        g = [step(j) for j in range(16)]
        st = []
        I = lambda t: st.append(lambda: a.i(t))
        for k in range(4):
            I(f'v_lshlrev_b32 v{S+6}, 16, v{T+k}')
            I(f'v_and_b32 v{S+7}, 0xffff0000, v{T+k}')
            if k == 0:
                I(f'v_add_f32 v{S+4}, v{S+6}, v{S+7}')
                I(f'v_mul_f32 v{S+5}, v{S+6}, v{S+6}')
            else:
                I(f'v_add_f32 v{S+4}, v{S+4}, v{S+6}')
                I(f'v_fmac_f32 v{S+5}, v{S+6}, v{S+6}')
                I(f'v_add_f32 v{S+4}, v{S+4}, v{S+7}')
            I(f'v_fmac_f32 v{S+5}, v{S+7}, v{S+7}')
        for c in DPP_STEPS:
            I(f'v_add_f32_dpp v{S+4}, v{S+4}, v{S+4} {c} bank_mask:0xf')
            I(f'v_add_f32_dpp v{S+5}, v{S+5}, v{S+5} {c} bank_mask:0xf')
        I(f'v_readlane_b32 s{sT+8}, v{S+4}, 63')
        I(f'v_readlane_b32 s{sT+9}, v{S+5}, 63')
        I(f'v_mov_b32 v{S}, s{sT+8}')
        I(f'v_mov_b32 v{S+1}, s{sT+9}')
        I(f'v_mul_f32 v{S}, {hex(f2u(1.0/512))}, v{S}')
        I(f'v_mul_f32 v{S+1}, {hex(f2u(1.0/512))}, v{S+1}')
        I(f'v_fma_f32 v{S+1}, -v{S}, v{S}, v{S+1}')
        I(f'v_max_f32 v{S+1}, 0, v{S+1}')
        I(f'v_cvt_pk_bf16_f32 v{S}, v{S}, v{S}')
        I(f'v_cvt_pk_bf16_f32 v{S+1}, v{S+1}, v{S+1}')
        I(f'v_and_b32 v{S}, 0xffff0000, v{S}')
        I(f'v_and_b32 v{S+1}, 0xffff0000, v{S+1}')
        I(f'v_add_f32 v{S+1}, {hex(f2u(1e-5))}, v{S+1}')
        I(f'v_cvt_pk_bf16_f32 v{S+1}, v{S+1}, v{S+1}')
        I(f'v_and_b32 v{S+1}, 0xffff0000, v{S+1}')
        I(f'v_sqrt_f32 v{S+1}, v{S+1}')
        I(f'v_cvt_pk_bf16_f32 v{S+1}, v{S+1}, v{S+1}')
        I(f'v_and_b32 v{S+1}, 0xffff0000, v{S+1}')
        I(f'v_rcp_f32 v{S+1}, v{S+1}')
        I(f'v_mul_f32 v{S+2}, v{S}, v{cs0}')
        I(f'v_mul_f32 v{S+3}, v{S}, v{cs1}')
        n = max(len(g), len(st)); ig = ist = 0
        for stp in range(16):
            g[stp]()
            tgt = (stp + 1) * len(st) // 16
            while ist < tgt: st[ist](); ist += 1
        a.i(f'v_sub_f32 v{acc0}, v{acc0}, v{S+2}')
        a.i(f'v_sub_f32 v{acc1}, v{acc1}, v{S+3}')
        a.i(f'v_mul_f32 v{acc0}, v{acc0}, v{S+1}')
        a.i(f'v_mul_f32 v{acc1}, v{acc1}, v{S+1}')
        return acc0, acc1

    def taskQ(self, inst):
        a = self.a
        if inst < 2:
            a.i(f's_mov_b32 s{sT}, {inst * 1024}')
            self.x_acquire(SRD_X, f's{sT}', '')
        else:
            a.i(f's_mov_b32 s{sT}, {W_XS + (inst - 2) * 1024}')
            self.x_acquire(SRD_WS, f's{sT}', ' sc1')
        acc0, acc1 = self.gemv2_stats([ar(aWQ + j * 4) for j in range(16)], [ar(aWQ + (16 + j) * 4) for j in range(16)], vCSQ[0], vCSQ[1])
        a.i(f'v_mov_b32_dpp v{acc0}, v{acc1} quad_perm:[0,1,2,3] row_mask:0x2 bank_mask:0xf')
        a.i(f'v_mov_b32_dpp v{T}, v{acc0} quad_perm:[1,1,3,3] row_mask:0xf bank_mask:0xf')
        a.i(f'v_cvt_pk_bf16_f32 v{T}, v{acc0}, v{T}')
        a.i(f'v_lshlrev_b32 v{T+1}, 1, v{vLane}')
        a.i(f's_lshl_b32 s{sT}, s{sH}, 8')
        a.i(f's_lshl_b32 s{sT+1}, s{sWave}, 6')
        a.i(f's_add_u32 s{sT}, s{sT}, s{sT+1}')
        a.i(f's_add_u32 s{sT}, s{sT}, {W_Q + inst * 8192}')
        a.i('s_mov_b32 exec_lo, 0x55555555'); a.i('s_mov_b32 exec_hi, 0')
        a.i(f'buffer_store_dword v{T}, v{T+1}, {SRD_WS}, s{sT} offen sc1')
        a.i('s_mov_b64 exec, -1')

    def taskS1(self, inst):
        a = self.a
        ML = T
        lp = a.newlabel('s1'); ok = a.newlabel('s1ok')
        a.i(f's_lshl_b32 s{sT}, s{sH}, 8')
        a.i(f's_add_u32 s{sT}, s{sT}, {W_PML + inst * 8192}')
        a.i(f'v_lshlrev_b32 v{T+2}, 3, v{vLane}')
        a.i(f'v_cmp_gt_u32 vcc, {NP}, v{vLane}')
        a.i(f's_mov_b64 s[{sT+2}:{sT+3}], vcc')
        if self.c.S1_SLOW:
            lp0 = a.newlabel('s1w'); ok0 = a.newlabel('s1wok')
            a.i(f's_cmp_eq_u32 s{sWave}, 0')
            a.flush_hazards()
            a.i(f's_cbranch_scc0 {ok0}')
            a.label(lp0)
            a.i(f'v_mov_b32 v{ML}, -1')
            a.i(f's_mov_b64 exec, s[{sT+2}:{sT+3}]')
            a.i(f'buffer_load_dword v{ML}, v{T+2}, {SRD_WS}, s{sT} offen sc1')
            a.i('s_mov_b64 exec, -1')
            a.i('s_waitcnt vmcnt(0)'); a.vm = []
            a.i(f'v_cmp_ne_u32 vcc, -1, v{ML}')
            a.i(f's_bcnt1_i32_b64 s{sT+4}, vcc')
            a.i(f's_cmp_ge_u32 s{sT+4}, {self.c.S1_FIRST}')
            a.i(f's_cbranch_scc1 {ok0}')
            a.i(f's_sleep {self.c.S1_SLOW}')
            self.spin_tail(lp0)
            a.label(ok0)
            a.flush_hazards()
            a.i('s_barrier')
        O = T + 8
        fast = inst in self.c.FAST_S1
        sPO = sT + 16
        a.i(f's_mul_i32 s{sPO}, s{sH}, {NP}')
        a.i(f's_mul_i32 s{sT+1}, s{sWave}, 7')
        a.i(f's_add_u32 s{sPO}, s{sPO}, s{sT+1}')
        a.i(f's_lshl_b32 s{sPO}, s{sPO}, 9')
        a.i(f's_add_u32 s{sPO}, s{sPO}, {W_PO + inst * 32 * NP * 512}')
        def load_o():
            for k in range(7):
                a.i(f'buffer_load_dwordx2 {vr(O + 2*k, 2)}, v{T+2}, {SRD_WS}, s{sPO} offen offset:{k*512} sc1')
        def weights():
            a.i(f'v_mov_b32 v{T+3}, 0xff800000')
            a.i(f'v_cndmask_b32 v{T+4}, v{T+3}, v{ML}, s[{sT+2}:{sT+3}]')
            a.i(f'v_mov_b32 v{T+5}, v{T+4}')
            wave_reduce_multi(a, 'v_max_f32', [T + 5])
            a.i(f'v_readlane_b32 s{sT+4}, v{T+5}, 63')
            a.i(f'v_subrev_f32 v{T+4}, s{sT+4}, v{T+4}')
            a.i(f'v_exp_f32 v{T+4}, v{T+4}')
            a.i(f'v_mul_f32 v{T+5}, v{T+4}, v{ML+1}')
            wave_reduce_multi(a, 'v_add_f32', [T + 5])
            a.i(f'v_readlane_b32 s{sT+4}, v{T+5}, 63')
            a.i(f'v_mov_b32 v{T+5}, s{sT+4}')
            a.i(f'v_rcp_f32 v{T+5}, v{T+5}')
            a.i(f'v_mul_f32 v{T+4}, v{T+4}, v{T+5}')
            a.i(f's_mul_i32 s{sT+5}, s{sWave}, 7')
            for k in range(7):
                a.i(f's_add_u32 s{sT+6}, s{sT+5}, {k}')
                a.i(f'v_readlane_b32 s{sT+8+k}, v{T+4}, s{sT+6}')
        a.flush_hazards()
        a.label(lp)
        a.i(f'v_mov_b32 v{ML}, 0'); a.i(f'v_mov_b32 v{ML+1}, 0')
        a.i(f's_mov_b64 exec, s[{sT+2}:{sT+3}]')
        a.i(f'buffer_load_dwordx2 {vr(ML, 2)}, v{T+2}, {SRD_WS}, s{sT} offen sc1')
        a.i('s_mov_b64 exec, -1')
        if fast:
            load_o()
            a.i('s_waitcnt vmcnt(7)')
            weights()
            a.i('s_waitcnt vmcnt(0)'); a.vm = []
            self.bad_scc([ML, ML + 1] + list(range(O, O + 14)), T + 6)
            a.i(f's_cbranch_scc0 {ok}')
            self.spin_tail(lp)
            a.label(ok)
            a.flush_hazards()
            if self.ts:
                for k in range(7): a.i(f's_mov_b32 s{80+k}, s{sT+8+k}')
                self.stamp()
        else:
            a.i('s_waitcnt vmcnt(0)'); a.vm = []
            self.bad_scc([ML, ML + 1], T + 3)
            a.i(f's_cbranch_scc0 {ok}')
            a.i(f's_sleep {self.c.SLEEP}')
            self.spin_tail(lp)
            a.label(ok)
            a.flush_hazards()
            lp2 = a.newlabel('s1g'); ok2 = a.newlabel('s1gok')
            a.label(lp2)
            load_o()
            weights()
            a.i('s_waitcnt vmcnt(0)'); a.vm = []
            self.bad_scc(range(O, O + 14), T + 6)
            a.i(f's_cbranch_scc0 {ok2}')
            self.spin_tail(lp2)
            a.label(ok2)
            a.flush_hazards()
        a.i(f'v_mul_f32 v{T+6}, s{sT+8}, v{O}')
        a.i(f'v_mul_f32 v{T+7}, s{sT+8}, v{O+1}')
        for k in range(1, 7):
            a.i(f'v_fmac_f32 v{T+6}, s{sT+8+k}, v{O+2*k}')
            a.i(f'v_fmac_f32 v{T+7}, s{sT+8+k}, v{O+2*k+1}')
        a.i(f's_lshl_b32 s{sT}, s{sWave}, 9')
        a.i(f's_add_u32 s{sT}, s{sT}, {L_OB + (inst & 1) * 2048}')
        a.i(f'v_add_u32 v{T+3}, s{sT}, v{T+2}')
        a.i(f'ds_write_b64 v{T+3}, {vr(T+6, 2)}')
        a.wait_lg_all()
        a.i('s_barrier')
        a.i(f'v_add_u32 v{T+3}, {L_OB + (inst & 1) * 2048}, v{T+2}')
        for k in range(4): a.i(f'ds_read_b64 {vr(T+8+2*k, 2)}, v{T+3} offset:{k*512}')
        a.wait_lg_all()
        a.i(f'v_add_f32 v{T+8}, v{T+8}, v{T+10}')
        a.i(f'v_add_f32 v{T+9}, v{T+9}, v{T+11}')
        a.i(f'v_add_f32 v{T+12}, v{T+12}, v{T+14}')
        a.i(f'v_add_f32 v{T+13}, v{T+13}, v{T+15}')
        a.i(f'v_add_f32 v{T+8}, v{T+8}, v{T+12}')
        a.i(f'v_add_f32 v{T+9}, v{T+9}, v{T+13}')
        a.i(f'v_cvt_pk_bf16_f32 v{T+8}, v{T+8}, v{T+9}')
        a.i(f's_lshl_b32 s{sT}, s{sWave}, 8')
        a.i(f's_add_u32 s{sT}, s{sT}, {L_OH}')
        a.i(f'v_add_u32 v{T+3}, s{sT}, v{vL4}')
        a.i(f'ds_write_b32 v{T+3}, v{T+8}')
        a.i(f'v_lshlrev_b32 v{T+3}, 4, v{vG}')
        a.i(f'v_add_u32 v{T+3}, s{sT}, v{T+3}')
        A = T + 8
        for j in range(4): a.i(f'ds_read_b128 {vr(A + 4*j)}, v{T+3} offset:{j*64}')
        a.wait_lg_all()
        accs = [T + 24, T + 28, T + 32, T + 36]
        Y0, Y1 = T + 40, T + 41
        for cc in range(8):
            ac = accs[cc % 4]
            for j in range(4):
                c = '0' if j == 0 else vr(ac)
                a.i(f'v_mfma_f32_16x16x32_bf16 {vr(ac)}, {vr(A + 4*j)}, {ar(aWO + (cc*4 + j)*4)}, {c}')
            if cc >= 2:
                p = cc - 2
                a.i(f'v_mov_b32_dpp v{Y0 if p < 4 else Y1}, v{accs[p % 4]} quad_perm:[0,1,2,3] row_mask:{hex(1 << (p % 4))} bank_mask:0xf')
        for p in (6, 7):
            a.i(f'v_mov_b32_dpp v{Y1}, v{accs[p % 4]} quad_perm:[0,1,2,3] row_mask:{hex(1 << (p % 4))} bank_mask:0xf')
        a.i(f'v_lshlrev_b32 v{T+3}, 11, v{vG}')
        a.i(f'v_lshl_add_u32 v{T+3}, v{vN}, 2, v{T+3}')
        a.i(f's_lshl_b32 s{sT}, s{sWave}, 14')
        a.i(f's_lshl_b32 s{sT+1}, s{sH}, 6')
        a.i(f's_add_u32 s{sT}, s{sT}, s{sT+1}')
        a.i(f's_add_u32 s{sT}, s{sT}, {W_Y + inst * 65536}')
        a.i(f'buffer_store_dword v{Y0}, v{T+3}, {SRD_WS}, s{sT} offen sc1')
        a.i(f's_add_u32 s{sT}, s{sT}, 8192')
        a.i(f'buffer_store_dword v{Y1}, v{T+3}, {SRD_WS}, s{sT} offen sc1')

    def reduce16(self, inst, src_base, nprod, xsrc, dst):
        a = self.a
        lp = a.newlabel('r16'); ok = a.newlabel('r16ok')
        a.i(f's_lshl_b32 s{sT}, s{sH}, 11')
        a.i(f's_add_u32 s{sT}, s{sT}, {src_base + inst * 65536}')
        srd, xo, sc = xsrc
        a.i(f's_lshl_b32 s{sT+1}, s{sH}, 5')
        a.i(f's_add_u32 s{sT+1}, s{sT+1}, {xo}')
        a.i(f'v_and_b32 v{T+12}, 3, v{vLane}')
        a.i(f'v_lshlrev_b32 v{T+12}, 3, v{T+12}')
        if nprod < 32:
            a.i(f'v_cmp_gt_u32 vcc, {(nprod - 16) * 4}, v{vLane}')
            a.i(f's_mov_b64 s[{sT+2}:{sT+3}], vcc')
        a.flush_hazards()
        a.label(lp)
        a.i(f'buffer_load_dwordx4 {vr(T)}, v{vL16}, {SRD_WS}, s{sT} offen sc1')
        if nprod < 32:
            for i in range(4): a.i(f'v_mov_b32 v{T+4+i}, 0')
            a.i(f's_mov_b64 exec, s[{sT+2}:{sT+3}]')
        a.i(f'buffer_load_dwordx4 {vr(T+4)}, v{vL16}, {SRD_WS}, s{sT} offen offset:1024 sc1')
        a.i('s_mov_b64 exec, -1')
        a.i(f'buffer_load_dwordx2 {vr(T+8, 2)}, v{T+12}, {srd}, s{sT+1} offen{sc}')
        a.i('s_waitcnt vmcnt(0)'); a.vm = []
        self.bad_scc(range(T, T + 10) if sc else range(T, T + 8), T + 13)
        a.i(f's_cbranch_scc0 {ok}')
        if self.slp: a.i(f's_sleep {self.slp}')
        self.spin_tail(lp)
        a.label(ok)
        a.flush_hazards()
        for i in range(4): a.i(f'v_add_f32 v{T+i}, v{T+i}, v{T+4+i}')
        for cdp in ('row_ror:4', 'row_ror:8'):
            for i in range(4): a.i(f'v_add_f32_dpp v{T+i}, v{T+i}, v{T+i} {cdp} row_mask:0xf bank_mask:0xf')
        for i in range(4): a.i(f'v_mov_b32 v{T+4+i}, v{T+i}')
        for i in range(4): a.i(f'v_permlane32_swap_b32 v{T+i}, v{T+4+i}')
        for i in range(4): a.i(f'v_add_f32 v{T+i}, v{T+i}, v{T+4+i}')
        for i in range(4): a.i(f'v_mov_b32 v{T+4+i}, v{T+i}')
        for i in range(4): a.i(f'v_permlane16_swap_b32 v{T+i}, v{T+4+i}')
        for i in range(4): a.i(f'v_add_f32 v{T+i}, v{T+i}, v{T+4+i}')
        a.i(f'v_lshlrev_b32 v{T+4}, 16, v{T+8}')
        a.i(f'v_and_b32 v{T+5}, 0xffff0000, v{T+8}')
        a.i(f'v_lshlrev_b32 v{T+6}, 16, v{T+9}')
        a.i(f'v_and_b32 v{T+7}, 0xffff0000, v{T+9}')
        for i in range(4): rbf(a, T + i, T + i)
        for i in range(4): a.i(f'v_add_f32 v{T+i}, v{T+i}, v{T+4+i}')
        a.i(f'v_cvt_pk_bf16_f32 v{T+8}, v{T}, v{T+1}')
        a.i(f'v_cvt_pk_bf16_f32 v{T+9}, v{T+2}, v{T+3}')
        dsrd, do, dsc = dst
        a.i(f's_lshl_b32 s{sT}, s{sH}, 5')
        a.i(f's_add_u32 s{sT}, s{sT}, {do}')
        a.i('s_mov_b64 exec, 0xf')
        a.i(f'buffer_store_dwordx2 {vr(T+8, 2)}, v{T+12}, {dsrd}, s{sT} offen{dsc}')
        a.i('s_mov_b64 exec, -1')

    def xs_src(self, inst):
        return (SRD_X, inst * 1024, '') if inst < 2 else (SRD_WS, W_XS + (inst - 2) * 1024, ' sc1')

    def taskS2(self, inst):
        self.reduce16(inst, W_Y, 32, self.xs_src(inst), (SRD_WS, W_X1 + inst * 1024, ' sc1'))
    def taskS4a(self, inst):
        dst = (SRD_WS, W_XS + inst * 1024, ' sc1') if inst < 2 else (SRD_OUT, (inst & 1) * 1024, '')
        self.reduce16(inst, W_Z, 22, (SRD_WS, W_X1 + inst * 1024, ' sc1'), dst)

    def fat_x1(self, inst):
        a = self.a
        CB = 2112
        L_FAT = L_TMP
        L_XS = L_XB
        lp = a.newlabel('fat'); ok = a.newlabel('fatok')
        srd, xo, sc = self.xs_src(inst)
        a.i(f's_lshl_b32 s{sT}, s{sWave}, 8')
        a.i(f's_add_u32 s{sT}, s{sT}, {xo}')
        a.i(f'buffer_load_dword v{T+40}, v{vL4}, {srd}, s{sT} offen{sc}')
        a.i(f's_lshl_b32 s{sT+1}, s{sWave}, 14')
        a.i(f's_add_u32 s{sT+1}, s{sT+1}, {W_Y + inst * 65536}')
        a.i(f's_mul_i32 s{sT+2}, s{sWave}, {8 * CB}')
        a.i(f's_add_u32 s{sT+2}, s{sT+2}, {L_FAT}')
        a.i(f'v_lshrrev_b32 v{T+41}, 3, v{vLane}')
        a.i(f'v_mul_u32_u24 v{T+41}, {CB}, v{T+41}')
        a.i(f'v_and_b32 v{T+42}, 7, v{vLane}')
        a.i(f'v_lshl_add_u32 v{T+41}, v{T+42}, 3, v{T+41}')
        a.i(f'v_add_u32 v{T+41}, s{sT+2}, v{T+41}')
        a.flush_hazards()
        a.label(lp)
        for k in range(16):
            a.i(f's_add_u32 m0, s{sT+2}, {(k >> 1) * CB + (k & 1) * 1024 - (k % 4) * 1024}')
            if k % 4 == 0 and k > 0: a.i(f's_add_u32 s{sT+3}, s{sT+1}, {k * 1024}')
            so = f's{sT+1}' if k < 4 else f's{sT+3}'
            a.i(f'buffer_load_dwordx4 v{vL16}, {SRD_WS}, {so} offen offset:{(k % 4) * 1024} sc1 lds')
        a.i('s_waitcnt vmcnt(0)'); a.vm = []
        A0, A1, BAD = T + 32, T + 33, T + 34
        first = True
        for b in range(4):
            ids = [a.i(f'ds_read_b64 {vr(T + 2*k, 2)}, v{T+41} offset:{(8*b + k) * 64}') for k in range(8)]
            for k in range(8):
                a.wait_lg(ids[k])
                if first:
                    a.i(f'v_mov_b32 v{A0}, v{T}'); a.i(f'v_mov_b32 v{A1}, v{T+1}'); a.i(f'v_max_u32 v{BAD}, v{T}, v{T+1}'); first = False
                else:
                    a.i(f'v_add_f32 v{A0}, v{A0}, v{T+2*k}')
                    a.i(f'v_add_f32 v{A1}, v{A1}, v{T+2*k+1}')
                    a.i(f'v_max3_u32 v{BAD}, v{BAD}, v{T+2*k}, v{T+2*k+1}')
        a.i(f'v_cmp_eq_u32 vcc, -1, v{BAD}')
        a.i(f's_cmp_lg_u64 vcc, 0')
        a.i(f's_cbranch_scc0 {ok}')
        self.spin_tail(lp)
        a.label(ok)
        a.flush_hazards()
        rbf(a, A0, A0); rbf(a, A1, A1)
        a.i(f'v_lshlrev_b32 v{T}, 16, v{T+40}')
        a.i(f'v_and_b32 v{T+1}, 0xffff0000, v{T+40}')
        a.i(f'v_add_f32 v{A0}, v{A0}, v{T}')
        a.i(f'v_add_f32 v{A1}, v{A1}, v{T+1}')
        a.i(f'v_cvt_pk_bf16_f32 v{A0}, v{A0}, v{A1}')
        a.i(f's_lshl_b32 s{sT}, s{sWave}, 8')
        a.i(f's_add_u32 s{sT}, s{sT}, {L_XS}')
        a.i(f'v_add_u32 v{T+2}, s{sT}, v{vL4}')
        a.i(f'ds_write_b32 v{T+2}, v{A0}')
        a.i(f's_lshl_b32 s{sT}, s{sWave}, 6')
        a.i(f'v_add_u32 v{T+3}, s{sT}, v{vLane}')
        a.i(f'v_lshrrev_b32 v{T+4}, 3, v{T+3}')
        a.i(f'v_cmp_eq_u32 vcc, s{sH}, v{T+4}')
        a.i(f'v_lshlrev_b32 v{T+3}, 2, v{T+3}')
        a.i(f's_mov_b32 s{sT+4}, {W_X1 + inst * 1024}')
        a.i(f's_mov_b64 exec, vcc')
        a.i(f'buffer_store_dword v{A0}, v{T+3}, {SRD_WS}, s{sT+4} offen sc1')
        a.i('s_mov_b64 exec, -1')
        a.wait_lg_all()
        a.i('s_barrier')
        a.i(f'v_add_u32 v{T+4}, {L_XS}, v{vL16}')
        lid = a.i(f'ds_read_b128 {vr(T)}, v{T+4}')
        a.i(f'v_lshlrev_b32 v{T+43}, 4, v{vG}')
        if L_XS: a.i(f'v_add_u32 v{T+43}, {L_XS}, v{T+43}')
        a.wait_lg(lid)
        return T + 43

    def taskS3(self, inst):
        a = self.a
        aaddr = None
        if inst in self.c.FAT:
            aaddr = self.fat_x1(inst)
        else:
            a.i(f's_mov_b32 s{sT}, {W_X1 + inst * 1024}')
            self.x_acquire(SRD_WS, f's{sT}', ' sc1')
            if self.ts: self.stamp()
        g, u = self.gemv2_stats([vr(vWG + 4*j) for j in range(16)], [vr(vWU + 4*j) for j in range(16)], vCSG, vCSU, aaddr)
        rbf(a, g, g); rbf(a, u, u)
        a.i(f'v_mul_f32 v{T}, v{g}, v{u}')
        a.i(f'v_mov_b32_dpp v{T+1}, v{T} quad_perm:[1,1,3,3] row_mask:0xf bank_mask:0xf')
        a.i(f'v_cvt_pk_bf16_f32 v{T}, v{T}, v{T+1}')
        A0, A1 = T + 16, T + 20
        for half, A in ((0, A0), (1, A1)):
            for r in range(4):
                a.i(f'v_and_b32_dpp v{A+r}, v{T}, v{vFM} row_newbcast:{8*half + 2*r} row_mask:0xf bank_mask:0xf')
        a.i(f's_lshl_b32 s{sT}, s{sWave}, 11')
        a.i(f's_add_u32 s{sT}, s{sT}, {L_ZB}')
        a.i(f'v_lshlrev_b32 v{T+2}, 4, v{vN}')
        a.i(f'v_add_u32 v{T+2}, s{sT}, v{T+2}')
        accs = [T + 24, T + 28, T + 32, T + 36]
        pend = []
        for cc in range(8):
            ac = accs[cc % 4]
            a.i(f'v_mfma_f32_16x16x32_bf16 {vr(ac)}, {vr(A0)}, {vr(vWD + (cc*2)*4)}, 0')
            a.i(f'v_mfma_f32_16x16x32_bf16 {vr(ac)}, {vr(A1)}, {vr(vWD + (cc*2+1)*4)}, {vr(ac)}')
            if cc >= 2:
                p = cc - 2
                a.i('s_mov_b64 exec, 0xffff')
                a.i(f'ds_write_b128 v{T+2}, {vr(accs[p % 4])} offset:{p*256}')
                a.i('s_mov_b64 exec, -1')
        for p in (6, 7):
            a.i('s_mov_b64 exec, 0xffff')
            a.i(f'ds_write_b128 v{T+2}, {vr(accs[p % 4])} offset:{p*256}')
            a.i('s_mov_b64 exec, -1')
        a.wait_lg_all()
        a.i('s_barrier')
        a.i(f's_lshl_b32 s{sT}, s{sWave}, 9')
        a.i(f's_add_u32 s{sT}, s{sT}, {L_ZB}')
        a.i(f'v_lshlrev_b32 v{T+2}, 3, v{vLane}')
        a.i(f'v_add_u32 v{T+3}, s{sT}, v{T+2}')
        for k in range(4): a.i(f'ds_read_b64 {vr(T+8+2*k, 2)}, v{T+3} offset:{k*2048}')
        a.wait_lg_all()
        a.i(f'v_add_f32 v{T+8}, v{T+8}, v{T+10}')
        a.i(f'v_add_f32 v{T+9}, v{T+9}, v{T+11}')
        a.i(f'v_add_f32 v{T+12}, v{T+12}, v{T+14}')
        a.i(f'v_add_f32 v{T+13}, v{T+13}, v{T+15}')
        a.i(f'v_add_f32 v{T+8}, v{T+8}, v{T+12}')
        a.i(f'v_add_f32 v{T+9}, v{T+9}, v{T+13}')
        a.i(f'v_lshrrev_b32 v{T+2}, 3, v{vLane}')
        a.i(f'v_lshlrev_b32 v{T+2}, 11, v{T+2}')
        a.i(f'v_and_b32 v{T+3}, 7, v{vLane}')
        a.i(f'v_lshl_add_u32 v{T+2}, v{T+3}, 3, v{T+2}')
        a.i(f's_lshl_b32 s{sT}, s{sWave}, 14')
        a.i(f's_lshl_b32 s{sT+1}, s{sH}, 6')
        a.i(f's_add_u32 s{sT}, s{sT}, s{sT+1}')
        a.i(f's_add_u32 s{sT}, s{sT}, {W_Z + inst * 65536}')
        a.i(f'buffer_store_dwordx2 {vr(T+8, 2)}, v{T+2}, {SRD_WS}, s{sT} offen sc1')
        a.i('s_barrier')

    def run(self):
        a = self.a; c = self.c
        self.init()
        for inst in range(4):
            ts = c.timing and c.tail_stamps and inst == 3
            self.slp = 0 if inst == 3 else c.SLEEP
            self.ts = ts
            self.taskS1(inst)
            if (c.timing and not c.tail_stamps) or ts: self.stamp()
            sk = a.newlabel('w0');
            a.i(f's_cmp_eq_u32 s{sWave}, 0'); a.flush_hazards(); a.i(f's_cbranch_scc0 {sk}')
            if inst in c.FAT:
                a.i(f's_cmp_ge_u32 s{sH}, 22'); a.i(f's_cbranch_scc0 {sk}')
            self.taskS2(inst)
            if ts: self.stamp()
            a.flush_hazards(); a.label(sk)
            sk3 = a.newlabel('f3')
            a.i(f's_cmp_lt_u32 s{sH}, 22'); a.flush_hazards(); a.i(f's_cbranch_scc0 {sk3}')
            self.taskS3(inst)
            if ts: self.stamp()
            a.flush_hazards(); a.label(sk3)
            sk = a.newlabel('w1')
            a.i(f's_cmp_eq_u32 s{sWave}, 1'); a.flush_hazards(); a.i(f's_cbranch_scc0 {sk}')
            self.taskS4a(inst)
            if ts: self.stamp()
            a.flush_hazards(); a.label(sk)
            if inst < 2:
                self.taskQ(inst + 2)
            if c.timing and not c.tail_stamps and inst in (0, 3): self.stamp()
```

```python
from asmlib import Asm
from common import *

vKoff, vVoff, vV8, vL16, vLdsRet = 0, 1, 2, 3, 4
vBP = 5
vMask = [6, 7, 8, 9]
vL = {'X': 10, 'Y': 11}
vQ = 12
vP = {'X': 20, 'Y': 26}
vO = {'X': 32, 'Y': 36}
T = 40
vACC = [40, 44]
vAT = [48, 52]
vLT = [56, 56]
vRING = 60
NEGINF = 0xff800000

L_QG = 0
L_RET = 2048

def lane(a, r):
    a.i(f'v_lshrrev_b32 v{r}, 4, v{vL16}')

class Load:
    def __init__(self, emit, after=None, name='', w=1.0):
        self.emit = emit; self.after = after; self.name = name; self.vid = None; self.idx = None; self.w = w
class Comp:
    def __init__(self, emit, needs=(), name=''):
        self.emit = emit; self.needs = list(needs); self.name = name; self.done = False

HALF_B = [('F', 0), ('F', 1), ('F', 2), ('F', 3), ('H', 0)]
HALF_A = [('F', 4), ('F', 5), ('F', 6), ('F', 7), ('H', 1), ('P',)]

def k_units(tile):
    n = {'F': 8, 'H': 4, 'P': 2}[tile[0]]
    return [(g, jj) for g in range(n) for jj in range(2)]
def v_units(tile):
    return list(range({'F': 16, 'H': 8, 'P': 4}[tile[0]]))

class Stream:
    def __init__(self, cfg, a):
        self.c = cfg
        self.a = a
        self.loads = []; self.comps = []
        self.pend = []
        self.accsel = 0; self.atsel = 0; self.ltsel = 0
        self.ring = 0
        self.ring_reader = [None] * cfg.NRING
        self.vRET = vRING + 4 * cfg.NRING
        self.NVREG = (256 - self.vRET) // 4
        self.KX = 72 - 64
        self.NV_REG = self.NVREG - self.KX
        self.NV_LDS = 72 - self.NV_REG
        assert L_RET + 4 * self.NV_LDS * 1024 <= 163840, (self.NV_LDS,)
        self.k_reader = [None] * 72
        self.v_reader = [None] * 72
        self.curK = None; self.curV = None
        self.marks = {}
        self.nstamp = 0
        self.pro_loads = []
        self.uid = 0
        self.curpol = cfg.pol

    def set_off(self, which, b, tile, const):
        a = self.a
        base = sBp[b] if tile[0] == 'P' else sB[b]
        key = (base, const)
        reg = sOffK if which == 'K' else sOffV
        cur = self.curK if which == 'K' else self.curV
        if cur != key:
            if const == 0: a.i(f's_mov_b32 s{reg}, s{base}')
            else: a.i(f's_add_u32 s{reg}, s{base}, {const}')
            if which == 'K': self.curK = key
            else: self.curV = key
        return f's{reg}'

    def add_load(self, L): self.loads.append(L); return L
    def add_comp(self, C): self.comps.append(C); return C
    def ring_slot(self):
        s = self.ring % self.c.NRING; self.ring += 1
        return s

    def k_addr(self, tile, g, jj):
        if tile[0] == 'F': return tile[1] * 65536 + (g >> 1) * 4096, (g & 1) * 2048 + jj * 128
        if tile[0] == 'H': return 8 * 65536 + tile[1] * 8192 + (g >> 1) * 4096, (g & 1) * 2048 + jj * 128
        return 0, g * 2048 + jj * 128
    def v_addr(self, tile, t):
        if tile[0] == 'F': return tile[1] * 65536, t * 256, vVoff
        if tile[0] == 'H': return 8 * 65536 + tile[1] * 8192, t * 256, vV8
        return 0, t * 1024, vL16
    def k_place(self, tile, g):
        if tile[0] == 'F': return g >> 1, g & 1
        if tile[0] == 'H': return g, 0
        return 0, g

    def mk_kload(self, b, tile, g, jj, dst, after):
        pol = self.curpol
        def emit():
            const, imm = self.k_addr(tile, g, jj)
            so = self.set_off('K', b, tile, const)
            if tile[0] == 'P' and self.c.skip_inv: self.a.i(f's_mov_b64 exec, s[{sPX[g]}:{sPX[g]+1}]')
            r = self.a.i(f'buffer_load_dwordx4 {dst}, v{vKoff}, {SRD_K}, {so} offen offset:{imm}{pol}')
            if tile[0] == 'P' and self.c.skip_inv: self.a.i('s_mov_b64 exec, -1')
            return r
        return self.add_load(Load(emit, after, f'K b{b} {tile} g{g} j{jj}'))
    def mk_vload(self, b, tile, t, dst, after):
        pol = self.curpol
        def emit():
            const, imm, vo = self.v_addr(tile, t)
            so = self.set_off('V', b, tile, const)
            if tile[0] == 'P' and self.c.skip_inv: self.a.i(f's_mov_b64 exec, s[{sPX[t >> 1]}:{sPX[t >> 1]+1}]')
            r = self.a.i(f'buffer_load_dwordx4 {dst}, v{vo}, {SRD_V}, {so} offen offset:{imm}{pol}')
            if tile[0] == 'P' and self.c.skip_inv: self.a.i('s_mov_b64 exec, -1')
            return r
        return self.add_load(Load(emit, after, f'V b{b} {tile} u{t}'))
    def mk_vload_lds(self, b, tile, t, slot, after):
        def emit():
            const, imm, vo = self.v_addr(tile, t)
            so = self.set_off('V', b, tile, const)
            self.a.i(f's_add_u32 m0, s{sLdsRet}, {slot * 1024 - imm + 4096}')
            return self.a.i(f'buffer_load_dwordx4 v{vo}, {SRD_V}, {so} offen offset:{imm}{self.c.pol} lds')
        return self.add_load(Load(emit, after, f'VL b{b} {tile} u{t}'))

    def flush_adds(self, acc=None):
        a = self.a
        keep = []
        for (ac, S, row, hh) in self.pend:
            if acc is None or ac == acc:
                if hh == 0:
                    a.i(f'v_add_f32_dpp v{S}, v{ac+1}, v{ac} row_ror:8 row_mask:{hex(1 << row)} bank_mask:0x3')
                else:
                    a.i(f'v_add_f32_dpp v{S}, v{ac}, v{ac+1} row_ror:8 row_mask:{hex(1 << row)} bank_mask:0xc')
            else:
                keep.append((ac, S, row, hh))
        self.pend = keep

    def mk_qk(self, B0, B1, S, tile, g, needs):
        def emit():
            a = self.a
            if g == 0 and tile[0] in 'HP':
                a.i(f'v_mov_b32 v{S}, {hex(NEGINF)}')
            ac = vACC[self.accsel]; self.accsel ^= 1
            self.flush_adds(ac)
            a.i(f'v_mfma_f32_16x16x32_bf16 {vr(ac)}, {vr(vQ)}, {B0}, 0')
            a.i(f'v_mfma_f32_16x16x32_bf16 {vr(ac)}, {vr(vQ+4)}, {B1}, {vr(ac)}')
            row, hh = self.k_place(tile, g)
            self.pend.append((ac, S, row, hh))
        return self.add_comp(Comp(emit, needs, f'QK {tile} g{g}'))

    def pv_core(self, B, P, t, O, mid=None):
        a = self.a
        at = vAT[self.atsel]; self.atsel ^= 1
        for r in range(4):
            a.i(f'v_and_b32_dpp v{at+r}, v{P}, v{vMask[r]} row_newbcast:{t} row_mask:0xf bank_mask:0xf')
        if mid: mid()
        a.i(f'v_mfma_f32_16x16x32_bf16 {vr(O)}, {vr(at)}, {B}, {vr(O)}')
    def mk_pv(self, B, P, t, O, needs):
        return self.add_comp(Comp(lambda: self.pv_core(B, P, t, O), needs, f'PV t{t}'))
    def mk_pv_lds(self, slot, P, t, O, needs):
        def emit():
            a = self.a
            lt = vLT[self.ltsel]; self.ltsel ^= 1
            lid = a.i(f'ds_read_b128 {vr(lt)}, v{vLdsRet} offset:{slot * 1024}')
            self.pv_core(vr(lt), P, t, O, mid=lambda: a.wait_lg(lid))
        return self.add_comp(Comp(emit, needs, f'PVL t{t}'))

    def mk_softmax(self, Pset, Iset, first, tiles):
        n = len(tiles)
        def emit():
            a = self.a
            self.flush_adds()
            S = vP[Pset]; O = vO[Iset]; Lr = vL[Iset]; m = sM[Iset]
            t0, t1, t2, t3 = T, T+1, T+2, T+3
            if tiles[-1][0] == 'P':
                k = n - 1
                lid = a.i(f'ds_bpermute_b32 v{S+k}, v{vBP}, v{S+k}')
                a.wait_lg(lid)
            for i in range(n): a.i(f'v_mul_f32 v{S+i}, {hex(f2u(SCALE))}, v{S+i}')
            a.i(f'v_max3_f32 v{t0}, v{S}, v{S+1}, v{S+2}')
            a.i(f'v_max3_f32 v{t0}, v{t0}, v{S+3}, v{S+4}')
            if n == 6: a.i(f'v_max_f32 v{t0}, v{t0}, v{S+5}')
            if not first: a.i(f'v_max_f32 v{t0}, s{m}, v{t0}')
            wave_reduce_multi(a, 'v_max_f32', [t0])
            a.i(f'v_readlane_b32 s{sT}, v{t0}, 63')
            if not first:
                a.i(f'v_mov_b32 v{t1}, s{sT}')
                a.i(f'v_sub_f32 v{t1}, s{m}, v{t1}')
                a.i(f'v_exp_f32 v{t1}, v{t1}')
                for i in range(4): a.i(f'v_mul_f32 v{O+i}, v{O+i}, v{t1}')
                a.i(f'v_mul_f32 v{Lr}, v{Lr}, v{t1}')
            else:
                for i in range(4): a.i(f'v_mov_b32 v{O+i}, 0')
            a.i(f's_mov_b32 s{m}, s{sT}')
            for i in range(n): a.i(f'v_subrev_f32 v{S+i}, s{m}, v{S+i}')
            for i in range(n): a.i(f'v_exp_f32 v{S+i}, v{S+i}')
            a.i(f'v_add_f32 v{t2}, v{S}, v{S+1}')
            a.i(f'v_add_f32 v{t3}, v{S+2}, v{S+3}')
            a.i(f'v_add_f32 v{t2}, v{t2}, v{S+4}')
            if n == 6: a.i(f'v_add_f32 v{t3}, v{t3}, v{S+5}')
            if first:
                a.i(f'v_add_f32 v{Lr}, v{t2}, v{t3}')
            else:
                a.i(f'v_add_f32 v{t2}, v{t2}, v{t3}')
                a.i(f'v_add_f32 v{Lr}, v{Lr}, v{t2}')
            for i in range(n): a.i(f'v_cvt_pk_bf16_f32 v{S+i}, v{S+i}, v{S+i}')
        return self.add_comp(Comp(emit, (), f'softmax {Pset} {Iset} {first}'))

    def cond_begin(self):
        self.a.flush_hazards()
        self._snap = (list(self.a.vm), list(self.a.lg))
    def cond_end(self):
        self.a.flush_hazards()
        self.a.vm, self.a.lg = self._snap

    def mk_publish(self, inst):
        Iset = 'X' if (inst & 1) == 0 else 'Y'
        def emit():
            a = self.a
            O = vO[Iset]; Lr = vL[Iset]; m = sM[Iset]
            t = T
            wave_reduce_multi(a, 'v_add_f32', [Lr])
            lane(a, t+5)
            a.i(f'v_and_b32 v{t}, 15, v{t+5}')
            a.i(f'v_lshlrev_b32 v{t}, 5, v{t}')
            a.i(f'v_lshrrev_b32 v{t+1}, 4, v{t+5}')
            a.i(f'v_lshl_add_u32 v{t}, v{t+1}, 4, v{t}')
            a.i(f's_mul_i32 s{sT}, s{sH}, {NP}')
            a.i(f's_add_u32 s{sT}, s{sT}, s{sPidx}')
            a.i(f's_lshl_b32 s{sT}, s{sT}, 9')
            a.i(f's_add_u32 s{sT}, s{sT}, {W_PO + inst * 32 * NP * 512}')
            a.i(f's_mov_b32 exec_hi, 0')
            a.i(f'buffer_store_dwordx4 {vr(O)}, v{t}, {SRD_WS}, s{sT} offen sc1')
            a.i(f's_lshl_b32 s{sT}, s{sH}, 8')
            a.i(f's_lshl_b32 s{sT+1}, s{sPidx}, 3')
            a.i(f's_add_u32 s{sT}, s{sT}, s{sT+1}')
            a.i(f's_add_u32 s{sT}, s{sT}, {W_PML + inst * 8192}')
            a.i(f's_mov_b64 exec, -1')
            a.i(f'v_mov_b32 v{t+2}, s{m}')
            a.i(f'v_mov_b32 v{t+3}, v{Lr}')
            a.i(f'v_mov_b32 v{t+4}, 0')
            a.i(f's_mov_b32 exec_lo, 0')
            a.i(f's_mov_b32 exec_hi, 0x80000000')
            a.i(f'buffer_store_dwordx2 v[{t+2}:{t+3}], v{t+4}, {SRD_WS}, s{sT} offen sc1')
            a.i(f's_mov_b64 exec, -1')
        return self.add_comp(Comp(emit, (), f'publish {inst}'))

    def mk_qgather(self, inst):
        def emit():
            a = self.a
            a.i(f's_lshl_b32 s{sT}, s{sH}, 8')
            a.i(f's_add_u32 s{sT}, s{sT}, {W_Q + inst * 8192}')
            a.i(f's_add_u32 m0, s{sQG}, {(inst & 1) * 256}')
            a.i(f'v_lshrrev_b32 v{T+19}, 2, v{vL16}')
            return a.i(f'buffer_load_dword v{T+19}, {SRD_WS}, s{sT} offen sc1 lds')
        return self.add_load(Load(emit, None, f'QG {inst}'))
    def q_read(self, inst):
        a = self.a; t = T
        lane(a, t+1)
        a.i(f'v_and_b32 v{t}, 1, v{t+1}')
        a.i(f'v_lshlrev_b32 v{t}, 6, v{t}')
        a.i(f'v_lshrrev_b32 v{t+1}, 4, v{t+1}')
        a.i(f'v_lshl_add_u32 v{t}, v{t+1}, 4, v{t}')
        a.i(f'v_add_u32 v{t}, s{sQG}, v{t}')
        a.i(f'ds_read_b128 {vr(vQ)}, v{t} offset:{(inst & 1) * 256}')
        lid = a.i(f'ds_read_b128 {vr(vQ+4)}, v{t} offset:{(inst & 1) * 256 + 128}')
        a.wait_lg(lid)
    def q_bad(self):
        a = self.a; t = T + 2
        a.i(f'v_max3_u32 v{t}, v{vQ}, v{vQ+1}, v{vQ+2}')
        a.i(f'v_max3_u32 v{t}, v{t}, v{vQ+3}, v{vQ+4}')
        a.i(f'v_max3_u32 v{t}, v{t}, v{vQ+5}, v{vQ+6}')
        a.i(f'v_max_u32 v{t}, v{t}, v{vQ+7}')
        a.i(f'v_cmp_eq_u32 vcc, -1, v{t}')
        a.i(f's_cmp_lg_u64 vcc, 0')
    def mk_acquire(self, inst, gather):
        def emit():
            a = self.a
            self.flush_adds()
            self.q_read(inst)
            if gather is not None and not self.c.test_attn:
                ok = a.newlabel('qok'); lp = a.newlabel('qretry')
                self.q_bad()
                self.cond_begin()
                a.i(f's_cbranch_scc0 {ok}')
                a.label(lp)
                a.i('s_sleep 2')
                a.i(f's_lshl_b32 s{sT}, s{sH}, 8')
                a.i(f's_add_u32 s{sT}, s{sT}, {W_Q + inst * 8192}')
                a.i(f's_add_u32 m0, s{sQG}, {(inst & 1) * 256}')
                a.i(f'v_lshrrev_b32 v{T+19}, 2, v{vL16}')
                a.i(f'buffer_load_dword v{T+19}, {SRD_WS}, s{sT} offen sc1 lds')
                a.i('s_waitcnt vmcnt(0)')
                self.q_read(inst)
                self.q_bad()
                a.i(f's_cbranch_scc0 {ok}')
                a.i(f's_sub_u32 s{sSpin}, s{sSpin}, 1')
                a.i(f's_cmp_gt_i32 s{sSpin}, 0')
                a.i(f's_cbranch_scc1 {lp}')
                self.cond_end()
                a.label(ok)
        return self.add_comp(Comp(emit, [gather] if gather else [], f'acquire {inst}'))

    def mk_b1(self):
        def emit():
            a = self.a
            a.i('s_barrier')
            skip = a.newlabel('b1')
            a.i(f's_cmp_eq_u32 s{sWave}, 0')
            self.cond_begin()
            a.i(f's_cbranch_scc0 {skip}')
            a.i(f'v_mov_b32 v{T}, 0')
            a.i(f'v_mov_b32 v{T+1}, 1')
            a.i('s_mov_b64 exec, 1')
            a.i(f'global_atomic_add v{T}, v{T+1}, s[{P_DBG}:{P_DBG+1}]')
            a.i('s_mov_b64 exec, -1')
            self.cond_end()
            a.label(skip)
        return self.add_comp(Comp(emit, self.pro_loads, 'B1'))
    def mk_clrload(self):
        def emit():
            a = self.a
            a.i(f'v_mov_b32 v{T+18}, 0')
            return a.i(f'global_load_dword v{T+19}, v{T+18}, s[{P_DBG}:{P_DBG+1}] sc1')
        return self.add_load(Load(emit, None, 'CLR'))
    def mk_clrcheck(self, cl):
        def emit():
            a = self.a
            ok = a.newlabel('clok'); lp = a.newlabel('clp')
            a.i(f'v_readfirstlane_b32 s{sT}, v{T+19}')
            a.i(f's_cmp_ge_u32 s{sT}, 224')
            self.cond_begin()
            a.i(f's_cbranch_scc1 {ok}')
            a.label(lp)
            a.i(f'global_load_dword v{T+19}, v{T+18}, s[{P_DBG}:{P_DBG+1}] sc1')
            a.i('s_waitcnt vmcnt(0)')
            a.i(f'v_readfirstlane_b32 s{sT}, v{T+19}')
            a.i(f's_cmp_ge_u32 s{sT}, 224')
            a.i(f's_cbranch_scc1 {ok}')
            a.i(f's_sub_u32 s{sSpin}, s{sSpin}, 1')
            a.i(f's_cmp_gt_i32 s{sSpin}, 0')
            a.i(f's_cbranch_scc1 {lp}')
            self.cond_end()
            a.label(ok)
        return self.add_comp(Comp(emit, [cl], 'clrcheck'))

    def kslot(self, u):
        return ar(4 * u) if u < 64 else vr(self.vRET + 4 * (u - 64))
    def stream_k(self, inst, Pset, tiles):
        b = inst & 1
        cnt = 0
        for ti, tile in enumerate(tiles):
            ku = k_units(tile)
            for gi in range(0, len(ku), 2):
                g = ku[gi][0]
                ls = []; regs = []
                self.curpol = self.c.polA[inst] if cnt < self.c.mallK[inst & 1] else ' nt'
                cnt += 2
                for jj in range(2):
                    s = self.ring_slot()
                    ls.append(self.mk_kload(b, tile, g, jj, vr(vRING + 4*s), self.ring_reader[s])); regs.append(s)
                C = self.mk_qk(vr(vRING + 4*regs[0]), vr(vRING + 4*regs[1]), vP[Pset] + ti, tile, g, ls)
                for s in regs: self.ring_reader[s] = C
    def stream_v(self, inst, Pset, tiles):
        b = inst & 1
        cnt = 0
        Iset = 'X' if b == 0 else 'Y'
        for ti, tile in enumerate(tiles):
            for t in v_units(tile):
                self.curpol = self.c.polA[inst] if cnt < self.c.mallV[inst & 1] else ' nt'
                cnt += 1
                s = self.ring_slot()
                L = self.mk_vload(b, tile, t, vr(vRING + 4*s), self.ring_reader[s])
                self.ring_reader[s] = self.mk_pv(vr(vRING + 4*s), vP[Pset] + ti, t, vO[Iset], [L])
    def b_kunits(self):
        out = []
        for ti, tile in enumerate(HALF_B):
            for (g, jj) in k_units(tile): out.append((ti, tile, g, jj))
        assert len(out) == 72
        return out
    def b_vunits(self):
        out = []
        for ti, tile in enumerate(HALF_B):
            for t in v_units(tile): out.append((ti, tile, t))
        assert len(out) == 72
        return out
    def halfB_loadK(self, b):
        self.curpol = self.c.pol
        return [self.mk_kload(b, tile, g, jj, self.kslot(u), self.k_reader[u]) for u, (ti, tile, g, jj) in enumerate(self.b_kunits())]
    def halfB_loadV(self, b):
        self.curpol = self.c.pol
        Ls = []
        for u, (ti, tile, t) in enumerate(self.b_vunits()):
            if u < self.NV_REG:
                Ls.append(self.mk_vload(b, tile, t, vr(self.vRET + 4 * (self.KX + u)), self.v_reader[u]))
            else:
                Ls.append(self.mk_vload_lds(b, tile, t, u - self.NV_REG, self.v_reader[u]))
        return Ls
    def halfB_qk(self, Pset, Ls):
        ku = self.b_kunits()
        for u in range(0, 72, 2):
            ti, tile, g, _ = ku[u]
            needs = [Ls[u], Ls[u+1]] if Ls else []
            C = self.mk_qk(self.kslot(u), self.kslot(u + 1), vP[Pset] + ti, tile, g, needs)
            self.k_reader[u] = C; self.k_reader[u+1] = C
    def halfB_pv(self, inst, Pset, Ls):
        Iset = 'X' if (inst & 1) == 0 else 'Y'
        for u, (ti, tile, t) in enumerate(self.b_vunits()):
            needs = [Ls[u]] if Ls else []
            if u < self.NV_REG:
                C = self.mk_pv(vr(self.vRET + 4 * (self.KX + u)), vP[Pset] + ti, t, vO[Iset], needs)
            else:
                C = self.mk_pv_lds(u - self.NV_REG, vP[Pset] + ti, t, vO[Iset], needs)
            self.v_reader[u] = C

    def mark(self, name):
        self.marks[name] = len(self.loads)
        if self.c.timing and self.c.stamp_pos is None: self.add_comp(Comp(self.stamp_now, (), 'stamp'))
    def stamp_now(self):
        a = self.a
        k = self.nstamp; self.nstamp += 1
        a.smem(f's_memrealtime s[{sT}:{sT+1}]')
        a.raw('  s_waitcnt lgkmcnt(0)'); a.t += 1; a.lg = []
        a.i(f's_mov_b32 s{STAMP0 + k}, s{sT}')

    def place_before_end(self, L, n):
        self.loads.remove(L); self.loads.insert(len(self.loads) - n, L)

    def build(self):
        c = self.c
        KL = self.halfB_loadK(0)
        if not c.test_attn:
            cs = self.mk_clear()
            for k, L in enumerate(cs): self.loads.insert(c.CLRST_POS + k, L)
            self.pro_loads = [self.loads[c.CLRST_POS + 3 + c.B1_LAG]]
            self.mk_b1()
        if not c.test_attn:
            cl = self.mk_clrload()
            self.loads.remove(cl); self.loads.insert(c.CLR_POS, cl)
            self.mk_clrcheck(cl)
        VL = self.halfB_loadV(0)
        qg0 = self.mk_qgather(0)
        self.loads.remove(qg0); self.loads.insert(c.QG0_POS, qg0)
        self.mk_acquire(0, qg0)
        self.halfB_qk('X', KL)
        self.mk_softmax('X', 'X', True, HALF_B)
        n0 = len(self.comps)
        self.halfB_pv(0, 'X', VL)
        cB = self.comps[n0:]; del self.comps[n0:]
        self.stream_k(0, 'Y', HALF_A)
        cA = self.comps[n0:]; del self.comps[n0:]
        self.comps += self.interleave(cB, cA, 2)
        qg1 = self.mk_qgather(1)
        self.mk_softmax('Y', 'X', False, HALF_A)
        self.stream_v(0, 'Y', HALF_A)
        self.mk_publish(0)
        self.mark('A')
        self.mk_acquire(1, qg1)
        self.stream_k(1, 'Y', HALF_A)
        self.mk_softmax('Y', 'Y', True, HALF_A)
        self.stream_v(1, 'Y', HALF_A)
        qg2 = self.mk_qgather(2); self.place_before_end(qg2, c.QG_LEAD)
        self.mark('B')
        self.mk_acquire(2, qg2)
        self.halfB_qk('X', None)
        self.mk_softmax('X', 'X', True, HALF_B)
        self.halfB_pv(2, 'X', None)
        KL = self.halfB_loadK(1)
        VL = self.halfB_loadV(1)
        self.mk_acquire(1, None)
        self.halfB_qk('Y', KL)
        self.mk_softmax('Y', 'Y', False, HALF_B)
        self.halfB_pv(1, 'Y', VL)
        self.mk_publish(1)
        self.mark('C')
        self.mk_acquire(2, None)
        self.stream_k(2, 'X', HALF_A)
        self.mk_softmax('X', 'X', False, HALF_A)
        self.stream_v(2, 'X', HALF_A)
        qg3 = self.mk_qgather(3); self.place_before_end(qg3, c.QG_LEAD)
        self.mk_publish(2)
        self.mark('D')
        self.mk_acquire(3, qg3)
        n0 = len(self.comps)
        self.stream_k(3, 'X', HALF_A)
        compsA = self.comps[n0:]; del self.comps[n0:]
        self.halfB_qk('Y', None)
        self.mk_softmax('Y', 'Y', True, HALF_B)
        self.halfB_pv(3, 'Y', None)
        compsB = self.comps[n0:]; del self.comps[n0:]
        self.comps += self.interleave(compsB, compsA, 3)
        self.mk_softmax('X', 'Y', False, HALF_A)
        self.stream_v(3, 'X', HALF_A)
        self.mk_publish(3)
        self.mark('E')

    def interleave(self, main, other, every):
        ia = 0; merged = []
        for k, C in enumerate(main):
            merged.append(C)
            if k % every == every - 1 and ia < len(other):
                merged.append(other[ia]); ia += 1
        merged += other[ia:]
        return merged

    def emit_comp(self, C):
        for L in C.needs:
            assert L.vid is not None, ('load not issued before its consumer', C.name, L.name)
            self.a.wait_vm(L.vid)
        C.emit(); C.done = True

    def schedule(self):
        c = self.c; a = self.a
        ci = 0; comps = self.comps
        for li, L in enumerate(self.loads):
            L.idx = li
            if L.after is not None and not L.after.done:
                while not L.after.done:
                    self.emit_comp(comps[ci]); ci += 1
            Dd = c.D
            for (pos, dv) in c.Dsched:
                if li >= pos: Dd = dv
            if li >= max(Dd, c.BURST):
                a.wait_vm(self.loads[li - Dd].vid)
            L.vid = L.emit()
            if c.stamp_pos is not None and li in c.stamp_pos: self.stamp_now()
            n = 0
            while ci < len(comps) and n < c.budget:
                C = comps[ci]
                if all(x.vid is not None and a.vm_done(x.vid) for x in C.needs):
                    self.emit_comp(C); ci += 1; n += 1
                else:
                    break
        while ci < len(comps):
            self.emit_comp(comps[ci]); ci += 1

    def prologue(self):
        a = self.a; c = self.c
        l = T + 8
        a.i(f'v_mov_b32 v{l}, v0')
        a.i(f's_mul_i32 s{sT}, s{sS}, 292')
        a.i(f's_min_u32 s{sT+1}, s{sS}, 4')
        a.i(f's_add_u32 s{sT}, s{sT}, s{sT+1}')
        a.i(f's_lshl_b32 s{sT}, s{sT}, 11')
        a.i(f's_lshl_b32 s{sT+1}, s{sH}, 22')
        a.i(f's_add_u32 s{sT}, s{sT}, s{sT+1}')
        a.i(f's_lshl_b32 s{sT+1}, s{sWave}, 14')
        a.i(f's_add_u32 s{sB[0]}, s{sT}, s{sT+1}')
        a.i(f's_add_u32 s{sB[1]}, s{sB[0]}, 0x8000000')
        a.i(f's_lshl_b32 s{sT+1}, s{sWave}, 12')
        a.i(f's_add_u32 s{sBp[0]}, s{sT}, s{sT+1}')
        a.i(f's_add_u32 s{sBp[0]}, s{sBp[0]}, {9 * 65536}')
        a.i(f's_add_u32 s{sBp[1]}, s{sBp[0]}, 0x8000000')
        a.i(f's_cmp_lt_u32 s{sS}, 4')
        a.i(f's_cselect_b32 s{sT}, 5, 4')
        a.i(f's_lshl_b32 s{sT+1}, s{sWave}, 1')
        a.i(f's_sub_i32 s{sT}, s{sT}, s{sT+1}')
        a.i(f's_max_i32 s{sT}, s{sT}, 0')
        a.i(f's_min_i32 s{sT}, s{sT}, 2')
        a.i(f's_lshl_b32 s{sNV}, s{sT}, 3')
        for g in range(2):
            a.i(f's_cmp_gt_u32 s{sNV}, {8 * g}')
            a.i(f's_cselect_b64 s[{sPX[g]}:{sPX[g]+1}], -1, 0')
        a.i(f's_lshl_b32 s{sPidx}, s{sS}, 2')
        a.i(f's_add_u32 s{sPidx}, s{sPidx}, s{sWave}')
        a.i(f's_mul_i32 s{sLdsRet}, s{sWave}, {self.NV_LDS * 1024}')
        a.i(f's_add_u32 s{sLdsRet}, s{sLdsRet}, {L_RET}')
        a.i(f's_lshl_b32 s{sQG}, s{sWave}, 9')
        if L_QG: a.i(f's_add_u32 s{sQG}, s{sQG}, {L_QG}')
        a.i(f'v_lshlrev_b32 v{vL16}, 4, v{l}')
        a.i(f'v_add_u32 v{vLdsRet}, s{sLdsRet}, v{vL16}')
        a.i(f's_sub_u32 s{sLdsRet}, s{sLdsRet}, 4096')
        a.i(f'v_and_b32 v{T}, 7, v{l}')
        a.i(f'v_lshlrev_b32 v{vKoff}, 8, v{T}')
        a.i(f'v_bfe_u32 v{T}, v{l}, 3, 1')
        a.i(f'v_lshl_add_u32 v{vKoff}, v{T}, 6, v{vKoff}')
        a.i(f'v_lshrrev_b32 v{T+1}, 4, v{l}')
        a.i(f'v_lshl_add_u32 v{vKoff}, v{T+1}, 4, v{vKoff}')
        a.i(f'v_and_b32 v{T}, 15, v{l}')
        a.i(f'v_lshlrev_b32 v{vVoff}, 4, v{T}')
        a.i(f'v_lshl_add_u32 v{vV8}, v{T+1}, 11, v{vVoff}')
        a.i(f'v_lshl_add_u32 v{vVoff}, v{T+1}, 12, v{vVoff}')
        a.i(f'v_lshl_add_u32 v{T+2}, v{T}, 2, v{T+1}')
        a.i(f'v_cmp_gt_u32 vcc, s{sNV}, v{T+2}')
        a.i(f'v_cndmask_b32 v{T+2}, 16, v{T+2}, vcc')
        a.i(f'v_lshlrev_b32 v{vBP}, 2, v{T+2}')
        a.i(f'v_and_b32 v{T+2}, 1, v{l}')
        a.i(f'v_lshlrev_b32 v{T+2}, 4, v{T+2}')
        a.i(f'v_mov_b32 v{T+3}, 0xffff')
        a.i(f'v_lshlrev_b32 v{T+3}, v{T+2}, v{T+3}')
        a.i(f'v_lshrrev_b32 v{T+4}, 1, v{T}')
        for r in range(4):
            a.i(f'v_cmp_eq_u32 vcc, {r}, v{T+4}')
            a.i(f'v_cndmask_b32 v{vMask[r]}, 0, v{T+3}, vcc')

    def mk_clear(self):
        res = []
        def mk(k):
            def emit():
                a = self.a
                if k == 0:
                    for i in range(4): a.i(f'v_mov_b32 v{T+12+i}, -1')
                    a.i(f's_sub_u32 s{sClr}, s{sWG}, 32')
                    a.i(f's_lshl_b32 s{sClr}, s{sClr}, 2')
                    a.i(f's_add_u32 s{sClr}, s{sClr}, s{sWave}')
                    a.i(f's_mul_i32 s{sClr}, s{sClr}, 3072')
                return a.i(f'buffer_store_dwordx4 v[{T+12}:{T+15}], v{vL16}, {SRD_WS}, s{sClr} offen offset:{k*1024} sc1')
            return emit
        for k in range(3):
            L = Load(mk(k), None, 'CLRST'); res.append(L)
        return res

    def write_stamps(self, extra=()):
        a = self.a
        a.i(f's_lshl_b32 s{sT}, s{sWG}, 2')
        a.i(f's_add_u32 s{sT}, s{sT}, s{sWave}')
        a.i(f's_lshl_b32 s{sT}, s{sT}, 6')
        a.i(f's_add_u32 s{sT}, s{sT}, {W_DBG}')
        a.i(f's_mov_b64 exec, 1')
        a.i(f'v_mov_b32 v{T+1}, 0')
        for k in range(self.nstamp):
            a.i(f'v_mov_b32 v{T}, s{STAMP0 + k}')
            a.i(f'buffer_store_dword v{T}, v{T+1}, {SRD_WS}, s{sT} offen offset:{4*k}')
        a.i(f'v_mov_b32 v{T}, s{sSpin}')
        a.i(f'buffer_store_dword v{T}, v{T+1}, {SRD_WS}, s{sT} offen offset:48')
        a.i(f's_mov_b64 exec, -1')
```

```python
from asmlib import Asm
from common import *

vKoff, vVoff, vV8, vL16, vLdsRet = 0, 1, 2, 3, 4
vBP = 5
vMask = [6, 7, 8, 9]
vL = {'X': 10, 'Y': 11}
vQ = 12
vP = {'X': 20, 'Y': 26}
vO = {'X': 32, 'Y': 36}
T = 40
vACC = [40, 44]
vAT = [48, 52]
vLT = [56, 56]
vRING = 60
NEGINF = 0xff800000

L_QG = 0
L_RET = 2048

def lane(a, r):
    a.i(f'v_lshrrev_b32 v{r}, 4, v{vL16}')

class Load:
    def __init__(self, emit, after=None, name='', w=1.0):
        self.emit = emit; self.after = after; self.name = name; self.vid = None; self.idx = None; self.w = w
class Comp:
    def __init__(self, emit, needs=(), name=''):
        self.emit = emit; self.needs = list(needs); self.name = name; self.done = False

HALF_B = [('F', 0), ('F', 1), ('F', 2), ('F', 3), ('H', 0)]
HALF_A = [('F', 4), ('F', 5), ('F', 6), ('F', 7), ('H', 1), ('P',)]

def k_units(tile):
    n = {'F': 8, 'H': 4, 'P': 2}[tile[0]]
    return [(g, jj) for g in range(n) for jj in range(2)]
def v_units(tile):
    return list(range({'F': 16, 'H': 8, 'P': 4}[tile[0]]))

class Stream:
    def __init__(self, cfg, a):
        self.c = cfg
        self.a = a
        self.loads = []; self.comps = []
        self.pend = []
        self.accsel = 0; self.atsel = 0; self.ltsel = 0
        self.ring = 0
        self.ring_reader = [None] * cfg.NRING
        self.vRET = vRING + 4 * cfg.NRING
        self.NVREG = (256 - self.vRET) // 4
        self.KX = 72 - 64
        self.NV_REG = self.NVREG - self.KX
        self.NV_LDS = 72 - self.NV_REG
        assert L_RET + 4 * self.NV_LDS * 1024 <= 163840, (self.NV_LDS,)
        self.k_reader = [None] * 72
        self.v_reader = [None] * 72
        self.curK = None; self.curV = None
        self.marks = {}
        self.nstamp = 0
        self.pro_loads = []
        self.uid = 0
        self.curpol = cfg.pol

    def set_off(self, which, b, tile, const):
        a = self.a
        base = sBp[b] if tile[0] == 'P' else sB[b]
        key = (base, const)
        reg = sOffK if which == 'K' else sOffV
        cur = self.curK if which == 'K' else self.curV
        if cur != key:
            if const == 0: a.i(f's_mov_b32 s{reg}, s{base}')
            else: a.i(f's_add_u32 s{reg}, s{base}, {const}')
            if which == 'K': self.curK = key
            else: self.curV = key
        return f's{reg}'

    def add_load(self, L): self.loads.append(L); return L
    def add_comp(self, C): self.comps.append(C); return C
    def ring_slot(self):
        s = self.ring % self.c.NRING; self.ring += 1
        return s

    def k_addr(self, tile, g, jj):
        if tile[0] == 'F': return tile[1] * 65536 + (g >> 1) * 4096, (g & 1) * 2048 + jj * 128
        if tile[0] == 'H': return 8 * 65536 + tile[1] * 8192 + (g >> 1) * 4096, (g & 1) * 2048 + jj * 128
        return 0, g * 2048 + jj * 128
    def v_addr(self, tile, t):
        if tile[0] == 'F': return tile[1] * 65536, t * 256, vVoff
        if tile[0] == 'H': return 8 * 65536 + tile[1] * 8192, t * 256, vV8
        return 0, t * 1024, vL16
    def k_place(self, tile, g):
        if tile[0] == 'F': return g >> 1, g & 1
        if tile[0] == 'H': return g, 0
        return 0, g

    def mk_kload(self, b, tile, g, jj, dst, after):
        pol = self.curpol
        def emit():
            const, imm = self.k_addr(tile, g, jj)
            so = self.set_off('K', b, tile, const)
            if tile[0] == 'P' and self.c.skip_inv: self.a.i(f's_mov_b64 exec, s[{sPX[g]}:{sPX[g]+1}]')
            r = self.a.i(f'buffer_load_dwordx4 {dst}, v{vKoff}, {SRD_K}, {so} offen offset:{imm}{pol}')
            if tile[0] == 'P' and self.c.skip_inv: self.a.i('s_mov_b64 exec, -1')
            return r
        return self.add_load(Load(emit, after, f'K b{b} {tile} g{g} j{jj}'))
    def mk_vload(self, b, tile, t, dst, after):
        pol = self.curpol
        def emit():
            const, imm, vo = self.v_addr(tile, t)
            so = self.set_off('V', b, tile, const)
            if tile[0] == 'P' and self.c.skip_inv: self.a.i(f's_mov_b64 exec, s[{sPX[t >> 1]}:{sPX[t >> 1]+1}]')
            r = self.a.i(f'buffer_load_dwordx4 {dst}, v{vo}, {SRD_V}, {so} offen offset:{imm}{pol}')
            if tile[0] == 'P' and self.c.skip_inv: self.a.i('s_mov_b64 exec, -1')
            return r
        return self.add_load(Load(emit, after, f'V b{b} {tile} u{t}'))
    def mk_vload_lds(self, b, tile, t, slot, after):
        def emit():
            const, imm, vo = self.v_addr(tile, t)
            so = self.set_off('V', b, tile, const)
            self.a.i(f's_add_u32 m0, s{sLdsRet}, {slot * 1024 - imm + 4096}')
            return self.a.i(f'buffer_load_dwordx4 v{vo}, {SRD_V}, {so} offen offset:{imm}{self.c.pol} lds')
        return self.add_load(Load(emit, after, f'VL b{b} {tile} u{t}'))

    def flush_adds(self, acc=None):
        a = self.a
        keep = []
        for (ac, S, row, hh) in self.pend:
            if acc is None or ac == acc:
                if hh == 0:
                    a.i(f'v_add_f32_dpp v{S}, v{ac+1}, v{ac} row_ror:8 row_mask:{hex(1 << row)} bank_mask:0x3')
                else:
                    a.i(f'v_add_f32_dpp v{S}, v{ac}, v{ac+1} row_ror:8 row_mask:{hex(1 << row)} bank_mask:0xc')
            else:
                keep.append((ac, S, row, hh))
        self.pend = keep

    def mk_qk(self, B0, B1, S, tile, g, needs):
        def emit():
            a = self.a
            if g == 0 and tile[0] in 'HP':
                a.i(f'v_mov_b32 v{S}, {hex(NEGINF)}')
            ac = vACC[self.accsel]; self.accsel ^= 1
            self.flush_adds(ac)
            a.i(f'v_mfma_f32_16x16x32_bf16 {vr(ac)}, {vr(vQ)}, {B0}, 0')
            a.i(f'v_mfma_f32_16x16x32_bf16 {vr(ac)}, {vr(vQ+4)}, {B1}, {vr(ac)}')
            row, hh = self.k_place(tile, g)
            self.pend.append((ac, S, row, hh))
        return self.add_comp(Comp(emit, needs, f'QK {tile} g{g}'))

    def pv_core(self, B, P, t, O, mid=None):
        a = self.a
        at = vAT[self.atsel]; self.atsel ^= 1
        for r in range(4):
            a.i(f'v_and_b32_dpp v{at+r}, v{P}, v{vMask[r]} row_newbcast:{t} row_mask:0xf bank_mask:0xf')
        if mid: mid()
        a.i(f'v_mfma_f32_16x16x32_bf16 {vr(O)}, {vr(at)}, {B}, {vr(O)}')
    def mk_pv(self, B, P, t, O, needs):
        return self.add_comp(Comp(lambda: self.pv_core(B, P, t, O), needs, f'PV t{t}'))
    def mk_pv_lds(self, slot, P, t, O, needs):
        def emit():
            a = self.a
            lt = vLT[self.ltsel]; self.ltsel ^= 1
            lid = a.i(f'ds_read_b128 {vr(lt)}, v{vLdsRet} offset:{slot * 1024}')
            self.pv_core(vr(lt), P, t, O, mid=lambda: a.wait_lg(lid))
        return self.add_comp(Comp(emit, needs, f'PVL t{t}'))

    def mk_softmax(self, Pset, Iset, first, tiles):
        n = len(tiles)
        def emit():
            a = self.a
            self.flush_adds()
            S = vP[Pset]; O = vO[Iset]; Lr = vL[Iset]; m = sM[Iset]
            t0, t1, t2, t3 = T, T+1, T+2, T+3
            if tiles[-1][0] == 'P':
                k = n - 1
                lid = a.i(f'ds_bpermute_b32 v{S+k}, v{vBP}, v{S+k}')
                a.wait_lg(lid)
            for i in range(n): a.i(f'v_mul_f32 v{S+i}, {hex(f2u(SCALE))}, v{S+i}')
            a.i(f'v_max3_f32 v{t0}, v{S}, v{S+1}, v{S+2}')
            a.i(f'v_max3_f32 v{t0}, v{t0}, v{S+3}, v{S+4}')
            if n == 6: a.i(f'v_max_f32 v{t0}, v{t0}, v{S+5}')
            if not first: a.i(f'v_max_f32 v{t0}, s{m}, v{t0}')
            wave_reduce_multi(a, 'v_max_f32', [t0])
            a.i(f'v_readlane_b32 s{sT}, v{t0}, 63')
            if not first:
                a.i(f'v_mov_b32 v{t1}, s{sT}')
                a.i(f'v_sub_f32 v{t1}, s{m}, v{t1}')
                a.i(f'v_exp_f32 v{t1}, v{t1}')
                for i in range(4): a.i(f'v_mul_f32 v{O+i}, v{O+i}, v{t1}')
                a.i(f'v_mul_f32 v{Lr}, v{Lr}, v{t1}')
            else:
                for i in range(4): a.i(f'v_mov_b32 v{O+i}, 0')
            a.i(f's_mov_b32 s{m}, s{sT}')
            for i in range(n): a.i(f'v_subrev_f32 v{S+i}, s{m}, v{S+i}')
            for i in range(n): a.i(f'v_exp_f32 v{S+i}, v{S+i}')
            a.i(f'v_add_f32 v{t2}, v{S}, v{S+1}')
            a.i(f'v_add_f32 v{t3}, v{S+2}, v{S+3}')
            a.i(f'v_add_f32 v{t2}, v{t2}, v{S+4}')
            if n == 6: a.i(f'v_add_f32 v{t3}, v{t3}, v{S+5}')
            if first:
                a.i(f'v_add_f32 v{Lr}, v{t2}, v{t3}')
            else:
                a.i(f'v_add_f32 v{t2}, v{t2}, v{t3}')
                a.i(f'v_add_f32 v{Lr}, v{Lr}, v{t2}')
            for i in range(n): a.i(f'v_cvt_pk_bf16_f32 v{S+i}, v{S+i}, v{S+i}')
        return self.add_comp(Comp(emit, (), f'softmax {Pset} {Iset} {first}'))

    def cond_begin(self):
        self.a.flush_hazards()
        self._snap = (list(self.a.vm), list(self.a.lg))
    def cond_end(self):
        self.a.flush_hazards()
        self.a.vm, self.a.lg = self._snap

    def mk_publish(self, inst):
        Iset = 'X' if (inst & 1) == 0 else 'Y'
        def emit():
            a = self.a
            O = vO[Iset]; Lr = vL[Iset]; m = sM[Iset]
            t = T
            wave_reduce_multi(a, 'v_add_f32', [Lr])
            lane(a, t+5)
            a.i(f'v_and_b32 v{t}, 15, v{t+5}')
            a.i(f'v_lshlrev_b32 v{t}, 5, v{t}')
            a.i(f'v_lshrrev_b32 v{t+1}, 4, v{t+5}')
            a.i(f'v_lshl_add_u32 v{t}, v{t+1}, 4, v{t}')
            a.i(f's_mul_i32 s{sT}, s{sH}, {NP}')
            a.i(f's_add_u32 s{sT}, s{sT}, s{sPidx}')
            a.i(f's_lshl_b32 s{sT}, s{sT}, 9')
            a.i(f's_add_u32 s{sT}, s{sT}, {W_PO + inst * 32 * NP * 512}')
            a.i(f's_mov_b32 exec_hi, 0')
            a.i(f'buffer_store_dwordx4 {vr(O)}, v{t}, {SRD_WS}, s{sT} offen sc1')
            a.i(f's_lshl_b32 s{sT}, s{sH}, 8')
            a.i(f's_lshl_b32 s{sT+1}, s{sPidx}, 3')
            a.i(f's_add_u32 s{sT}, s{sT}, s{sT+1}')
            a.i(f's_add_u32 s{sT}, s{sT}, {W_PML + inst * 8192}')
            a.i(f's_mov_b64 exec, -1')
            a.i(f'v_mov_b32 v{t+2}, s{m}')
            a.i(f'v_mov_b32 v{t+3}, v{Lr}')
            a.i(f'v_mov_b32 v{t+4}, 0')
            a.i(f's_mov_b32 exec_lo, 0')
            a.i(f's_mov_b32 exec_hi, 0x80000000')
            a.i(f'buffer_store_dwordx2 v[{t+2}:{t+3}], v{t+4}, {SRD_WS}, s{sT} offen sc1')
            a.i(f's_mov_b64 exec, -1')
        return self.add_comp(Comp(emit, (), f'publish {inst}'))

    def mk_qgather(self, inst):
        def emit():
            a = self.a
            a.i(f's_lshl_b32 s{sT}, s{sH}, 8')
            a.i(f's_add_u32 s{sT}, s{sT}, {W_Q + inst * 8192}')
            a.i(f's_add_u32 m0, s{sQG}, {(inst & 1) * 256}')
            a.i(f'v_lshrrev_b32 v{T+19}, 2, v{vL16}')
            return a.i(f'buffer_load_dword v{T+19}, {SRD_WS}, s{sT} offen sc1 lds')
        return self.add_load(Load(emit, None, f'QG {inst}'))
    def q_read(self, inst):
        a = self.a; t = T
        lane(a, t+1)
        a.i(f'v_and_b32 v{t}, 1, v{t+1}')
        a.i(f'v_lshlrev_b32 v{t}, 6, v{t}')
        a.i(f'v_lshrrev_b32 v{t+1}, 4, v{t+1}')
        a.i(f'v_lshl_add_u32 v{t}, v{t+1}, 4, v{t}')
        a.i(f'v_add_u32 v{t}, s{sQG}, v{t}')
        a.i(f'ds_read_b128 {vr(vQ)}, v{t} offset:{(inst & 1) * 256}')
        lid = a.i(f'ds_read_b128 {vr(vQ+4)}, v{t} offset:{(inst & 1) * 256 + 128}')
        a.wait_lg(lid)
    def q_bad(self):
        a = self.a; t = T + 2
        a.i(f'v_max3_u32 v{t}, v{vQ}, v{vQ+1}, v{vQ+2}')
        a.i(f'v_max3_u32 v{t}, v{t}, v{vQ+3}, v{vQ+4}')
        a.i(f'v_max3_u32 v{t}, v{t}, v{vQ+5}, v{vQ+6}')
        a.i(f'v_max_u32 v{t}, v{t}, v{vQ+7}')
        a.i(f'v_cmp_eq_u32 vcc, -1, v{t}')
        a.i(f's_cmp_lg_u64 vcc, 0')
    def mk_acquire(self, inst, gather):
        def emit():
            a = self.a
            self.flush_adds()
            self.q_read(inst)
            if gather is not None and not self.c.test_attn:
                ok = a.newlabel('qok'); lp = a.newlabel('qretry')
                self.q_bad()
                self.cond_begin()
                a.i(f's_cbranch_scc0 {ok}')
                a.label(lp)
                a.i('s_sleep 2')
                a.i(f's_lshl_b32 s{sT}, s{sH}, 8')
                a.i(f's_add_u32 s{sT}, s{sT}, {W_Q + inst * 8192}')
                a.i(f's_add_u32 m0, s{sQG}, {(inst & 1) * 256}')
                a.i(f'v_lshrrev_b32 v{T+19}, 2, v{vL16}')
                a.i(f'buffer_load_dword v{T+19}, {SRD_WS}, s{sT} offen sc1 lds')
                a.i('s_waitcnt vmcnt(0)')
                self.q_read(inst)
                self.q_bad()
                a.i(f's_cbranch_scc0 {ok}')
                a.i(f's_sub_u32 s{sSpin}, s{sSpin}, 1')
                a.i(f's_cmp_gt_i32 s{sSpin}, 0')
                a.i(f's_cbranch_scc1 {lp}')
                self.cond_end()
                a.label(ok)
        return self.add_comp(Comp(emit, [gather] if gather else [], f'acquire {inst}'))

    def mk_b1(self):
        def emit():
            a = self.a
            a.i('s_barrier')
            skip = a.newlabel('b1')
            a.i(f's_cmp_eq_u32 s{sWave}, 0')
            self.cond_begin()
            a.i(f's_cbranch_scc0 {skip}')
            a.i(f'v_mov_b32 v{T}, 0')
            a.i(f'v_mov_b32 v{T+1}, 1')
            a.i('s_mov_b64 exec, 1')
            a.i(f'global_atomic_add v{T}, v{T+1}, s[{P_DBG}:{P_DBG+1}]')
            a.i('s_mov_b64 exec, -1')
            self.cond_end()
            a.label(skip)
        return self.add_comp(Comp(emit, self.pro_loads, 'B1'))
    def mk_clrload(self):
        def emit():
            a = self.a
            a.i(f'v_mov_b32 v{T+18}, 0')
            return a.i(f'global_load_dword v{T+19}, v{T+18}, s[{P_DBG}:{P_DBG+1}] sc1')
        return self.add_load(Load(emit, None, 'CLR'))
    def mk_clrcheck(self, cl):
        def emit():
            a = self.a
            ok = a.newlabel('clok'); lp = a.newlabel('clp')
            a.i(f'v_readfirstlane_b32 s{sT}, v{T+19}')
            a.i(f's_cmp_ge_u32 s{sT}, 224')
            self.cond_begin()
            a.i(f's_cbranch_scc1 {ok}')
            a.label(lp)
            a.i(f'global_load_dword v{T+19}, v{T+18}, s[{P_DBG}:{P_DBG+1}] sc1')
            a.i('s_waitcnt vmcnt(0)')
            a.i(f'v_readfirstlane_b32 s{sT}, v{T+19}')
            a.i(f's_cmp_ge_u32 s{sT}, 224')
            a.i(f's_cbranch_scc1 {ok}')
            a.i(f's_sub_u32 s{sSpin}, s{sSpin}, 1')
            a.i(f's_cmp_gt_i32 s{sSpin}, 0')
            a.i(f's_cbranch_scc1 {lp}')
            self.cond_end()
            a.label(ok)
        return self.add_comp(Comp(emit, [cl], 'clrcheck'))

    def kslot(self, u):
        return ar(4 * u) if u < 64 else vr(self.vRET + 4 * (u - 64))
    def in_mall(self, i, limit, cnt):
        if self.c.mall_mod is None:
            return cnt < limit
        num, den = self.c.mall_mod
        return (i % den) < num

    def stream_k(self, inst, Pset, tiles):
        b = inst & 1
        cnt = 0
        for ti, tile in enumerate(tiles):
            ku = k_units(tile)
            for gi in range(0, len(ku), 2):
                g = ku[gi][0]
                ls = []; regs = []
                self.curpol = self.c.polA[inst] if self.in_mall(cnt // 2, self.c.mallK[inst & 1], cnt) else ' nt'
                cnt += 2
                for jj in range(2):
                    s = self.ring_slot()
                    ls.append(self.mk_kload(b, tile, g, jj, vr(vRING + 4*s), self.ring_reader[s])); regs.append(s)
                C = self.mk_qk(vr(vRING + 4*regs[0]), vr(vRING + 4*regs[1]), vP[Pset] + ti, tile, g, ls)
                for s in regs: self.ring_reader[s] = C
    def stream_v(self, inst, Pset, tiles):
        b = inst & 1
        cnt = 0
        Iset = 'X' if b == 0 else 'Y'
        for ti, tile in enumerate(tiles):
            for t in v_units(tile):
                self.curpol = self.c.polA[inst] if self.in_mall(cnt, self.c.mallV[inst & 1], cnt) else ' nt'
                cnt += 1
                s = self.ring_slot()
                L = self.mk_vload(b, tile, t, vr(vRING + 4*s), self.ring_reader[s])
                self.ring_reader[s] = self.mk_pv(vr(vRING + 4*s), vP[Pset] + ti, t, vO[Iset], [L])
    def b_kunits(self):
        out = []
        for ti, tile in enumerate(HALF_B):
            for (g, jj) in k_units(tile): out.append((ti, tile, g, jj))
        assert len(out) == 72
        return out
    def b_vunits(self):
        out = []
        for ti, tile in enumerate(HALF_B):
            for t in v_units(tile): out.append((ti, tile, t))
        assert len(out) == 72
        return out
    def halfB_loadK(self, b):
        self.curpol = self.c.pol
        return [self.mk_kload(b, tile, g, jj, self.kslot(u), self.k_reader[u]) for u, (ti, tile, g, jj) in enumerate(self.b_kunits())]
    def halfB_loadV(self, b):
        self.curpol = self.c.pol
        Ls = []
        for u, (ti, tile, t) in enumerate(self.b_vunits()):
            if u < self.NV_REG:
                Ls.append(self.mk_vload(b, tile, t, vr(self.vRET + 4 * (self.KX + u)), self.v_reader[u]))
            else:
                Ls.append(self.mk_vload_lds(b, tile, t, u - self.NV_REG, self.v_reader[u]))
        return Ls
    def halfB_qk(self, Pset, Ls):
        ku = self.b_kunits()
        for u in range(0, 72, 2):
            ti, tile, g, _ = ku[u]
            needs = [Ls[u], Ls[u+1]] if Ls else []
            C = self.mk_qk(self.kslot(u), self.kslot(u + 1), vP[Pset] + ti, tile, g, needs)
            self.k_reader[u] = C; self.k_reader[u+1] = C
    def halfB_pv(self, inst, Pset, Ls):
        Iset = 'X' if (inst & 1) == 0 else 'Y'
        for u, (ti, tile, t) in enumerate(self.b_vunits()):
            needs = [Ls[u]] if Ls else []
            if u < self.NV_REG:
                C = self.mk_pv(vr(self.vRET + 4 * (self.KX + u)), vP[Pset] + ti, t, vO[Iset], needs)
            else:
                C = self.mk_pv_lds(u - self.NV_REG, vP[Pset] + ti, t, vO[Iset], needs)
            self.v_reader[u] = C

    def mark(self, name):
        self.marks[name] = len(self.loads)
        if self.c.timing and self.c.stamp_pos is None: self.add_comp(Comp(self.stamp_now, (), 'stamp'))
    def stamp_now(self):
        a = self.a
        k = self.nstamp; self.nstamp += 1
        a.smem(f's_memrealtime s[{sT}:{sT+1}]')
        a.raw('  s_waitcnt lgkmcnt(0)'); a.t += 1; a.lg = []
        a.i(f's_mov_b32 s{STAMP0 + k}, s{sT}')

    def place_before_end(self, L, n):
        self.loads.remove(L); self.loads.insert(len(self.loads) - n, L)

    def build(self):
        c = self.c
        KL = self.halfB_loadK(0)
        if not c.test_attn:
            cs = self.mk_clear()
            for k, L in enumerate(cs): self.loads.insert(c.CLRST_POS + k, L)
            self.pro_loads = [self.loads[c.CLRST_POS + 3 + c.B1_LAG]]
            self.mk_b1()
        if not c.test_attn:
            cl = self.mk_clrload()
            self.loads.remove(cl); self.loads.insert(c.CLR_POS, cl)
            self.mk_clrcheck(cl)
        VL = self.halfB_loadV(0)
        qg0 = self.mk_qgather(0)
        self.loads.remove(qg0); self.loads.insert(c.QG0_POS, qg0)
        self.mk_acquire(0, qg0)
        self.halfB_qk('X', KL)
        self.mk_softmax('X', 'X', True, HALF_B)
        n0 = len(self.comps)
        self.halfB_pv(0, 'X', VL)
        cB = self.comps[n0:]; del self.comps[n0:]
        self.stream_k(0, 'Y', HALF_A)
        cA = self.comps[n0:]; del self.comps[n0:]
        self.comps += self.interleave(cB, cA, 2)
        qg1 = self.mk_qgather(1)
        self.mk_softmax('Y', 'X', False, HALF_A)
        self.stream_v(0, 'Y', HALF_A)
        self.mk_publish(0)
        self.mark('A')
        self.mk_acquire(1, qg1)
        self.stream_k(1, 'Y', HALF_A)
        self.mk_softmax('Y', 'Y', True, HALF_A)
        self.stream_v(1, 'Y', HALF_A)
        qg2 = self.mk_qgather(2); self.place_before_end(qg2, c.QG_LEAD)
        self.mark('B')
        self.mk_acquire(2, qg2)
        self.halfB_qk('X', None)
        self.mk_softmax('X', 'X', True, HALF_B)
        self.halfB_pv(2, 'X', None)
        KL = self.halfB_loadK(1)
        VL = self.halfB_loadV(1)
        self.mk_acquire(1, None)
        self.halfB_qk('Y', KL)
        self.mk_softmax('Y', 'Y', False, HALF_B)
        self.halfB_pv(1, 'Y', VL)
        self.mk_publish(1)
        self.mark('C')
        self.mk_acquire(2, None)
        self.stream_k(2, 'X', HALF_A)
        self.mk_softmax('X', 'X', False, HALF_A)
        self.stream_v(2, 'X', HALF_A)
        qg3 = self.mk_qgather(3); self.place_before_end(qg3, c.QG_LEAD)
        self.mk_publish(2)
        self.mark('D')
        self.mk_acquire(3, qg3)
        n0 = len(self.comps)
        self.stream_k(3, 'X', HALF_A)
        compsA = self.comps[n0:]; del self.comps[n0:]
        self.halfB_qk('Y', None)
        self.mk_softmax('Y', 'Y', True, HALF_B)
        self.halfB_pv(3, 'Y', None)
        compsB = self.comps[n0:]; del self.comps[n0:]
        self.comps += self.interleave(compsB, compsA, 3)
        self.mk_softmax('X', 'Y', False, HALF_A)
        self.stream_v(3, 'X', HALF_A)
        self.mk_publish(3)
        self.mark('E')

    def interleave(self, main, other, every):
        ia = 0; merged = []
        for k, C in enumerate(main):
            merged.append(C)
            if k % every == every - 1 and ia < len(other):
                merged.append(other[ia]); ia += 1
        merged += other[ia:]
        return merged

    def emit_comp(self, C):
        for L in C.needs:
            assert L.vid is not None, ('load not issued before its consumer', C.name, L.name)
            self.a.wait_vm(L.vid)
        C.emit(); C.done = True

    def schedule(self):
        c = self.c; a = self.a
        ci = 0; comps = self.comps
        for li, L in enumerate(self.loads):
            L.idx = li
            if L.after is not None and not L.after.done:
                while not L.after.done:
                    self.emit_comp(comps[ci]); ci += 1
            Dd = c.D
            for (pos, dv) in c.Dsched:
                if li >= pos: Dd = dv
            if li >= max(Dd, c.BURST):
                a.wait_vm(self.loads[li - Dd].vid)
            L.vid = L.emit()
            if c.stamp_pos is not None and li in c.stamp_pos: self.stamp_now()
            n = 0
            while ci < len(comps) and n < c.budget:
                C = comps[ci]
                if all(x.vid is not None and a.vm_done(x.vid) for x in C.needs):
                    self.emit_comp(C); ci += 1; n += 1
                else:
                    break
        while ci < len(comps):
            self.emit_comp(comps[ci]); ci += 1

    def prologue(self):
        a = self.a; c = self.c
        l = T + 8
        a.i(f'v_mov_b32 v{l}, v0')
        a.i(f's_mul_i32 s{sT}, s{sS}, 292')
        a.i(f's_min_u32 s{sT+1}, s{sS}, 4')
        a.i(f's_add_u32 s{sT}, s{sT}, s{sT+1}')
        a.i(f's_lshl_b32 s{sT}, s{sT}, 11')
        a.i(f's_lshl_b32 s{sT+1}, s{sH}, 22')
        a.i(f's_add_u32 s{sT}, s{sT}, s{sT+1}')
        a.i(f's_lshl_b32 s{sT+1}, s{sWave}, 14')
        a.i(f's_add_u32 s{sB[0]}, s{sT}, s{sT+1}')
        a.i(f's_add_u32 s{sB[1]}, s{sB[0]}, 0x8000000')
        a.i(f's_lshl_b32 s{sT+1}, s{sWave}, 12')
        a.i(f's_add_u32 s{sBp[0]}, s{sT}, s{sT+1}')
        a.i(f's_add_u32 s{sBp[0]}, s{sBp[0]}, {9 * 65536}')
        a.i(f's_add_u32 s{sBp[1]}, s{sBp[0]}, 0x8000000')
        a.i(f's_cmp_lt_u32 s{sS}, 4')
        a.i(f's_cselect_b32 s{sT}, 5, 4')
        a.i(f's_lshl_b32 s{sT+1}, s{sWave}, 1')
        a.i(f's_sub_i32 s{sT}, s{sT}, s{sT+1}')
        a.i(f's_max_i32 s{sT}, s{sT}, 0')
        a.i(f's_min_i32 s{sT}, s{sT}, 2')
        a.i(f's_lshl_b32 s{sNV}, s{sT}, 3')
        for g in range(2):
            a.i(f's_cmp_gt_u32 s{sNV}, {8 * g}')
            a.i(f's_cselect_b64 s[{sPX[g]}:{sPX[g]+1}], -1, 0')
        a.i(f's_lshl_b32 s{sPidx}, s{sS}, 2')
        a.i(f's_add_u32 s{sPidx}, s{sPidx}, s{sWave}')
        a.i(f's_mul_i32 s{sLdsRet}, s{sWave}, {self.NV_LDS * 1024}')
        a.i(f's_add_u32 s{sLdsRet}, s{sLdsRet}, {L_RET}')
        a.i(f's_lshl_b32 s{sQG}, s{sWave}, 9')
        if L_QG: a.i(f's_add_u32 s{sQG}, s{sQG}, {L_QG}')
        a.i(f'v_lshlrev_b32 v{vL16}, 4, v{l}')
        a.i(f'v_add_u32 v{vLdsRet}, s{sLdsRet}, v{vL16}')
        a.i(f's_sub_u32 s{sLdsRet}, s{sLdsRet}, 4096')
        a.i(f'v_and_b32 v{T}, 7, v{l}')
        a.i(f'v_lshlrev_b32 v{vKoff}, 8, v{T}')
        a.i(f'v_bfe_u32 v{T}, v{l}, 3, 1')
        a.i(f'v_lshl_add_u32 v{vKoff}, v{T}, 6, v{vKoff}')
        a.i(f'v_lshrrev_b32 v{T+1}, 4, v{l}')
        a.i(f'v_lshl_add_u32 v{vKoff}, v{T+1}, 4, v{vKoff}')
        a.i(f'v_and_b32 v{T}, 15, v{l}')
        a.i(f'v_lshlrev_b32 v{vVoff}, 4, v{T}')
        a.i(f'v_lshl_add_u32 v{vV8}, v{T+1}, 11, v{vVoff}')
        a.i(f'v_lshl_add_u32 v{vVoff}, v{T+1}, 12, v{vVoff}')
        a.i(f'v_lshl_add_u32 v{T+2}, v{T}, 2, v{T+1}')
        a.i(f'v_cmp_gt_u32 vcc, s{sNV}, v{T+2}')
        a.i(f'v_cndmask_b32 v{T+2}, 16, v{T+2}, vcc')
        a.i(f'v_lshlrev_b32 v{vBP}, 2, v{T+2}')
        a.i(f'v_and_b32 v{T+2}, 1, v{l}')
        a.i(f'v_lshlrev_b32 v{T+2}, 4, v{T+2}')
        a.i(f'v_mov_b32 v{T+3}, 0xffff')
        a.i(f'v_lshlrev_b32 v{T+3}, v{T+2}, v{T+3}')
        a.i(f'v_lshrrev_b32 v{T+4}, 1, v{T}')
        for r in range(4):
            a.i(f'v_cmp_eq_u32 vcc, {r}, v{T+4}')
            a.i(f'v_cndmask_b32 v{vMask[r]}, 0, v{T+3}, vcc')

    def mk_clear(self):
        res = []
        def mk(k):
            def emit():
                a = self.a
                if k == 0:
                    for i in range(4): a.i(f'v_mov_b32 v{T+12+i}, -1')
                    a.i(f's_sub_u32 s{sClr}, s{sWG}, 32')
                    a.i(f's_lshl_b32 s{sClr}, s{sClr}, 2')
                    a.i(f's_add_u32 s{sClr}, s{sClr}, s{sWave}')
                    a.i(f's_mul_i32 s{sClr}, s{sClr}, 3072')
                return a.i(f'buffer_store_dwordx4 v[{T+12}:{T+15}], v{vL16}, {SRD_WS}, s{sClr} offen offset:{k*1024} sc1')
            return emit
        for k in range(3):
            L = Load(mk(k), None, 'CLRST'); res.append(L)
        return res

    def write_stamps(self, extra=()):
        a = self.a
        a.i(f's_lshl_b32 s{sT}, s{sWG}, 2')
        a.i(f's_add_u32 s{sT}, s{sT}, s{sWave}')
        a.i(f's_lshl_b32 s{sT}, s{sT}, 6')
        a.i(f's_add_u32 s{sT}, s{sT}, {W_DBG}')
        a.i(f's_mov_b64 exec, 1')
        a.i(f'v_mov_b32 v{T+1}, 0')
        for k in range(self.nstamp):
            a.i(f'v_mov_b32 v{T}, s{STAMP0 + k}')
            a.i(f'buffer_store_dword v{T}, v{T+1}, {SRD_WS}, s{sT} offen offset:{4*k}')
        a.i(f'v_mov_b32 v{T}, s{sSpin}')
        a.i(f'buffer_store_dword v{T}, v{T+1}, {SRD_WS}, s{sT} offen offset:48')
        a.i(f's_mov_b64 exec, -1')
```

```python
from asmlib import Asm
from common import *

vKoff, vVoff, vV8, vL16, vLdsRet = 0, 1, 2, 3, 4
vBP = 5
vMask = [6, 7, 8, 9]
vL = {'X': 10, 'Y': 11}
vQ = 12
vP = {'X': 20, 'Y': 26}
vO = {'X': 32, 'Y': 36}
T = 40
vACC = [40, 44]
vAT = [48, 52]
vLT = [56, 56]
vRING = 60
NEGINF = 0xff800000

L_QG = 0
L_RET = 2048

def lane(a, r):
    a.i(f'v_lshrrev_b32 v{r}, 4, v{vL16}')

class Load:
    def __init__(self, emit, after=None, name='', w=1.0):
        self.emit = emit; self.after = after; self.name = name; self.vid = None; self.idx = None; self.w = w
class Comp:
    def __init__(self, emit, needs=(), name=''):
        self.emit = emit; self.needs = list(needs); self.name = name; self.done = False

HALF_B = [('F', 0), ('F', 1), ('F', 2), ('F', 3), ('H', 0)]
HALF_A = [('F', 4), ('F', 5), ('F', 6), ('F', 7), ('H', 1), ('P',)]

def k_units(tile):
    n = {'F': 8, 'H': 4, 'P': 2}[tile[0]]
    return [(g, jj) for g in range(n) for jj in range(2)]
def v_units(tile):
    return list(range({'F': 16, 'H': 8, 'P': 4}[tile[0]]))

class Stream:
    def __init__(self, cfg, a):
        self.c = cfg
        self.a = a
        self.loads = []; self.comps = []
        self.pend = []
        self.accsel = 0; self.atsel = 0; self.ltsel = 0
        self.ring = 0
        self.ring_reader = [None] * cfg.NRING
        self.vRET = vRING + 4 * cfg.NRING
        self.NVREG = (256 - self.vRET) // 4
        self.KX = 72 - 64
        self.NV_REG = self.NVREG - self.KX
        self.NV_LDS = 72 - self.NV_REG
        assert L_RET + 4 * self.NV_LDS * 1024 <= 163840, (self.NV_LDS,)
        self.k_reader = [None] * 72
        self.v_reader = [None] * 72
        self.curK = None; self.curV = None
        self.marks = {}
        self.nstamp = 0
        self.pro_loads = []
        self.uid = 0
        self.curpol = cfg.pol

    def set_off(self, which, b, tile, const):
        a = self.a
        base = sBp[b] if tile[0] == 'P' else sB[b]
        key = (base, const)
        reg = sOffK if which == 'K' else sOffV
        cur = self.curK if which == 'K' else self.curV
        if cur != key:
            if const == 0: a.i(f's_mov_b32 s{reg}, s{base}')
            else: a.i(f's_add_u32 s{reg}, s{base}, {const}')
            if which == 'K': self.curK = key
            else: self.curV = key
        return f's{reg}'

    def add_load(self, L): self.loads.append(L); return L
    def add_comp(self, C): self.comps.append(C); return C
    def ring_slot(self):
        s = self.ring % self.c.NRING; self.ring += 1
        return s

    def k_addr(self, tile, g, jj):
        if tile[0] == 'F': return tile[1] * 65536 + (g >> 1) * 4096, (g & 1) * 2048 + jj * 128
        if tile[0] == 'H': return 8 * 65536 + tile[1] * 8192 + (g >> 1) * 4096, (g & 1) * 2048 + jj * 128
        return 0, g * 2048 + jj * 128
    def v_addr(self, tile, t):
        if tile[0] == 'F': return tile[1] * 65536, t * 256, vVoff
        if tile[0] == 'H': return 8 * 65536 + tile[1] * 8192, t * 256, vV8
        return 0, t * 1024, vL16
    def k_place(self, tile, g):
        if tile[0] == 'F': return g >> 1, g & 1
        if tile[0] == 'H': return g, 0
        return 0, g

    def mk_kload(self, b, tile, g, jj, dst, after):
        pol = self.curpol
        def emit():
            const, imm = self.k_addr(tile, g, jj)
            so = self.set_off('K', b, tile, const)
            if tile[0] == 'P' and self.c.skip_inv: self.a.i(f's_mov_b64 exec, s[{sPX[g]}:{sPX[g]+1}]')
            r = self.a.i(f'buffer_load_dwordx4 {dst}, v{vKoff}, {SRD_K}, {so} offen offset:{imm}{pol}')
            if tile[0] == 'P' and self.c.skip_inv: self.a.i('s_mov_b64 exec, -1')
            return r
        return self.add_load(Load(emit, after, f'K b{b} {tile} g{g} j{jj}'))
    def mk_vload(self, b, tile, t, dst, after):
        pol = self.curpol
        def emit():
            const, imm, vo = self.v_addr(tile, t)
            so = self.set_off('V', b, tile, const)
            if tile[0] == 'P' and self.c.skip_inv: self.a.i(f's_mov_b64 exec, s[{sPX[t >> 1]}:{sPX[t >> 1]+1}]')
            r = self.a.i(f'buffer_load_dwordx4 {dst}, v{vo}, {SRD_V}, {so} offen offset:{imm}{pol}')
            if tile[0] == 'P' and self.c.skip_inv: self.a.i('s_mov_b64 exec, -1')
            return r
        return self.add_load(Load(emit, after, f'V b{b} {tile} u{t}'))
    def mk_vload_lds(self, b, tile, t, slot, after):
        def emit():
            const, imm, vo = self.v_addr(tile, t)
            so = self.set_off('V', b, tile, const)
            self.a.i(f's_add_u32 m0, s{sLdsRet}, {slot * 1024 - imm + 4096}')
            return self.a.i(f'buffer_load_dwordx4 v{vo}, {SRD_V}, {so} offen offset:{imm}{self.c.pol} lds')
        return self.add_load(Load(emit, after, f'VL b{b} {tile} u{t}'))

    def flush_adds(self, acc=None):
        a = self.a
        keep = []
        for (ac, S, row, hh) in self.pend:
            if acc is None or ac == acc:
                if hh == 0:
                    a.i(f'v_add_f32_dpp v{S}, v{ac+1}, v{ac} row_ror:8 row_mask:{hex(1 << row)} bank_mask:0x3')
                else:
                    a.i(f'v_add_f32_dpp v{S}, v{ac}, v{ac+1} row_ror:8 row_mask:{hex(1 << row)} bank_mask:0xc')
            else:
                keep.append((ac, S, row, hh))
        self.pend = keep

    def mk_qk(self, B0, B1, S, tile, g, needs):
        def emit():
            a = self.a
            if g == 0 and tile[0] in 'HP':
                a.i(f'v_mov_b32 v{S}, {hex(NEGINF)}')
            ac = vACC[self.accsel]; self.accsel ^= 1
            self.flush_adds(ac)
            a.i(f'v_mfma_f32_16x16x32_bf16 {vr(ac)}, {vr(vQ)}, {B0}, 0')
            a.i(f'v_mfma_f32_16x16x32_bf16 {vr(ac)}, {vr(vQ+4)}, {B1}, {vr(ac)}')
            row, hh = self.k_place(tile, g)
            self.pend.append((ac, S, row, hh))
        return self.add_comp(Comp(emit, needs, f'QK {tile} g{g}'))

    def pv_core(self, B, P, t, O, mid=None):
        a = self.a
        at = vAT[self.atsel]; self.atsel ^= 1
        for r in range(4):
            a.i(f'v_and_b32_dpp v{at+r}, v{P}, v{vMask[r]} row_newbcast:{t} row_mask:0xf bank_mask:0xf')
        if mid: mid()
        a.i(f'v_mfma_f32_16x16x32_bf16 {vr(O)}, {vr(at)}, {B}, {vr(O)}')
    def mk_pv(self, B, P, t, O, needs):
        return self.add_comp(Comp(lambda: self.pv_core(B, P, t, O), needs, f'PV t{t}'))
    def mk_pv_lds(self, slot, P, t, O, needs):
        def emit():
            a = self.a
            lt = vLT[self.ltsel]; self.ltsel ^= 1
            lid = a.i(f'ds_read_b128 {vr(lt)}, v{vLdsRet} offset:{slot * 1024}')
            self.pv_core(vr(lt), P, t, O, mid=lambda: a.wait_lg(lid))
        return self.add_comp(Comp(emit, needs, f'PVL t{t}'))

    def mk_softmax(self, Pset, Iset, first, tiles):
        n = len(tiles)
        def emit():
            a = self.a
            self.flush_adds()
            S = vP[Pset]; O = vO[Iset]; Lr = vL[Iset]; m = sM[Iset]
            t0, t1, t2, t3 = T, T+1, T+2, T+3
            pk = [i for i, tl in enumerate(tiles) if tl[0] == 'P']
            if pk:
                k = pk[0]
                lid = a.i(f'ds_bpermute_b32 v{S+k}, v{vBP}, v{S+k}')
                a.wait_lg(lid)
            for i in range(n): a.i(f'v_mul_f32 v{S+i}, {hex(f2u(SCALE))}, v{S+i}')
            a.i(f'v_max3_f32 v{t0}, v{S}, v{S+1}, v{S+2}')
            a.i(f'v_max3_f32 v{t0}, v{t0}, v{S+3}, v{S+4}')
            if n == 6: a.i(f'v_max_f32 v{t0}, v{t0}, v{S+5}')
            if not first: a.i(f'v_max_f32 v{t0}, s{m}, v{t0}')
            wave_reduce_multi(a, 'v_max_f32', [t0])
            a.i(f'v_readlane_b32 s{sT}, v{t0}, 63')
            if not first:
                a.i(f'v_mov_b32 v{t1}, s{sT}')
                a.i(f'v_sub_f32 v{t1}, s{m}, v{t1}')
                a.i(f'v_exp_f32 v{t1}, v{t1}')
                for i in range(4): a.i(f'v_mul_f32 v{O+i}, v{O+i}, v{t1}')
                a.i(f'v_mul_f32 v{Lr}, v{Lr}, v{t1}')
            else:
                for i in range(4): a.i(f'v_mov_b32 v{O+i}, 0')
            a.i(f's_mov_b32 s{m}, s{sT}')
            for i in range(n): a.i(f'v_subrev_f32 v{S+i}, s{m}, v{S+i}')
            for i in range(n): a.i(f'v_exp_f32 v{S+i}, v{S+i}')
            a.i(f'v_add_f32 v{t2}, v{S}, v{S+1}')
            a.i(f'v_add_f32 v{t3}, v{S+2}, v{S+3}')
            a.i(f'v_add_f32 v{t2}, v{t2}, v{S+4}')
            if n == 6: a.i(f'v_add_f32 v{t3}, v{t3}, v{S+5}')
            if first:
                a.i(f'v_add_f32 v{Lr}, v{t2}, v{t3}')
            else:
                a.i(f'v_add_f32 v{t2}, v{t2}, v{t3}')
                a.i(f'v_add_f32 v{Lr}, v{Lr}, v{t2}')
            for i in range(n): a.i(f'v_cvt_pk_bf16_f32 v{S+i}, v{S+i}, v{S+i}')
        return self.add_comp(Comp(emit, (), f'softmax {Pset} {Iset} {first}'))

    def cond_begin(self):
        self.a.flush_hazards()
        self._snap = (list(self.a.vm), list(self.a.lg))
    def cond_end(self):
        self.a.flush_hazards()
        self.a.vm, self.a.lg = self._snap

    def mk_publish(self, inst):
        Iset = 'X' if (inst & 1) == 0 else 'Y'
        def emit():
            a = self.a
            O = vO[Iset]; Lr = vL[Iset]; m = sM[Iset]
            t = T
            wave_reduce_multi(a, 'v_add_f32', [Lr])
            lane(a, t+5)
            a.i(f'v_and_b32 v{t}, 15, v{t+5}')
            a.i(f'v_lshlrev_b32 v{t}, 5, v{t}')
            a.i(f'v_lshrrev_b32 v{t+1}, 4, v{t+5}')
            a.i(f'v_lshl_add_u32 v{t}, v{t+1}, 4, v{t}')
            a.i(f's_mul_i32 s{sT}, s{sH}, {NP}')
            a.i(f's_add_u32 s{sT}, s{sT}, s{sPidx}')
            a.i(f's_lshl_b32 s{sT}, s{sT}, 9')
            a.i(f's_add_u32 s{sT}, s{sT}, {W_PO + inst * 32 * NP * 512}')
            a.i(f's_mov_b32 exec_hi, 0')
            a.i(f'buffer_store_dwordx4 {vr(O)}, v{t}, {SRD_WS}, s{sT} offen sc1')
            a.i(f's_lshl_b32 s{sT}, s{sH}, 8')
            a.i(f's_lshl_b32 s{sT+1}, s{sPidx}, 3')
            a.i(f's_add_u32 s{sT}, s{sT}, s{sT+1}')
            a.i(f's_add_u32 s{sT}, s{sT}, {W_PML + inst * 8192}')
            a.i(f's_mov_b64 exec, -1')
            a.i(f'v_mov_b32 v{t+2}, s{m}')
            a.i(f'v_mov_b32 v{t+3}, v{Lr}')
            a.i(f'v_mov_b32 v{t+4}, 0')
            a.i(f's_mov_b32 exec_lo, 0')
            a.i(f's_mov_b32 exec_hi, 0x80000000')
            a.i(f'buffer_store_dwordx2 v[{t+2}:{t+3}], v{t+4}, {SRD_WS}, s{sT} offen sc1')
            a.i(f's_mov_b64 exec, -1')
        return self.add_comp(Comp(emit, (), f'publish {inst}'))

    def mk_qgather(self, inst):
        def emit():
            a = self.a
            a.i(f's_lshl_b32 s{sT}, s{sH}, 8')
            a.i(f's_add_u32 s{sT}, s{sT}, {W_Q + inst * 8192}')
            a.i(f's_add_u32 m0, s{sQG}, {(inst & 1) * 256}')
            a.i(f'v_lshrrev_b32 v{T+19}, 2, v{vL16}')
            return a.i(f'buffer_load_dword v{T+19}, {SRD_WS}, s{sT} offen sc1 lds')
        return self.add_load(Load(emit, None, f'QG {inst}'))
    def q_read(self, inst):
        a = self.a; t = T
        lane(a, t+1)
        a.i(f'v_and_b32 v{t}, 1, v{t+1}')
        a.i(f'v_lshlrev_b32 v{t}, 6, v{t}')
        a.i(f'v_lshrrev_b32 v{t+1}, 4, v{t+1}')
        a.i(f'v_lshl_add_u32 v{t}, v{t+1}, 4, v{t}')
        a.i(f'v_add_u32 v{t}, s{sQG}, v{t}')
        a.i(f'ds_read_b128 {vr(vQ)}, v{t} offset:{(inst & 1) * 256}')
        lid = a.i(f'ds_read_b128 {vr(vQ+4)}, v{t} offset:{(inst & 1) * 256 + 128}')
        a.wait_lg(lid)
    def q_bad(self):
        a = self.a; t = T + 2
        a.i(f'v_max3_u32 v{t}, v{vQ}, v{vQ+1}, v{vQ+2}')
        a.i(f'v_max3_u32 v{t}, v{t}, v{vQ+3}, v{vQ+4}')
        a.i(f'v_max3_u32 v{t}, v{t}, v{vQ+5}, v{vQ+6}')
        a.i(f'v_max_u32 v{t}, v{t}, v{vQ+7}')
        a.i(f'v_cmp_eq_u32 vcc, -1, v{t}')
        a.i(f's_cmp_lg_u64 vcc, 0')
    def mk_acquire(self, inst, gather):
        def emit():
            a = self.a
            self.flush_adds()
            self.q_read(inst)
            if gather is not None and not self.c.test_attn:
                ok = a.newlabel('qok'); lp = a.newlabel('qretry')
                self.q_bad()
                self.cond_begin()
                a.i(f's_cbranch_scc0 {ok}')
                a.label(lp)
                a.i('s_sleep 2')
                a.i(f's_lshl_b32 s{sT}, s{sH}, 8')
                a.i(f's_add_u32 s{sT}, s{sT}, {W_Q + inst * 8192}')
                a.i(f's_add_u32 m0, s{sQG}, {(inst & 1) * 256}')
                a.i(f'v_lshrrev_b32 v{T+19}, 2, v{vL16}')
                a.i(f'buffer_load_dword v{T+19}, {SRD_WS}, s{sT} offen sc1 lds')
                a.i('s_waitcnt vmcnt(0)')
                self.q_read(inst)
                self.q_bad()
                a.i(f's_cbranch_scc0 {ok}')
                a.i(f's_sub_u32 s{sSpin}, s{sSpin}, 1')
                a.i(f's_cmp_gt_i32 s{sSpin}, 0')
                a.i(f's_cbranch_scc1 {lp}')
                self.cond_end()
                a.label(ok)
        return self.add_comp(Comp(emit, [gather] if gather else [], f'acquire {inst}'))

    def mk_b1(self):
        def emit():
            a = self.a
            a.i('s_barrier')
            skip = a.newlabel('b1')
            a.i(f's_cmp_eq_u32 s{sWave}, 0')
            self.cond_begin()
            a.i(f's_cbranch_scc0 {skip}')
            a.i(f'v_mov_b32 v{T}, 0')
            a.i(f'v_mov_b32 v{T+1}, 1')
            a.i('s_mov_b64 exec, 1')
            a.i(f'global_atomic_add v{T}, v{T+1}, s[{P_DBG}:{P_DBG+1}]')
            a.i('s_mov_b64 exec, -1')
            self.cond_end()
            a.label(skip)
        return self.add_comp(Comp(emit, self.pro_loads, 'B1'))
    def mk_clrload(self):
        def emit():
            a = self.a
            a.i(f'v_mov_b32 v{T+18}, 0')
            return a.i(f'global_load_dword v{T+19}, v{T+18}, s[{P_DBG}:{P_DBG+1}] sc1')
        return self.add_load(Load(emit, None, 'CLR'))
    def mk_clrcheck(self, cl):
        def emit():
            a = self.a
            ok = a.newlabel('clok'); lp = a.newlabel('clp')
            a.i(f'v_readfirstlane_b32 s{sT}, v{T+19}')
            a.i(f's_cmp_ge_u32 s{sT}, 224')
            self.cond_begin()
            a.i(f's_cbranch_scc1 {ok}')
            a.label(lp)
            a.i(f'global_load_dword v{T+19}, v{T+18}, s[{P_DBG}:{P_DBG+1}] sc1')
            a.i('s_waitcnt vmcnt(0)')
            a.i(f'v_readfirstlane_b32 s{sT}, v{T+19}')
            a.i(f's_cmp_ge_u32 s{sT}, 224')
            a.i(f's_cbranch_scc1 {ok}')
            a.i(f's_sub_u32 s{sSpin}, s{sSpin}, 1')
            a.i(f's_cmp_gt_i32 s{sSpin}, 0')
            a.i(f's_cbranch_scc1 {lp}')
            self.cond_end()
            a.label(ok)
        return self.add_comp(Comp(emit, [cl], 'clrcheck'))

    def kslot(self, u):
        return ar(4 * u) if u < 64 else vr(self.vRET + 4 * (u - 64))
    def in_mall(self, i, limit, cnt):
        if self.c.mall_mod is None:
            return cnt < limit
        num, den = self.c.mall_mod
        return (i % den) < num

    def stream_k(self, inst, Pset, tiles, pbase=0, pol=None):
        b = inst & 1
        cnt = 0
        for ti, tile in enumerate(tiles):
            ku = k_units(tile)
            for gi in range(0, len(ku), 2):
                g = ku[gi][0]
                ls = []; regs = []
                self.curpol = self.c.polA[inst] if self.in_mall(cnt // 2, self.c.mallK[inst & 1], cnt) else ' nt'
                if pol is not None: self.curpol = pol
                if tile == ('H', 1) and self.c.l2tile: self.curpol = self.c.pol_l2[inst >> 1]
                cnt += 2
                for jj in range(2):
                    s = self.ring_slot()
                    ls.append(self.mk_kload(b, tile, g, jj, vr(vRING + 4*s), self.ring_reader[s])); regs.append(s)
                C = self.mk_qk(vr(vRING + 4*regs[0]), vr(vRING + 4*regs[1]), vP[Pset] + pbase + ti, tile, g, ls)
                for s in regs: self.ring_reader[s] = C
    def stream_v(self, inst, Pset, tiles, pbase=0, pol=None):
        b = inst & 1
        cnt = 0
        Iset = 'X' if b == 0 else 'Y'
        for ti, tile in enumerate(tiles):
            for t in v_units(tile):
                self.curpol = self.c.polA[inst] if self.in_mall(cnt, self.c.mallV[inst & 1], cnt) else ' nt'
                if tile == ('H', 1) and self.c.l2tile: self.curpol = self.c.pol_l2[inst >> 1]
                cnt += 1
                s = self.ring_slot()
                L = self.mk_vload(b, tile, t, vr(vRING + 4*s), self.ring_reader[s])
                self.ring_reader[s] = self.mk_pv(vr(vRING + 4*s), vP[Pset] + pbase + ti, t, vO[Iset], [L])
    def b_kunits(self):
        out = []
        for ti, tile in enumerate(HALF_B):
            for (g, jj) in k_units(tile): out.append((ti, tile, g, jj))
        assert len(out) == 72
        return out
    def b_vunits(self):
        out = []
        for ti, tile in enumerate(HALF_B):
            for t in v_units(tile): out.append((ti, tile, t))
        assert len(out) == 72
        return out
    def halfB_loadK(self, b):
        self.curpol = self.c.pol
        return [self.mk_kload(b, tile, g, jj, self.kslot(u), self.k_reader[u]) for u, (ti, tile, g, jj) in enumerate(self.b_kunits())]
    def halfB_loadV(self, b):
        self.curpol = self.c.pol
        Ls = []
        for u, (ti, tile, t) in enumerate(self.b_vunits()):
            if u < self.NV_REG:
                Ls.append(self.mk_vload(b, tile, t, vr(self.vRET + 4 * (self.KX + u)), self.v_reader[u]))
            else:
                Ls.append(self.mk_vload_lds(b, tile, t, u - self.NV_REG, self.v_reader[u]))
        return Ls
    def halfB_qk(self, Pset, Ls):
        ku = self.b_kunits()
        for u in range(0, 72, 2):
            ti, tile, g, _ = ku[u]
            needs = [Ls[u], Ls[u+1]] if Ls else []
            C = self.mk_qk(self.kslot(u), self.kslot(u + 1), vP[Pset] + ti, tile, g, needs)
            self.k_reader[u] = C; self.k_reader[u+1] = C
    def halfB_pv(self, inst, Pset, Ls):
        Iset = 'X' if (inst & 1) == 0 else 'Y'
        for u, (ti, tile, t) in enumerate(self.b_vunits()):
            needs = [Ls[u]] if Ls else []
            if u < self.NV_REG:
                C = self.mk_pv(vr(self.vRET + 4 * (self.KX + u)), vP[Pset] + ti, t, vO[Iset], needs)
            else:
                C = self.mk_pv_lds(u - self.NV_REG, vP[Pset] + ti, t, vO[Iset], needs)
            self.v_reader[u] = C

    def mark(self, name):
        self.marks[name] = len(self.loads)
        if self.c.timing and self.c.stamp_pos is None: self.add_comp(Comp(self.stamp_now, (), 'stamp'))
    def stamp_now(self):
        a = self.a
        k = self.nstamp; self.nstamp += 1
        a.smem(f's_memrealtime s[{sT}:{sT+1}]')
        a.raw('  s_waitcnt lgkmcnt(0)'); a.t += 1; a.lg = []
        a.i(f's_mov_b32 s{STAMP0 + k}, s{sT}')

    def place_before_end(self, L, n):
        self.loads.remove(L); self.loads.insert(len(self.loads) - n, L)

    def build_l2(self):
        c = self.c
        XT = [('H', 1)]
        HA5 = [('F', 4), ('F', 5), ('F', 6), ('F', 7), ('P',)]
        HB6 = HALF_B + XT
        KL = self.halfB_loadK(0)
        if not c.test_attn:
            cs = self.mk_clear()
            for k, L in enumerate(cs): self.loads.insert(c.CLRST_POS + k, L)
            self.pro_loads = [self.loads[c.CLRST_POS + 3 + c.B1_LAG]]
            self.mk_b1()
            cl = self.mk_clrload()
            self.loads.remove(cl); self.loads.insert(c.CLR_POS, cl)
            self.mk_clrcheck(cl)
        VL = self.halfB_loadV(0)
        qg0 = self.mk_qgather(0)
        self.loads.remove(qg0); self.loads.insert(c.QG0_POS, qg0)
        self.mk_acquire(0, qg0)
        self.halfB_qk('X', KL)
        self.mk_softmax('X', 'X', True, HALF_B)
        n0 = len(self.comps)
        self.halfB_pv(0, 'X', VL)
        cB = self.comps[n0:]; del self.comps[n0:]
        HA6 = [('F', 4), ('F', 5), ('F', 6), ('F', 7), ('P',), ('H', 1)]
        self.stream_k(0, 'Y', HA6)
        cA = self.comps[n0:]; del self.comps[n0:]
        self.comps += self.interleave(cB, cA, 2)
        qg1 = self.mk_qgather(1)
        self.mk_softmax('Y', 'X', False, HA6)
        self.stream_v(0, 'Y', HA6)
        self.mk_publish(0)
        self.mark('A')
        self.mk_acquire(1, qg1)
        self.stream_k(1, 'Y', HA5)
        self.mk_softmax('Y', 'Y', True, HA5)
        self.stream_v(1, 'Y', HA5)
        qg2 = self.mk_qgather(2); self.place_before_end(qg2, c.QG_LEAD)
        self.mark('B')
        self.mk_acquire(2, qg2)
        self.stream_k(2, 'X', XT, pbase=5)
        self.halfB_qk('X', None)
        self.mk_softmax('X', 'X', True, HB6)
        self.stream_v(2, 'X', XT, pbase=5)
        self.halfB_pv(2, 'X', None)
        KL = self.halfB_loadK(1)
        self.mk_acquire(1, None)
        self.halfB_qk('Y', KL)
        self.stream_k(1, 'Y', XT, pbase=5)
        VL = self.halfB_loadV(1)
        self.mk_softmax('Y', 'Y', False, HB6)
        self.halfB_pv(1, 'Y', VL)
        self.stream_v(1, 'Y', XT, pbase=5)
        self.mk_publish(1)
        self.mark('C')
        self.mk_acquire(2, None)
        self.stream_k(2, 'X', HA5)
        self.mk_softmax('X', 'X', False, HA5)
        self.stream_v(2, 'X', HA5)
        qg3 = self.mk_qgather(3); self.place_before_end(qg3, c.QG_LEAD)
        self.mk_publish(2)
        self.mark('D')
        self.mk_acquire(3, qg3)
        self.stream_k(3, 'Y', XT, pbase=5)
        n0 = len(self.comps)
        self.stream_k(3, 'X', HA5)
        compsA = self.comps[n0:]; del self.comps[n0:]
        self.halfB_qk('Y', None)
        self.mk_softmax('Y', 'Y', True, HB6)
        self.halfB_pv(3, 'Y', None)
        compsB = self.comps[n0:]; del self.comps[n0:]
        self.comps += self.interleave(compsB, compsA, 3)
        self.stream_v(3, 'Y', XT, pbase=5)
        self.mk_softmax('X', 'Y', False, HA5)
        self.stream_v(3, 'X', HA5)
        self.mk_publish(3)
        self.mark('E')

    def build(self):
        c = self.c
        if c.l2tile: return self.build_l2()
        KL = self.halfB_loadK(0)
        if not c.test_attn:
            cs = self.mk_clear()
            for k, L in enumerate(cs): self.loads.insert(c.CLRST_POS + k, L)
            self.pro_loads = [self.loads[c.CLRST_POS + 3 + c.B1_LAG]]
            self.mk_b1()
        if not c.test_attn:
            cl = self.mk_clrload()
            self.loads.remove(cl); self.loads.insert(c.CLR_POS, cl)
            self.mk_clrcheck(cl)
        VL = self.halfB_loadV(0)
        qg0 = self.mk_qgather(0)
        self.loads.remove(qg0); self.loads.insert(c.QG0_POS, qg0)
        self.mk_acquire(0, qg0)
        self.halfB_qk('X', KL)
        self.mk_softmax('X', 'X', True, HALF_B)
        n0 = len(self.comps)
        self.halfB_pv(0, 'X', VL)
        cB = self.comps[n0:]; del self.comps[n0:]
        self.stream_k(0, 'Y', HALF_A)
        cA = self.comps[n0:]; del self.comps[n0:]
        self.comps += self.interleave(cB, cA, 2)
        qg1 = self.mk_qgather(1)
        self.mk_softmax('Y', 'X', False, HALF_A)
        self.stream_v(0, 'Y', HALF_A)
        self.mk_publish(0)
        self.mark('A')
        self.mk_acquire(1, qg1)
        self.stream_k(1, 'Y', HALF_A)
        self.mk_softmax('Y', 'Y', True, HALF_A)
        self.stream_v(1, 'Y', HALF_A)
        qg2 = self.mk_qgather(2); self.place_before_end(qg2, c.QG_LEAD)
        self.mark('B')
        self.mk_acquire(2, qg2)
        self.halfB_qk('X', None)
        self.mk_softmax('X', 'X', True, HALF_B)
        self.halfB_pv(2, 'X', None)
        KL = self.halfB_loadK(1)
        VL = self.halfB_loadV(1)
        self.mk_acquire(1, None)
        self.halfB_qk('Y', KL)
        self.mk_softmax('Y', 'Y', False, HALF_B)
        self.halfB_pv(1, 'Y', VL)
        self.mk_publish(1)
        self.mark('C')
        self.mk_acquire(2, None)
        self.stream_k(2, 'X', HALF_A)
        self.mk_softmax('X', 'X', False, HALF_A)
        self.stream_v(2, 'X', HALF_A)
        qg3 = self.mk_qgather(3); self.place_before_end(qg3, c.QG_LEAD)
        self.mk_publish(2)
        self.mark('D')
        self.mk_acquire(3, qg3)
        n0 = len(self.comps)
        self.stream_k(3, 'X', HALF_A)
        compsA = self.comps[n0:]; del self.comps[n0:]
        self.halfB_qk('Y', None)
        self.mk_softmax('Y', 'Y', True, HALF_B)
        self.halfB_pv(3, 'Y', None)
        compsB = self.comps[n0:]; del self.comps[n0:]
        self.comps += self.interleave(compsB, compsA, 3)
        self.mk_softmax('X', 'Y', False, HALF_A)
        self.stream_v(3, 'X', HALF_A)
        self.mk_publish(3)
        self.mark('E')

    def interleave(self, main, other, every):
        ia = 0; merged = []
        for k, C in enumerate(main):
            merged.append(C)
            if k % every == every - 1 and ia < len(other):
                merged.append(other[ia]); ia += 1
        merged += other[ia:]
        return merged

    def emit_comp(self, C):
        for L in C.needs:
            assert L.vid is not None, ('load not issued before its consumer', C.name, L.name)
            self.a.wait_vm(L.vid)
        C.emit(); C.done = True

    def schedule(self):
        c = self.c; a = self.a
        ci = 0; comps = self.comps
        for li, L in enumerate(self.loads):
            L.idx = li
            if L.after is not None and not L.after.done:
                while not L.after.done:
                    self.emit_comp(comps[ci]); ci += 1
            Dd = c.D
            for (pos, dv) in c.Dsched:
                if li >= pos: Dd = dv
            if li >= max(Dd, c.BURST):
                a.wait_vm(self.loads[li - Dd].vid)
            L.vid = L.emit()
            if c.stamp_pos is not None and li in c.stamp_pos: self.stamp_now()
            n = 0
            while ci < len(comps) and n < c.budget:
                C = comps[ci]
                if all(x.vid is not None and a.vm_done(x.vid) for x in C.needs):
                    self.emit_comp(C); ci += 1; n += 1
                else:
                    break
        while ci < len(comps):
            self.emit_comp(comps[ci]); ci += 1

    def prologue(self):
        a = self.a; c = self.c
        l = T + 8
        a.i(f'v_mov_b32 v{l}, v0')
        a.i(f's_mul_i32 s{sT}, s{sS}, 292')
        a.i(f's_min_u32 s{sT+1}, s{sS}, 4')
        a.i(f's_add_u32 s{sT}, s{sT}, s{sT+1}')
        a.i(f's_lshl_b32 s{sT}, s{sT}, 11')
        a.i(f's_lshl_b32 s{sT+1}, s{sH}, 22')
        a.i(f's_add_u32 s{sT}, s{sT}, s{sT+1}')
        a.i(f's_lshl_b32 s{sT+1}, s{sWave}, 14')
        a.i(f's_add_u32 s{sB[0]}, s{sT}, s{sT+1}')
        a.i(f's_add_u32 s{sB[1]}, s{sB[0]}, 0x8000000')
        a.i(f's_lshl_b32 s{sT+1}, s{sWave}, 12')
        a.i(f's_add_u32 s{sBp[0]}, s{sT}, s{sT+1}')
        a.i(f's_add_u32 s{sBp[0]}, s{sBp[0]}, {9 * 65536}')
        a.i(f's_add_u32 s{sBp[1]}, s{sBp[0]}, 0x8000000')
        a.i(f's_cmp_lt_u32 s{sS}, 4')
        a.i(f's_cselect_b32 s{sT}, 5, 4')
        a.i(f's_lshl_b32 s{sT+1}, s{sWave}, 1')
        a.i(f's_sub_i32 s{sT}, s{sT}, s{sT+1}')
        a.i(f's_max_i32 s{sT}, s{sT}, 0')
        a.i(f's_min_i32 s{sT}, s{sT}, 2')
        a.i(f's_lshl_b32 s{sNV}, s{sT}, 3')
        for g in range(2):
            a.i(f's_cmp_gt_u32 s{sNV}, {8 * g}')
            a.i(f's_cselect_b64 s[{sPX[g]}:{sPX[g]+1}], -1, 0')
        a.i(f's_lshl_b32 s{sPidx}, s{sS}, 2')
        a.i(f's_add_u32 s{sPidx}, s{sPidx}, s{sWave}')
        a.i(f's_mul_i32 s{sLdsRet}, s{sWave}, {self.NV_LDS * 1024}')
        a.i(f's_add_u32 s{sLdsRet}, s{sLdsRet}, {L_RET}')
        a.i(f's_lshl_b32 s{sQG}, s{sWave}, 9')
        if L_QG: a.i(f's_add_u32 s{sQG}, s{sQG}, {L_QG}')
        a.i(f'v_lshlrev_b32 v{vL16}, 4, v{l}')
        a.i(f'v_add_u32 v{vLdsRet}, s{sLdsRet}, v{vL16}')
        a.i(f's_sub_u32 s{sLdsRet}, s{sLdsRet}, 4096')
        a.i(f'v_and_b32 v{T}, 7, v{l}')
        a.i(f'v_lshlrev_b32 v{vKoff}, 8, v{T}')
        a.i(f'v_bfe_u32 v{T}, v{l}, 3, 1')
        a.i(f'v_lshl_add_u32 v{vKoff}, v{T}, 6, v{vKoff}')
        a.i(f'v_lshrrev_b32 v{T+1}, 4, v{l}')
        a.i(f'v_lshl_add_u32 v{vKoff}, v{T+1}, 4, v{vKoff}')
        a.i(f'v_and_b32 v{T}, 15, v{l}')
        a.i(f'v_lshlrev_b32 v{vVoff}, 4, v{T}')
        a.i(f'v_lshl_add_u32 v{vV8}, v{T+1}, 11, v{vVoff}')
        a.i(f'v_lshl_add_u32 v{vVoff}, v{T+1}, 12, v{vVoff}')
        a.i(f'v_lshl_add_u32 v{T+2}, v{T}, 2, v{T+1}')
        a.i(f'v_cmp_gt_u32 vcc, s{sNV}, v{T+2}')
        a.i(f'v_cndmask_b32 v{T+2}, 16, v{T+2}, vcc')
        a.i(f'v_lshlrev_b32 v{vBP}, 2, v{T+2}')
        a.i(f'v_and_b32 v{T+2}, 1, v{l}')
        a.i(f'v_lshlrev_b32 v{T+2}, 4, v{T+2}')
        a.i(f'v_mov_b32 v{T+3}, 0xffff')
        a.i(f'v_lshlrev_b32 v{T+3}, v{T+2}, v{T+3}')
        a.i(f'v_lshrrev_b32 v{T+4}, 1, v{T}')
        for r in range(4):
            a.i(f'v_cmp_eq_u32 vcc, {r}, v{T+4}')
            a.i(f'v_cndmask_b32 v{vMask[r]}, 0, v{T+3}, vcc')

    def mk_clear(self):
        res = []
        def mk(k):
            def emit():
                a = self.a
                if k == 0:
                    for i in range(4): a.i(f'v_mov_b32 v{T+12+i}, -1')
                    a.i(f's_sub_u32 s{sClr}, s{sWG}, 32')
                    a.i(f's_lshl_b32 s{sClr}, s{sClr}, 2')
                    a.i(f's_add_u32 s{sClr}, s{sClr}, s{sWave}')
                    a.i(f's_mul_i32 s{sClr}, s{sClr}, 3072')
                return a.i(f'buffer_store_dwordx4 v[{T+12}:{T+15}], v{vL16}, {SRD_WS}, s{sClr} offen offset:{k*1024} sc1')
            return emit
        for k in range(3):
            L = Load(mk(k), None, 'CLRST'); res.append(L)
        return res

    def write_stamps(self, extra=()):
        a = self.a
        a.i(f's_lshl_b32 s{sT}, s{sWG}, 2')
        a.i(f's_add_u32 s{sT}, s{sT}, s{sWave}')
        a.i(f's_lshl_b32 s{sT}, s{sT}, 6')
        a.i(f's_add_u32 s{sT}, s{sT}, {W_DBG}')
        a.i(f's_mov_b64 exec, 1')
        a.i(f'v_mov_b32 v{T+1}, 0')
        for k in range(self.nstamp):
            a.i(f'v_mov_b32 v{T}, s{STAMP0 + k}')
            a.i(f'buffer_store_dword v{T}, v{T+1}, {SRD_WS}, s{sT} offen offset:{4*k}')
        a.i(f'v_mov_b32 v{T}, s{sSpin}')
        a.i(f'buffer_store_dword v{T}, v{T+1}, {SRD_WS}, s{sT} offen offset:48')
        a.i(f's_mov_b64 exec, -1')
```

```python
from asmlib import Asm
from common import *

vKoff, vVoff, vV8, vL16, vLdsRet = 0, 1, 2, 3, 4
vBP = 5
vMask = [6, 7, 8, 9]
vL = {'X': 10, 'Y': 11}
vQ = 12
vP = {'X': 20, 'Y': 26}
vO = {'X': 32, 'Y': 36}
T = 40
vACC = [40, 44]
vAT = [48, 52]
vLT = [56, 56]
vRING = 60
NEGINF = 0xff800000

L_QG = 0
L_RET = 2048

def lane(a, r):
    a.i(f'v_lshrrev_b32 v{r}, 4, v{vL16}')

class Load:
    def __init__(self, emit, after=None, name='', w=1.0):
        self.emit = emit; self.after = after; self.name = name; self.vid = None; self.idx = None; self.w = w
class Comp:
    def __init__(self, emit, needs=(), name=''):
        self.emit = emit; self.needs = list(needs); self.name = name; self.done = False

HALF_B = [('F', 0), ('F', 1), ('F', 2), ('F', 3), ('H', 0)]
HALF_A = [('F', 4), ('F', 5), ('F', 6), ('F', 7), ('H', 1), ('P',)]

def k_units(tile):
    n = {'F': 8, 'H': 4, 'P': 2}[tile[0]]
    return [(g, jj) for g in range(n) for jj in range(2)]
def v_units(tile):
    return list(range({'F': 16, 'H': 8, 'P': 4}[tile[0]]))

class Stream:
    def __init__(self, cfg, a):
        self.c = cfg
        self.a = a
        self.loads = []; self.comps = []
        self.pend = []
        self.accsel = 0; self.atsel = 0; self.ltsel = 0
        self.ring = 0
        self.ring_reader = [None] * cfg.NRING
        self.vRET = vRING + 4 * cfg.NRING
        self.NVREG = (256 - self.vRET) // 4
        self.KX = 72 - 64
        self.NV_REG = self.NVREG - self.KX
        self.NV_LDS = 72 - self.NV_REG
        assert L_RET + 4 * self.NV_LDS * 1024 <= 163840, (self.NV_LDS,)
        self.k_reader = [None] * 72
        self.v_reader = [None] * 72
        self.curK = None; self.curV = None
        self.marks = {}
        self.nstamp = 0
        self.pro_loads = []
        self.uid = 0
        self.curpol = cfg.pol

    def set_off(self, which, b, tile, const):
        a = self.a
        base = sBp[b] if tile[0] == 'P' else sB[b]
        key = (base, const)
        reg = sOffK if which == 'K' else sOffV
        cur = self.curK if which == 'K' else self.curV
        if cur != key:
            if const == 0: a.i(f's_mov_b32 s{reg}, s{base}')
            else: a.i(f's_add_u32 s{reg}, s{base}, {const}')
            if which == 'K': self.curK = key
            else: self.curV = key
        return f's{reg}'

    def add_load(self, L): self.loads.append(L); return L
    def add_comp(self, C): self.comps.append(C); return C
    def ring_slot(self):
        s = self.ring % self.c.NRING; self.ring += 1
        return s

    def k_addr(self, tile, g, jj):
        if tile[0] == 'F': return tile[1] * 65536 + (g >> 1) * 4096, (g & 1) * 2048 + jj * 128
        if tile[0] == 'H': return 8 * 65536 + tile[1] * 8192 + (g >> 1) * 4096, (g & 1) * 2048 + jj * 128
        return 0, g * 2048 + jj * 128
    def v_addr(self, tile, t):
        if tile[0] == 'F': return tile[1] * 65536, t * 256, vVoff
        if tile[0] == 'H': return 8 * 65536 + tile[1] * 8192, t * 256, vV8
        return 0, t * 1024, vL16
    def k_place(self, tile, g):
        if tile[0] == 'F': return g >> 1, g & 1
        if tile[0] == 'H': return g, 0
        return 0, g

    def mk_kload(self, b, tile, g, jj, dst, after):
        pol = self.curpol
        def emit():
            const, imm = self.k_addr(tile, g, jj)
            so = self.set_off('K', b, tile, const)
            if tile[0] == 'P' and self.c.skip_inv: self.a.i(f's_mov_b64 exec, s[{sPX[g]}:{sPX[g]+1}]')
            r = self.a.i(f'buffer_load_dwordx4 {dst}, v{vKoff}, {SRD_K}, {so} offen offset:{imm}{pol}')
            if tile[0] == 'P' and self.c.skip_inv: self.a.i('s_mov_b64 exec, -1')
            return r
        return self.add_load(Load(emit, after, f'K b{b} {tile} g{g} j{jj}'))
    def mk_vload(self, b, tile, t, dst, after):
        pol = self.curpol
        def emit():
            const, imm, vo = self.v_addr(tile, t)
            so = self.set_off('V', b, tile, const)
            if tile[0] == 'P' and self.c.skip_inv: self.a.i(f's_mov_b64 exec, s[{sPX[t >> 1]}:{sPX[t >> 1]+1}]')
            r = self.a.i(f'buffer_load_dwordx4 {dst}, v{vo}, {SRD_V}, {so} offen offset:{imm}{pol}')
            if tile[0] == 'P' and self.c.skip_inv: self.a.i('s_mov_b64 exec, -1')
            return r
        return self.add_load(Load(emit, after, f'V b{b} {tile} u{t}'))
    def mk_vload_lds(self, b, tile, t, slot, after):
        def emit():
            const, imm, vo = self.v_addr(tile, t)
            so = self.set_off('V', b, tile, const)
            self.a.i(f's_add_u32 m0, s{sLdsRet}, {slot * 1024 - imm + 4096}')
            return self.a.i(f'buffer_load_dwordx4 v{vo}, {SRD_V}, {so} offen offset:{imm}{self.c.pol} lds')
        return self.add_load(Load(emit, after, f'VL b{b} {tile} u{t}'))

    def flush_adds(self, acc=None):
        a = self.a
        keep = []
        for (ac, S, row, hh) in self.pend:
            if acc is None or ac == acc:
                if hh == 0:
                    a.i(f'v_add_f32_dpp v{S}, v{ac+1}, v{ac} row_ror:8 row_mask:{hex(1 << row)} bank_mask:0x3')
                else:
                    a.i(f'v_add_f32_dpp v{S}, v{ac}, v{ac+1} row_ror:8 row_mask:{hex(1 << row)} bank_mask:0xc')
            else:
                keep.append((ac, S, row, hh))
        self.pend = keep

    def mk_qk(self, B0, B1, S, tile, g, needs):
        def emit():
            a = self.a
            if g == 0 and tile[0] in 'HP':
                a.i(f'v_mov_b32 v{S}, {hex(NEGINF)}')
            ac = vACC[self.accsel]; self.accsel ^= 1
            self.flush_adds(ac)
            a.i(f'v_mfma_f32_16x16x32_bf16 {vr(ac)}, {vr(vQ)}, {B0}, 0')
            a.i(f'v_mfma_f32_16x16x32_bf16 {vr(ac)}, {vr(vQ+4)}, {B1}, {vr(ac)}')
            row, hh = self.k_place(tile, g)
            self.pend.append((ac, S, row, hh))
        return self.add_comp(Comp(emit, needs, f'QK {tile} g{g}'))

    def pv_core(self, B, P, t, O, mid=None):
        a = self.a
        at = vAT[self.atsel]; self.atsel ^= 1
        for r in range(4):
            a.i(f'v_and_b32_dpp v{at+r}, v{P}, v{vMask[r]} row_newbcast:{t} row_mask:0xf bank_mask:0xf')
        if mid: mid()
        a.i(f'v_mfma_f32_16x16x32_bf16 {vr(O)}, {vr(at)}, {B}, {vr(O)}')
    def mk_pv(self, B, P, t, O, needs):
        return self.add_comp(Comp(lambda: self.pv_core(B, P, t, O), needs, f'PV t{t}'))
    def mk_pv_lds(self, slot, P, t, O, needs):
        def emit():
            a = self.a
            lt = vLT[self.ltsel]; self.ltsel ^= 1
            lid = a.i(f'ds_read_b128 {vr(lt)}, v{vLdsRet} offset:{slot * 1024}')
            self.pv_core(vr(lt), P, t, O, mid=lambda: a.wait_lg(lid))
        return self.add_comp(Comp(emit, needs, f'PVL t{t}'))

    def mk_softmax(self, Pset, Iset, first, tiles):
        n = len(tiles)
        def emit():
            a = self.a
            self.flush_adds()
            S = vP[Pset]; O = vO[Iset]; Lr = vL[Iset]; m = sM[Iset]
            t0, t1, t2, t3 = T, T+1, T+2, T+3
            pk = [i for i, tl in enumerate(tiles) if tl[0] == 'P']
            if pk:
                k = pk[0]
                lid = a.i(f'ds_bpermute_b32 v{S+k}, v{vBP}, v{S+k}')
                a.wait_lg(lid)
            for i in range(n): a.i(f'v_mul_f32 v{S+i}, {hex(f2u(SCALE))}, v{S+i}')
            a.i(f'v_max3_f32 v{t0}, v{S}, v{S+1}, v{S+2}')
            a.i(f'v_max3_f32 v{t0}, v{t0}, v{S+3}, v{S+4}')
            if n == 6: a.i(f'v_max_f32 v{t0}, v{t0}, v{S+5}')
            if not first: a.i(f'v_max_f32 v{t0}, s{m}, v{t0}')
            wave_reduce_multi(a, 'v_max_f32', [t0])
            a.i(f'v_readlane_b32 s{sT}, v{t0}, 63')
            if not first:
                a.i(f'v_mov_b32 v{t1}, s{sT}')
                a.i(f'v_sub_f32 v{t1}, s{m}, v{t1}')
                a.i(f'v_exp_f32 v{t1}, v{t1}')
                for i in range(4): a.i(f'v_mul_f32 v{O+i}, v{O+i}, v{t1}')
                a.i(f'v_mul_f32 v{Lr}, v{Lr}, v{t1}')
            else:
                for i in range(4): a.i(f'v_mov_b32 v{O+i}, 0')
            a.i(f's_mov_b32 s{m}, s{sT}')
            for i in range(n): a.i(f'v_subrev_f32 v{S+i}, s{m}, v{S+i}')
            for i in range(n): a.i(f'v_exp_f32 v{S+i}, v{S+i}')
            a.i(f'v_add_f32 v{t2}, v{S}, v{S+1}')
            a.i(f'v_add_f32 v{t3}, v{S+2}, v{S+3}')
            a.i(f'v_add_f32 v{t2}, v{t2}, v{S+4}')
            if n == 6: a.i(f'v_add_f32 v{t3}, v{t3}, v{S+5}')
            if first:
                a.i(f'v_add_f32 v{Lr}, v{t2}, v{t3}')
            else:
                a.i(f'v_add_f32 v{t2}, v{t2}, v{t3}')
                a.i(f'v_add_f32 v{Lr}, v{Lr}, v{t2}')
            for i in range(n): a.i(f'v_cvt_pk_bf16_f32 v{S+i}, v{S+i}, v{S+i}')
        return self.add_comp(Comp(emit, (), f'softmax {Pset} {Iset} {first}'))

    def cond_begin(self):
        self.a.flush_hazards()
        self._snap = (list(self.a.vm), list(self.a.lg))
    def cond_end(self):
        self.a.flush_hazards()
        self.a.vm, self.a.lg = self._snap

    def mk_publish(self, inst):
        Iset = 'X' if (inst & 1) == 0 else 'Y'
        def emit():
            a = self.a
            O = vO[Iset]; Lr = vL[Iset]; m = sM[Iset]
            t = T
            wave_reduce_multi(a, 'v_add_f32', [Lr])
            lane(a, t+5)
            a.i(f'v_and_b32 v{t}, 15, v{t+5}')
            a.i(f'v_lshlrev_b32 v{t}, 5, v{t}')
            a.i(f'v_lshrrev_b32 v{t+1}, 4, v{t+5}')
            a.i(f'v_lshl_add_u32 v{t}, v{t+1}, 4, v{t}')
            a.i(f's_mul_i32 s{sT}, s{sH}, {NP}')
            a.i(f's_add_u32 s{sT}, s{sT}, s{sPidx}')
            a.i(f's_lshl_b32 s{sT}, s{sT}, 9')
            a.i(f's_add_u32 s{sT}, s{sT}, {W_PO + inst * 32 * NP * 512}')
            a.i(f's_mov_b32 exec_hi, 0')
            a.i(f'buffer_store_dwordx4 {vr(O)}, v{t}, {SRD_WS}, s{sT} offen sc1')
            a.i(f's_lshl_b32 s{sT}, s{sH}, 8')
            a.i(f's_lshl_b32 s{sT+1}, s{sPidx}, 3')
            a.i(f's_add_u32 s{sT}, s{sT}, s{sT+1}')
            a.i(f's_add_u32 s{sT}, s{sT}, {W_PML + inst * 8192}')
            a.i(f's_mov_b64 exec, -1')
            a.i(f'v_mov_b32 v{t+2}, s{m}')
            a.i(f'v_mov_b32 v{t+3}, v{Lr}')
            a.i(f'v_mov_b32 v{t+4}, 0')
            a.i(f's_mov_b32 exec_lo, 0')
            a.i(f's_mov_b32 exec_hi, 0x80000000')
            a.i(f'buffer_store_dwordx2 v[{t+2}:{t+3}], v{t+4}, {SRD_WS}, s{sT} offen sc1')
            a.i(f's_mov_b64 exec, -1')
        return self.add_comp(Comp(emit, (), f'publish {inst}'))

    def mk_qgather(self, inst):
        def emit():
            a = self.a
            a.i(f's_lshl_b32 s{sT}, s{sH}, 8')
            a.i(f's_add_u32 s{sT}, s{sT}, {W_Q + inst * 8192}')
            a.i(f's_add_u32 m0, s{sQG}, {(inst & 1) * 256}')
            a.i(f'v_lshrrev_b32 v{T+19}, 2, v{vL16}')
            return a.i(f'buffer_load_dword v{T+19}, {SRD_WS}, s{sT} offen sc1 lds')
        return self.add_load(Load(emit, None, f'QG {inst}'))
    def q_read(self, inst):
        a = self.a; t = T
        lane(a, t+1)
        a.i(f'v_and_b32 v{t}, 1, v{t+1}')
        a.i(f'v_lshlrev_b32 v{t}, 6, v{t}')
        a.i(f'v_lshrrev_b32 v{t+1}, 4, v{t+1}')
        a.i(f'v_lshl_add_u32 v{t}, v{t+1}, 4, v{t}')
        a.i(f'v_add_u32 v{t}, s{sQG}, v{t}')
        a.i(f'ds_read_b128 {vr(vQ)}, v{t} offset:{(inst & 1) * 256}')
        lid = a.i(f'ds_read_b128 {vr(vQ+4)}, v{t} offset:{(inst & 1) * 256 + 128}')
        a.wait_lg(lid)
    def q_bad(self):
        a = self.a; t = T + 2
        a.i(f'v_max3_u32 v{t}, v{vQ}, v{vQ+1}, v{vQ+2}')
        a.i(f'v_max3_u32 v{t}, v{t}, v{vQ+3}, v{vQ+4}')
        a.i(f'v_max3_u32 v{t}, v{t}, v{vQ+5}, v{vQ+6}')
        a.i(f'v_max_u32 v{t}, v{t}, v{vQ+7}')
        a.i(f'v_cmp_eq_u32 vcc, -1, v{t}')
        a.i(f's_cmp_lg_u64 vcc, 0')
    def mk_acquire(self, inst, gather):
        def emit():
            a = self.a
            self.flush_adds()
            self.q_read(inst)
            if gather is not None and not self.c.test_attn:
                ok = a.newlabel('qok'); lp = a.newlabel('qretry')
                self.q_bad()
                self.cond_begin()
                a.i(f's_cbranch_scc0 {ok}')
                a.label(lp)
                a.i('s_sleep 2')
                a.i(f's_lshl_b32 s{sT}, s{sH}, 8')
                a.i(f's_add_u32 s{sT}, s{sT}, {W_Q + inst * 8192}')
                a.i(f's_add_u32 m0, s{sQG}, {(inst & 1) * 256}')
                a.i(f'v_lshrrev_b32 v{T+19}, 2, v{vL16}')
                a.i(f'buffer_load_dword v{T+19}, {SRD_WS}, s{sT} offen sc1 lds')
                a.i('s_waitcnt vmcnt(0)')
                self.q_read(inst)
                self.q_bad()
                a.i(f's_cbranch_scc0 {ok}')
                a.i(f's_sub_u32 s{sSpin}, s{sSpin}, 1')
                a.i(f's_cmp_gt_i32 s{sSpin}, 0')
                a.i(f's_cbranch_scc1 {lp}')
                self.cond_end()
                a.label(ok)
        return self.add_comp(Comp(emit, [gather] if gather else [], f'acquire {inst}'))

    def mk_b1(self):
        def emit():
            a = self.a
            a.i('s_barrier')
            skip = a.newlabel('b1')
            a.i(f's_cmp_eq_u32 s{sWave}, 0')
            self.cond_begin()
            a.i(f's_cbranch_scc0 {skip}')
            a.i(f'v_mov_b32 v{T}, 0')
            a.i(f'v_mov_b32 v{T+1}, 1')
            a.i('s_mov_b64 exec, 1')
            a.i(f'global_atomic_add v{T}, v{T+1}, s[{P_DBG}:{P_DBG+1}]')
            a.i('s_mov_b64 exec, -1')
            self.cond_end()
            a.label(skip)
        return self.add_comp(Comp(emit, self.pro_loads, 'B1'))
    def mk_clrload(self):
        def emit():
            a = self.a
            a.i(f'v_mov_b32 v{T+18}, 0')
            return a.i(f'global_load_dword v{T+19}, v{T+18}, s[{P_DBG}:{P_DBG+1}] sc1')
        return self.add_load(Load(emit, None, 'CLR'))
    def mk_clrcheck(self, cl):
        def emit():
            a = self.a
            ok = a.newlabel('clok'); lp = a.newlabel('clp')
            a.i(f'v_readfirstlane_b32 s{sT}, v{T+19}')
            a.i(f's_cmp_ge_u32 s{sT}, 224')
            self.cond_begin()
            a.i(f's_cbranch_scc1 {ok}')
            a.label(lp)
            a.i(f'global_load_dword v{T+19}, v{T+18}, s[{P_DBG}:{P_DBG+1}] sc1')
            a.i('s_waitcnt vmcnt(0)')
            a.i(f'v_readfirstlane_b32 s{sT}, v{T+19}')
            a.i(f's_cmp_ge_u32 s{sT}, 224')
            a.i(f's_cbranch_scc1 {ok}')
            a.i(f's_sub_u32 s{sSpin}, s{sSpin}, 1')
            a.i(f's_cmp_gt_i32 s{sSpin}, 0')
            a.i(f's_cbranch_scc1 {lp}')
            self.cond_end()
            a.label(ok)
        return self.add_comp(Comp(emit, [cl], 'clrcheck'))

    def kslot(self, u):
        return ar(4 * u) if u < 64 else vr(self.vRET + 4 * (u - 64))
    def in_mall(self, i, limit, cnt):
        if self.c.mall_mod is None:
            return cnt < limit
        num, den = self.c.mall_mod
        return (i % den) < num

    def stream_k(self, inst, Pset, tiles, pbase=0, pol=None):
        b = inst & 1
        cnt = 0
        for ti, tile in enumerate(tiles):
            ku = k_units(tile)
            for gi in range(0, len(ku), 2):
                g = ku[gi][0]
                ls = []; regs = []
                self.curpol = self.c.polA[inst] if self.in_mall(cnt // 2, self.c.mallK[inst & 1], cnt) else ' nt'
                if pol is not None: self.curpol = pol
                if self.c.l2tile and tile == self.xtile: self.curpol = self.c.pol_l2[inst >> 1]
                cnt += 2
                for jj in range(2):
                    s = self.ring_slot()
                    ls.append(self.mk_kload(b, tile, g, jj, vr(vRING + 4*s), self.ring_reader[s])); regs.append(s)
                C = self.mk_qk(vr(vRING + 4*regs[0]), vr(vRING + 4*regs[1]), vP[Pset] + pbase + ti, tile, g, ls)
                for s in regs: self.ring_reader[s] = C
    def stream_v(self, inst, Pset, tiles, pbase=0, pol=None):
        b = inst & 1
        cnt = 0
        Iset = 'X' if b == 0 else 'Y'
        for ti, tile in enumerate(tiles):
            for t in v_units(tile):
                self.curpol = self.c.polA[inst] if self.in_mall(cnt, self.c.mallV[inst & 1], cnt) else ' nt'
                if self.c.l2tile and tile == self.xtile: self.curpol = self.c.pol_l2[inst >> 1]
                cnt += 1
                s = self.ring_slot()
                L = self.mk_vload(b, tile, t, vr(vRING + 4*s), self.ring_reader[s])
                self.ring_reader[s] = self.mk_pv(vr(vRING + 4*s), vP[Pset] + pbase + ti, t, vO[Iset], [L])
    def b_kunits(self):
        out = []
        for ti, tile in enumerate(HALF_B):
            for (g, jj) in k_units(tile): out.append((ti, tile, g, jj))
        assert len(out) == 72
        return out
    def b_vunits(self):
        out = []
        for ti, tile in enumerate(HALF_B):
            for t in v_units(tile): out.append((ti, tile, t))
        assert len(out) == 72
        return out
    def halfB_loadK(self, b):
        self.curpol = self.c.pol
        return [self.mk_kload(b, tile, g, jj, self.kslot(u), self.k_reader[u]) for u, (ti, tile, g, jj) in enumerate(self.b_kunits())]
    def halfB_loadV(self, b):
        self.curpol = self.c.pol
        Ls = []
        for u, (ti, tile, t) in enumerate(self.b_vunits()):
            if u < self.NV_REG:
                Ls.append(self.mk_vload(b, tile, t, vr(self.vRET + 4 * (self.KX + u)), self.v_reader[u]))
            else:
                Ls.append(self.mk_vload_lds(b, tile, t, u - self.NV_REG, self.v_reader[u]))
        return Ls
    def halfB_qk(self, Pset, Ls):
        ku = self.b_kunits()
        for u in range(0, 72, 2):
            ti, tile, g, _ = ku[u]
            needs = [Ls[u], Ls[u+1]] if Ls else []
            C = self.mk_qk(self.kslot(u), self.kslot(u + 1), vP[Pset] + ti, tile, g, needs)
            self.k_reader[u] = C; self.k_reader[u+1] = C
    def halfB_pv(self, inst, Pset, Ls):
        Iset = 'X' if (inst & 1) == 0 else 'Y'
        for u, (ti, tile, t) in enumerate(self.b_vunits()):
            needs = [Ls[u]] if Ls else []
            if u < self.NV_REG:
                C = self.mk_pv(vr(self.vRET + 4 * (self.KX + u)), vP[Pset] + ti, t, vO[Iset], needs)
            else:
                C = self.mk_pv_lds(u - self.NV_REG, vP[Pset] + ti, t, vO[Iset], needs)
            self.v_reader[u] = C

    def mark(self, name):
        self.marks[name] = len(self.loads)
        if self.c.timing and self.c.stamp_pos is None: self.add_comp(Comp(self.stamp_now, (), 'stamp'))
    def stamp_now(self):
        a = self.a
        k = self.nstamp; self.nstamp += 1
        a.smem(f's_memrealtime s[{sT}:{sT+1}]')
        a.raw('  s_waitcnt lgkmcnt(0)'); a.t += 1; a.lg = []
        a.i(f's_mov_b32 s{STAMP0 + k}, s{sT}')

    def place_before_end(self, L, n):
        self.loads.remove(L); self.loads.insert(len(self.loads) - n, L)

    def build_l2(self):
        c = self.c
        if c.l2tile == 'F':
            XT = [('F', 7)]
            HA5 = [('F', 4), ('F', 5), ('F', 6), ('H', 1), ('P',)]
        else:
            XT = [('H', 1)]
            HA5 = [('F', 4), ('F', 5), ('F', 6), ('F', 7), ('P',)]
        self.xtile = XT[0]
        HB6 = HALF_B + XT
        KL = self.halfB_loadK(0)
        if not c.test_attn:
            cs = self.mk_clear()
            for k, L in enumerate(cs): self.loads.insert(c.CLRST_POS + k, L)
            self.pro_loads = [self.loads[c.CLRST_POS + 3 + c.B1_LAG]]
            self.mk_b1()
            cl = self.mk_clrload()
            self.loads.remove(cl); self.loads.insert(c.CLR_POS, cl)
            self.mk_clrcheck(cl)
        VL = self.halfB_loadV(0)
        qg0 = self.mk_qgather(0)
        self.loads.remove(qg0); self.loads.insert(c.QG0_POS, qg0)
        self.mk_acquire(0, qg0)
        self.halfB_qk('X', KL)
        self.mk_softmax('X', 'X', True, HALF_B)
        n0 = len(self.comps)
        self.halfB_pv(0, 'X', VL)
        cB = self.comps[n0:]; del self.comps[n0:]
        HA6 = HA5 + XT
        self.stream_k(0, 'Y', HA6)
        cA = self.comps[n0:]; del self.comps[n0:]
        self.comps += self.interleave(cB, cA, 2)
        qg1 = self.mk_qgather(1)
        self.mk_softmax('Y', 'X', False, HA6)
        self.stream_v(0, 'Y', HA6)
        self.mk_publish(0)
        self.mark('A')
        self.mk_acquire(1, qg1)
        self.stream_k(1, 'Y', HA5)
        self.mk_softmax('Y', 'Y', True, HA5)
        self.stream_v(1, 'Y', HA5)
        qg2 = self.mk_qgather(2); self.place_before_end(qg2, c.QG_LEAD)
        self.mark('B')
        self.mk_acquire(2, qg2)
        self.stream_k(2, 'X', XT, pbase=5)
        self.halfB_qk('X', None)
        self.mk_softmax('X', 'X', True, HB6)
        self.stream_v(2, 'X', XT, pbase=5)
        self.halfB_pv(2, 'X', None)
        KL = self.halfB_loadK(1)
        self.mk_acquire(1, None)
        self.halfB_qk('Y', KL)
        self.stream_k(1, 'Y', XT, pbase=5)
        VL = self.halfB_loadV(1)
        self.mk_softmax('Y', 'Y', False, HB6)
        self.halfB_pv(1, 'Y', VL)
        self.stream_v(1, 'Y', XT, pbase=5)
        self.mk_publish(1)
        self.mark('C')
        self.mk_acquire(2, None)
        self.stream_k(2, 'X', HA5)
        self.mk_softmax('X', 'X', False, HA5)
        self.stream_v(2, 'X', HA5)
        qg3 = self.mk_qgather(3); self.place_before_end(qg3, c.QG_LEAD)
        self.mk_publish(2)
        self.mark('D')
        self.mk_acquire(3, qg3)
        self.stream_k(3, 'Y', XT, pbase=5)
        n0 = len(self.comps)
        self.stream_k(3, 'X', HA5)
        compsA = self.comps[n0:]; del self.comps[n0:]
        self.halfB_qk('Y', None)
        self.mk_softmax('Y', 'Y', True, HB6)
        self.halfB_pv(3, 'Y', None)
        compsB = self.comps[n0:]; del self.comps[n0:]
        self.comps += self.interleave(compsB, compsA, 3)
        self.stream_v(3, 'Y', XT, pbase=5)
        self.mk_softmax('X', 'Y', False, HA5)
        self.stream_v(3, 'X', HA5)
        self.mk_publish(3)
        self.mark('E')

    def build(self):
        c = self.c
        if c.l2tile: return self.build_l2()
        KL = self.halfB_loadK(0)
        if not c.test_attn:
            cs = self.mk_clear()
            for k, L in enumerate(cs): self.loads.insert(c.CLRST_POS + k, L)
            self.pro_loads = [self.loads[c.CLRST_POS + 3 + c.B1_LAG]]
            self.mk_b1()
        if not c.test_attn:
            cl = self.mk_clrload()
            self.loads.remove(cl); self.loads.insert(c.CLR_POS, cl)
            self.mk_clrcheck(cl)
        VL = self.halfB_loadV(0)
        qg0 = self.mk_qgather(0)
        self.loads.remove(qg0); self.loads.insert(c.QG0_POS, qg0)
        self.mk_acquire(0, qg0)
        self.halfB_qk('X', KL)
        self.mk_softmax('X', 'X', True, HALF_B)
        n0 = len(self.comps)
        self.halfB_pv(0, 'X', VL)
        cB = self.comps[n0:]; del self.comps[n0:]
        self.stream_k(0, 'Y', HALF_A)
        cA = self.comps[n0:]; del self.comps[n0:]
        self.comps += self.interleave(cB, cA, 2)
        qg1 = self.mk_qgather(1)
        self.mk_softmax('Y', 'X', False, HALF_A)
        self.stream_v(0, 'Y', HALF_A)
        self.mk_publish(0)
        self.mark('A')
        self.mk_acquire(1, qg1)
        self.stream_k(1, 'Y', HALF_A)
        self.mk_softmax('Y', 'Y', True, HALF_A)
        self.stream_v(1, 'Y', HALF_A)
        qg2 = self.mk_qgather(2); self.place_before_end(qg2, c.QG_LEAD)
        self.mark('B')
        self.mk_acquire(2, qg2)
        self.halfB_qk('X', None)
        self.mk_softmax('X', 'X', True, HALF_B)
        self.halfB_pv(2, 'X', None)
        KL = self.halfB_loadK(1)
        VL = self.halfB_loadV(1)
        self.mk_acquire(1, None)
        self.halfB_qk('Y', KL)
        self.mk_softmax('Y', 'Y', False, HALF_B)
        self.halfB_pv(1, 'Y', VL)
        self.mk_publish(1)
        self.mark('C')
        self.mk_acquire(2, None)
        self.stream_k(2, 'X', HALF_A)
        self.mk_softmax('X', 'X', False, HALF_A)
        self.stream_v(2, 'X', HALF_A)
        qg3 = self.mk_qgather(3); self.place_before_end(qg3, c.QG_LEAD)
        self.mk_publish(2)
        self.mark('D')
        self.mk_acquire(3, qg3)
        n0 = len(self.comps)
        self.stream_k(3, 'X', HALF_A)
        compsA = self.comps[n0:]; del self.comps[n0:]
        self.halfB_qk('Y', None)
        self.mk_softmax('Y', 'Y', True, HALF_B)
        self.halfB_pv(3, 'Y', None)
        compsB = self.comps[n0:]; del self.comps[n0:]
        self.comps += self.interleave(compsB, compsA, 3)
        self.mk_softmax('X', 'Y', False, HALF_A)
        self.stream_v(3, 'X', HALF_A)
        self.mk_publish(3)
        self.mark('E')

    def interleave(self, main, other, every):
        ia = 0; merged = []
        for k, C in enumerate(main):
            merged.append(C)
            if k % every == every - 1 and ia < len(other):
                merged.append(other[ia]); ia += 1
        merged += other[ia:]
        return merged

    def emit_comp(self, C):
        for L in C.needs:
            assert L.vid is not None, ('load not issued before its consumer', C.name, L.name)
            self.a.wait_vm(L.vid)
        C.emit(); C.done = True

    def schedule(self):
        c = self.c; a = self.a
        ci = 0; comps = self.comps
        for li, L in enumerate(self.loads):
            L.idx = li
            if L.after is not None and not L.after.done:
                while not L.after.done:
                    self.emit_comp(comps[ci]); ci += 1
            Dd = c.D
            for (pos, dv) in c.Dsched:
                if li >= pos: Dd = dv
            if li >= max(Dd, c.BURST):
                a.wait_vm(self.loads[li - Dd].vid)
            L.vid = L.emit()
            if c.stamp_pos is not None and li in c.stamp_pos: self.stamp_now()
            n = 0
            while ci < len(comps) and n < c.budget:
                C = comps[ci]
                if all(x.vid is not None and a.vm_done(x.vid) for x in C.needs):
                    self.emit_comp(C); ci += 1; n += 1
                else:
                    break
        while ci < len(comps):
            self.emit_comp(comps[ci]); ci += 1

    def prologue(self):
        a = self.a; c = self.c
        l = T + 8
        a.i(f'v_mov_b32 v{l}, v0')
        a.i(f's_mul_i32 s{sT}, s{sS}, 292')
        a.i(f's_min_u32 s{sT+1}, s{sS}, 4')
        a.i(f's_add_u32 s{sT}, s{sT}, s{sT+1}')
        a.i(f's_lshl_b32 s{sT}, s{sT}, 11')
        a.i(f's_lshl_b32 s{sT+1}, s{sH}, 22')
        a.i(f's_add_u32 s{sT}, s{sT}, s{sT+1}')
        a.i(f's_lshl_b32 s{sT+1}, s{sWave}, 14')
        a.i(f's_add_u32 s{sB[0]}, s{sT}, s{sT+1}')
        a.i(f's_add_u32 s{sB[1]}, s{sB[0]}, 0x8000000')
        a.i(f's_lshl_b32 s{sT+1}, s{sWave}, 12')
        a.i(f's_add_u32 s{sBp[0]}, s{sT}, s{sT+1}')
        a.i(f's_add_u32 s{sBp[0]}, s{sBp[0]}, {9 * 65536}')
        a.i(f's_add_u32 s{sBp[1]}, s{sBp[0]}, 0x8000000')
        a.i(f's_cmp_lt_u32 s{sS}, 4')
        a.i(f's_cselect_b32 s{sT}, 5, 4')
        a.i(f's_lshl_b32 s{sT+1}, s{sWave}, 1')
        a.i(f's_sub_i32 s{sT}, s{sT}, s{sT+1}')
        a.i(f's_max_i32 s{sT}, s{sT}, 0')
        a.i(f's_min_i32 s{sT}, s{sT}, 2')
        a.i(f's_lshl_b32 s{sNV}, s{sT}, 3')
        for g in range(2):
            a.i(f's_cmp_gt_u32 s{sNV}, {8 * g}')
            a.i(f's_cselect_b64 s[{sPX[g]}:{sPX[g]+1}], -1, 0')
        a.i(f's_lshl_b32 s{sPidx}, s{sS}, 2')
        a.i(f's_add_u32 s{sPidx}, s{sPidx}, s{sWave}')
        a.i(f's_mul_i32 s{sLdsRet}, s{sWave}, {self.NV_LDS * 1024}')
        a.i(f's_add_u32 s{sLdsRet}, s{sLdsRet}, {L_RET}')
        a.i(f's_lshl_b32 s{sQG}, s{sWave}, 9')
        if L_QG: a.i(f's_add_u32 s{sQG}, s{sQG}, {L_QG}')
        a.i(f'v_lshlrev_b32 v{vL16}, 4, v{l}')
        a.i(f'v_add_u32 v{vLdsRet}, s{sLdsRet}, v{vL16}')
        a.i(f's_sub_u32 s{sLdsRet}, s{sLdsRet}, 4096')
        a.i(f'v_and_b32 v{T}, 7, v{l}')
        a.i(f'v_lshlrev_b32 v{vKoff}, 8, v{T}')
        a.i(f'v_bfe_u32 v{T}, v{l}, 3, 1')
        a.i(f'v_lshl_add_u32 v{vKoff}, v{T}, 6, v{vKoff}')
        a.i(f'v_lshrrev_b32 v{T+1}, 4, v{l}')
        a.i(f'v_lshl_add_u32 v{vKoff}, v{T+1}, 4, v{vKoff}')
        a.i(f'v_and_b32 v{T}, 15, v{l}')
        a.i(f'v_lshlrev_b32 v{vVoff}, 4, v{T}')
        a.i(f'v_lshl_add_u32 v{vV8}, v{T+1}, 11, v{vVoff}')
        a.i(f'v_lshl_add_u32 v{vVoff}, v{T+1}, 12, v{vVoff}')
        a.i(f'v_lshl_add_u32 v{T+2}, v{T}, 2, v{T+1}')
        a.i(f'v_cmp_gt_u32 vcc, s{sNV}, v{T+2}')
        a.i(f'v_cndmask_b32 v{T+2}, 16, v{T+2}, vcc')
        a.i(f'v_lshlrev_b32 v{vBP}, 2, v{T+2}')
        a.i(f'v_and_b32 v{T+2}, 1, v{l}')
        a.i(f'v_lshlrev_b32 v{T+2}, 4, v{T+2}')
        a.i(f'v_mov_b32 v{T+3}, 0xffff')
        a.i(f'v_lshlrev_b32 v{T+3}, v{T+2}, v{T+3}')
        a.i(f'v_lshrrev_b32 v{T+4}, 1, v{T}')
        for r in range(4):
            a.i(f'v_cmp_eq_u32 vcc, {r}, v{T+4}')
            a.i(f'v_cndmask_b32 v{vMask[r]}, 0, v{T+3}, vcc')

    def mk_clear(self):
        res = []
        def mk(k):
            def emit():
                a = self.a
                if k == 0:
                    for i in range(4): a.i(f'v_mov_b32 v{T+12+i}, -1')
                    a.i(f's_sub_u32 s{sClr}, s{sWG}, 32')
                    a.i(f's_lshl_b32 s{sClr}, s{sClr}, 2')
                    a.i(f's_add_u32 s{sClr}, s{sClr}, s{sWave}')
                    a.i(f's_mul_i32 s{sClr}, s{sClr}, 3072')
                return a.i(f'buffer_store_dwordx4 v[{T+12}:{T+15}], v{vL16}, {SRD_WS}, s{sClr} offen offset:{k*1024} sc1')
            return emit
        for k in range(3):
            L = Load(mk(k), None, 'CLRST'); res.append(L)
        return res

    def write_stamps(self, extra=()):
        a = self.a
        a.i(f's_lshl_b32 s{sT}, s{sWG}, 2')
        a.i(f's_add_u32 s{sT}, s{sT}, s{sWave}')
        a.i(f's_lshl_b32 s{sT}, s{sT}, 6')
        a.i(f's_add_u32 s{sT}, s{sT}, {W_DBG}')
        a.i(f's_mov_b64 exec, 1')
        a.i(f'v_mov_b32 v{T+1}, 0')
        for k in range(self.nstamp):
            a.i(f'v_mov_b32 v{T}, s{STAMP0 + k}')
            a.i(f'buffer_store_dword v{T}, v{T+1}, {SRD_WS}, s{sT} offen offset:{4*k}')
        a.i(f'v_mov_b32 v{T}, s{sSpin}')
        a.i(f'buffer_store_dword v{T}, v{T+1}, {SRD_WS}, s{sT} offen offset:48')
        a.i(f's_mov_b64 exec, -1')
```
